```python
import torch

def _softmax(x, axis=-1):
    return torch.softmax(x, dim=axis)
def _gelu(x):
    return torch.nn.functional.gelu(x, approximate="tanh")
def _silu(x):
    return torch.nn.functional.silu(x)
def _sigmoid(x):
    return torch.sigmoid(x)
def _layernorm(x, axis=-1, eps=1e-5):
    m = x.mean(dim=axis, keepdim=True)
    v = x.var(dim=axis, keepdim=True, unbiased=False)
    return (x - m) / torch.sqrt(v + eps)
def _scatter_add(tgt, idx, src, axis=0):
    return tgt.clone().index_add_(axis, idx, src)
def _segment_sum(src, seg, n):
    out = torch.zeros((n,) + src.shape[1:], dtype=src.dtype)
    return out.index_add_(0, seg, src)
def _pad(x, pw):
    flat = tuple(v for pair in reversed(pw) for v in pair)
    return torch.nn.functional.pad(x, flat)

kernel_name = 'parallel_sum__linear_attn_block__geglu_ffn__prompt'

def setup_inputs():

    _w = (lambda a: (lambda t: t.to(torch.bfloat16) if t.is_floating_point() else t)(torch.as_tensor(a)))
    def _A_setup():
        B, S, D = 1, 2048, 640
        return {
            "x": _w((lambda *s: torch.randn(*s, dtype=torch.bfloat16) * 0.05)(B, S, D)),
            "wqkv": _w((lambda *s: torch.randn(*s, dtype=torch.bfloat16) * 0.2)(D, 3 * D)),
            "wo": _w((lambda *s: torch.randn(*s, dtype=torch.bfloat16) * 0.2)(D, D)),
        }
    _A_in = _A_setup()

    def _B_setup():
        B, S, D, F = 1, 2048, 640, 1728
        return {
            "x": _w((lambda *s: torch.randn(*s, dtype=torch.bfloat16) * 0.05)(B, S, D)),
            "w_gate": _w((lambda *s: torch.randn(*s, dtype=torch.bfloat16) * 0.05)(D, F)),
            "w_up": _w((lambda *s: torch.randn(*s, dtype=torch.bfloat16) * 0.05)(D, F)),
            "w_down": _w((lambda *s: torch.randn(*s, dtype=torch.bfloat16) * 0.05)(F, D)),
        }
    _B_in = _B_setup()

    return {
        "A_x": _A_in["x"],
        "A_wqkv": _A_in["wqkv"],
        "A_wo": _A_in["wo"],
        "B_x": _B_in["x"],
        "B_w_gate": _B_in["w_gate"],
        "B_w_up": _B_in["w_up"],
        "B_w_down": _B_in["w_down"],
    }

def reference(A_x, A_wqkv, A_wo, B_x, B_w_gate, B_w_up, B_w_down):
    def _A_ref(x, wqkv, wo):
        B, S, D = x.shape
        H = 32; Dh = D // H
        qkv = (lambda x, *d: x.permute(*d))((x @ wqkv).reshape(B, S, 3, H, Dh), 2, 0, 3, 1, 4)
        q, k, v = qkv[0], qkv[1], qkv[2]
        phi = lambda t: torch.where(t > 0, t + 1, torch.exp(t)) + 1e-6
        pq, pk = phi(q), phi(k)
        kv = torch.einsum("bhsd,bhse->bhde", pk, v)
        z = torch.einsum("bhsd->bhd", pk)
        num = torch.einsum("bhqd,bhde->bhqe", pq, kv)
        den = torch.einsum("bhqd,bhd->bhq", pq, z)[..., None] + 1e-6
        o = num / den
        return (lambda x, *d: x.permute(*d))(o, 0, 2, 1, 3).reshape(B, S, D) @ wo

    def _B_ref(x, w_gate, w_up, w_down):
        return (_gelu(x @ w_gate) * (x @ w_up)) @ w_down

    x = A_x
    xn = _layernorm(x, axis=-1)
    return x + _A_ref(xn, A_wqkv, A_wo) + _B_ref(xn, B_w_gate, B_w_up, B_w_down)
```

```python
import re

_REG = re.compile(r"\b([vas])(\d+)\b|\b([vas])\[(\d+):(\d+)\]")

def regs_of(tok):
    out = set()
    for m in _REG.finditer(tok):
        if m.group(1):
            out.add((m.group(1), int(m.group(2))))
        else:
            for i in range(int(m.group(4)), int(m.group(5)) + 1):
                out.add((m.group(3), i))
    if re.search(r"\bvcc\b", tok):
        out.add(("s", "vcc"))
    if re.search(r"\bexec\b", tok):
        out.add(("s", "exec"))
    if re.search(r"\bm0\b", tok):
        out.add(("s", "m0"))
    return out

def split_ops(s):
    ops, depth, cur = [], 0, ""
    for ch in s:
        if ch == "[":
            depth += 1
        if ch == "]":
            depth -= 1
        if ch == "," and depth == 0:
            ops.append(cur.strip()); cur = ""
        else:
            cur += ch
    if cur.strip():
        ops.append(cur.strip())
    return ops

TRANS = ("v_exp_f32", "v_log_f32", "v_rcp_f32", "v_rsq_f32", "v_sqrt_f32", "v_sin_f32", "v_cos_f32")

class Ins:
    def __init__(self, text):
        self.text = text
        t = text.split(";")[0].strip()
        parts = t.split(None, 1)
        self.mn = parts[0]
        rest = parts[1] if len(parts) > 1 else ""
        self.ops = split_ops(rest)
        mn = self.mn
        self.defs, self.uses = set(), set()
        self.kind = "other"
        o = self.ops
        if mn.startswith("v_mfma"):
            self.kind = "mfma"
            self.defs = regs_of(o[0]); self.ab = regs_of(o[1]) | regs_of(o[2]); self.c = regs_of(o[3].split()[0])
            self.uses = self.ab | self.c
            self.passes = 8 if "32x32x16" in mn else 4
        elif mn.startswith("v_cmp"):
            self.kind = "valu"
            self.defs = regs_of(o[0]); self.uses = set().union(*[regs_of(x) for x in o[1:]])
        elif mn.startswith("v_permlane"):
            self.kind = "valu"
            self.defs = regs_of(o[0]) | regs_of(o[1]); self.uses = set(self.defs)
        elif mn.startswith("v_"):
            self.kind = "valu"
            self.defs = regs_of(o[0])
            self.uses = set().union(*[regs_of(x) for x in o[1:]]) if len(o) > 1 else set()
            if mn.startswith(("v_add_co", "v_addc_co", "v_sub_co", "v_subb_co")):
                self.defs |= regs_of(o[1])
            if mn.startswith(("v_fmac", "v_dot2c", "v_pk_fmac")):
                self.uses |= regs_of(o[0])
            if mn.startswith("v_cndmask") and len(o) == 3:
                self.uses.add(("s", "vcc"))
        elif mn.startswith(("buffer_load", "global_load")):
            self.kind = "vmem"
            if " lds" in t or mn.startswith("global_load_lds"):
                self.uses = set().union(*[regs_of(x) for x in o]) | {("s", "m0")}
                self.ldsdma = True
            else:
                self.defs = regs_of(o[0]); self.uses = set().union(*[regs_of(x) for x in o[1:]])
        elif mn.startswith(("buffer_store", "global_store", "buffer_atomic", "global_atomic")):
            self.kind = "vmem"
            self.uses = set().union(*[regs_of(x) for x in o])
            if mn.startswith("buffer_store") and ("x4" in mn or "x3" in mn):
                self.wide_data = regs_of(o[0])
            if mn.startswith("global_store") and ("x4" in mn or "x3" in mn):
                self.wide_data = regs_of(o[1])
        elif mn.startswith(("ds_read", "ds_add_rtn")):
            self.kind = "ds"
            self.defs = regs_of(o[0]); self.uses = set().union(*[regs_of(x.split()[0]) for x in o[1:]])
        elif mn.startswith("ds_"):
            self.kind = "ds"
            self.uses = set().union(*[regs_of(x.split()[0]) for x in o])
        elif mn.startswith("s_"):
            self.kind = "salu"
            if mn.startswith(("s_cmp", "s_cbranch", "s_branch", "s_waitcnt", "s_barrier", "s_nop", "s_endpgm", "s_sleep", "s_setprio")):
                self.uses = set().union(*[regs_of(x) for x in o]) if o else set()
            else:
                self.defs = regs_of(o[0]); self.uses = set().union(*[regs_of(x) for x in o[1:]]) if len(o) > 1 else set()
                if "saveexec" in mn:
                    self.defs.add(("s", "exec"))
    def states(self):
        if self.mn == "s_nop":
            return int(self.ops[0], 0) + 1
        return 1

def required(p, c):
    need = 0
    vdefs = {r for r in p.defs if r[0] in "va"}
    sdefs = {r for r in p.defs if r[0] == "s"}
    if p.kind == "valu":
        if c.kind == "mfma" and vdefs & c.uses:
            need = max(need, 2)
        if c.mn.startswith("v_permlane") and vdefs & c.uses:
            need = max(need, 2)
        if c.mn.startswith(("v_readfirstlane", "v_readlane")) and vdefs & c.uses:
            need = max(need, 1)
        if "dpp" in c.text and vdefs & c.uses:
            need = max(need, 2)
        if p.mn.startswith(TRANS) and c.kind in ("valu",) and vdefs & c.uses:
            need = max(need, 1)
        if p.mn.startswith("v_dot2") and vdefs & (c.uses | c.defs):
            if not (c.mn == p.mn):
                need = max(need, 3)
            else:
                srcab = set().union(*[regs_of(x) for x in c.ops[1:3]])
                if vdefs & srcab:
                    need = max(need, 3)
        if sdefs:
            if c.kind == "vmem" and sdefs & c.uses:
                need = max(need, 5)
            if c.kind == "valu" and sdefs & c.uses:
                need = max(need, 4 if c.mn.startswith(("v_readlane", "v_writelane")) else 2)
            if c.kind == "salu" and sdefs & c.uses:
                need = max(need, 2)
            if ("s", "exec") in sdefs:
                if c.kind == "mfma": need = max(need, 4)
                if c.mn.startswith(("v_readfirstlane", "v_readlane", "v_permlane")): need = max(need, 4)
                if "dpp" in c.text: need = max(need, 5)
    if p.kind == "mfma":
        big = {4: 8, 8: 12}[p.passes]
        if c.kind == "mfma":
            if p.defs & c.ab:
                need = max(need, big)
            if p.defs & c.c and not (p.defs == c.c and p.passes == c.passes):
                need = max(need, {4: 6, 8: 10}[p.passes])
            if p.defs & c.defs and not (p.defs & c.c):
                need = max(need, big)
        elif c.kind in ("valu", "vmem", "ds"):
            if p.defs & (c.uses | c.defs):
                need = max(need, big)
        if c.kind == "valu" and p.c & c.defs:
            need = max(need, {4: 3, 8: 7}[p.passes])
    if p.kind == "salu" and ("s", "m0") in p.defs and getattr(c, "ldsdma", False):
        need = max(need, 1)
    if getattr(p, "wide_data", None) and (p.wide_data & c.defs):
        need = max(need, 2)
    return need

class Asm:
    def __init__(self):
        self.lines = []
        self.window = []
        self.nlabel = 0
    def raw(self, text):
        self.lines.append(text)
    def comment(self, text):
        self.lines.append("    ; " + text)
    def label(self, name):
        self.lines.append(name + ":")
    def newlabel(self, base="L"):
        self.nlabel += 1
        return "%s_%d" % (base, self.nlabel)
    def flush(self, n=0):
        self.window = []
    def __call__(self, text):
        for t in text.strip().split("\n"):
            t = t.strip()
            if not t or t.startswith(";"):
                continue
            self._emit(t)
    def _emit(self, t):
        ins = Ins(t)
        dist = 0
        pad = 0
        for p in reversed(self.window):
            if dist >= 20:
                break
            need = required(p, ins)
            if need > dist:
                pad = max(pad, need - dist)
            dist += p.states()
        while pad > 0:
            n = min(pad, 16)
            nop = Ins("s_nop %d" % (n - 1))
            self.lines.append("    s_nop %d" % (n - 1))
            self.window.append(nop)
            pad -= n
        self.lines.append("    " + t)
        self.window.append(ins)
        if len(self.window) > 40:
            self.window = self.window[-40:]
    def nops(self, n):
        while n > 0:
            k = min(n, 16)
            self("s_nop %d" % (k - 1)); n -= k
    def text(self):
        return "\n".join(self.lines) + "\n"

def vr(a, n=1):
    return "v%d" % a if n == 1 else "v[%d:%d]" % (a, a + n - 1)
def ar(a, n=1):
    return "a%d" % a if n == 1 else "a[%d:%d]" % (a, a + n - 1)
def sr(a, n=1):
    return "s%d" % a if n == 1 else "s[%d:%d]" % (a, a + n - 1)
```

```python
from asmlib import *
import math

WS_H = 0
WS_PQ = WS_H + 32 * 54 * 4096
WS_W2P = WS_PQ + 32 * 40 * 2048
WS_KVP = WS_W2P + 8 * 74 * 5120
WS_KVF = WS_KVP + 8 * 64 * 2048
WS_END = WS_KVF + 65536
OOB = 0x40000000

XSLOT = 32768
XRING = 3
WSLOT = 12352
WRING = 5
WBASE = XSLOT * XRING
UPOFF = 6176
K1_LDS = WBASE + WRING * WSLOT

LOG2E = 1.4426950408889634
def f32bits(x):
    import struct
    return "0x%08x" % struct.unpack("<I", struct.pack("<f", x))[0]

S_X, S_WQKV, S_WO, S_WG, S_WU, S_WD, S_OUT, S_DBG, S_WS = 4, 6, 8, 12, 14, 16, 18, 20, 22
S_WAVE, S_MT, S_GRP, S_ROT, S_TYPE = 24, 25, 26, 27, 28
SRD_X, SRD_W0, SRD_W1, SRD_W2, SRD_WS = 32, 36, 40, 44, 48

def srd(a, base, ptr, nbytes):
    a("s_mov_b32 s%d, s%d" % (base, ptr))
    a("s_and_b32 s%d, s%d, 0xffff" % (base + 1, ptr + 1))
    a("s_mov_b32 s%d, %d" % (base + 2, nbytes))
    a("s_mov_b32 s%d, 0x20000" % (base + 3))

def divmod_const(a, q, r, x, d, maxx, tmp_s):
    sh = 16
    m = (1 << sh) // d + 1
    assert all((v * m) >> sh == v // d for v in range(maxx)), (d, maxx)
    assert m * maxx < (1 << 32) and m < (1 << 24)
    a("v_mul_u32_u24 v%d, %d, v%d" % (q, m, x))
    a("v_lshrrev_b32 v%d, %d, v%d" % (q, sh, q))
    a("v_mul_u32_u24 v%d, %d, v%d" % (r, d, q))
    a("v_sub_u32 v%d, v%d, v%d" % (r, x, r))

def gen_k1(a, name):
    a.raw(".globl %s\n.p2align 8\n.type %s,@function\n%s:" % (name, name, name))
    a.flush()
    a("s_cmp_ge_u32 s2, 256")
    a("s_cbranch_scc1 K1_END")
    a("s_load_dwordx16 s[4:19], s[0:1], 0")
    a("s_load_dwordx4 s[20:23], s[0:1], 64")
    a("v_lshrrev_b32 v1, 6, v0")
    a("v_and_b32 v0, 63, v0")
    a("v_readfirstlane_b32 s%d, v1" % S_WAVE)
    a("s_and_b32 s29, s2, 7")
    a("s_lshr_b32 s30, s2, 3")
    a("s_and_b32 s31, s29, 1")
    a("s_lshl_b32 s31, s31, 2")
    a("s_and_b32 s52, s30, 3")
    a("s_add_u32 s%d, s31, s52" % S_MT)
    a("s_lshr_b32 s53, s30, 2")
    a("s_lshr_b32 s54, s29, 1")
    a("s_lshl_b32 s55, s54, 3")
    a("s_cmp_eq_u32 s54, 3")
    a("s_cselect_b32 s56, 1, 0")
    a("s_sub_u32 s55, s55, s56")
    a("s_add_u32 s%d, s55, s53" % S_GRP)
    a("s_mul_i32 s57, s52, 5")
    a("s_lshr_b32 s57, s57, 1")
    a("s_add_u32 s57, s57, s53")
    a("s_cmp_ge_u32 s57, 10")
    a("s_cselect_b32 s58, 10, 0")
    a("s_sub_u32 s%d, s57, s58" % S_ROT)
    a("s_waitcnt lgkmcnt(0)")
    srd(a, SRD_WS, S_WS, WS_END)
    a("s_cmp_ge_u32 s54, 2")
    a("s_cselect_b32 s56, 7, 8")
    a("s_cmp_ge_u32 s53, s56")
    a("s_cbranch_scc1 K1_PACK")
    a("s_cmp_ge_u32 s%d, 8" % S_WAVE)
    a("s_cbranch_scc1 K1_LOADER")
    a("s_and_b32 s60, s%d, 3" % S_WAVE)
    a("s_cmp_ge_u32 s%d, 22" % S_GRP)
    a("s_cbranch_scc1 K1_KV")
    a("s_cmp_ge_u32 s%d, 18" % S_GRP)
    a("s_cbranch_scc1 K1_Q")
    a("s_cmp_ge_u32 s%d, 4" % S_WAVE)
    a("s_cbranch_scc1 K1_F1")
    gen_compute(a, "F", 0)
    a.label("K1_F1"); a.flush()
    gen_compute(a, "F", 1)
    a.label("K1_Q"); a.flush()
    a("s_sub_u32 s%d, s%d, 18" % (S_GRP, S_GRP))
    a("s_cmp_ge_u32 s%d, 4" % S_WAVE)
    a("s_cbranch_scc1 K1_Q1")
    gen_compute(a, "Q", 0)
    a.label("K1_Q1"); a.flush()
    gen_compute(a, "Q", 1)
    a.label("K1_KV"); a.flush()
    a("s_sub_u32 s%d, s%d, 22" % (S_GRP, S_GRP))
    a("s_cmp_ge_u32 s%d, 4" % S_WAVE)
    a("s_cbranch_scc1 K1_KV1")
    gen_compute(a, "K", 0)
    a.label("K1_KV1"); a.flush()
    gen_compute(a, "K", 1)
    a.label("K1_KVJOB"); a.flush()
    gen_kvjob(a)
    a.label("K1_LOADER"); a.flush()
    gen_loader(a)
    a.label("K1_PACK"); a.flush()
    gen_packer(a)
    a.label("K1_END"); a.flush()
    a("s_endpgm")

def gen_loader(a):
    a("s_sub_u32 s60, s%d, 8" % S_WAVE)
    srd(a, SRD_X, S_X, 2048 * 1280)
    a("v_lshrrev_b32 v4, 3, v0")
    a("v_mul_u32_u24 v4, 1280, v4")
    a("v_lshrrev_b32 v5, 4, v0")
    a("v_and_b32 v6, 7, v0")
    a("v_xor_b32 v7, v6, v5")
    a("v_lshl_add_u32 v2, v7, 4, v4")
    a("v_xor_b32 v7, 4, v7")
    a("v_lshl_add_u32 v3, v7, 4, v4")
    a("s_cmp_ge_u32 s%d, 18" % S_GRP)
    a("s_cbranch_scc1 K1_LD_QKV")
    srd(a, SRD_W0, S_WG, 640 * 3456)
    srd(a, SRD_W2, S_WU, 640 * 3456)
    a("s_cmp_ge_u32 s60, 2")
    a("s_cselect_b32 s%d, s%d, s%d" % (SRD_W1, S_WU, S_WG))
    a("s_cselect_b32 s%d, s%d, s%d" % (SRD_W1 + 1, SRD_W2 + 1, SRD_W0 + 1))
    a("s_mov_b32 s%d, %d" % (SRD_W1 + 2, 640 * 3456))
    a("s_mov_b32 s%d, 0x20000" % (SRD_W1 + 3))
    a("s_add_u32 s61, s60, 4")
    a("s_sub_u32 s62, s60, 2")
    a("s_cmp_ge_u32 s60, 2")
    a("s_cselect_b32 s61, s62, s61")
    a("s_cselect_b32 s63, %d, 0" % UPOFF)
    a("s_add_u32 s62, s60, 2")
    a("s_lshl_b32 s64, s60, 10")
    a("s_lshl_b32 s65, s61, 10")
    a("s_add_u32 s65, s65, s63")
    a("s_lshl_b32 s66, s62, 10")
    a("s_add_u32 s66, s66, %d" % UPOFF)
    for i, sl in enumerate((60, 61, 62)):
        a("s_lshl_b32 s67, s%d, 6" % sl)
        a("v_add_u32 v11, s67, v0")
        divmod_const(a, 12, 13, 11, 12, 384, None)
        a("v_mul_u32_u24 v12, 3456, v12")
        a("v_lshl_add_u32 v%d, v13, 4, v12" % (8 + i))
    a("s_mov_b32 s68, %d" % (32 * 3456))
    a("s_mul_i32 s69, s%d, 192" % S_GRP)
    a("s_branch K1_LD_GO")
    a.label("K1_LD_QKV"); a.flush()
    srd(a, SRD_W0, S_WQKV, 640 * 3840)
    srd(a, SRD_W1, S_WQKV, 640 * 3840)
    srd(a, SRD_W2, S_WQKV, 640 * 3840)
    a("s_lshl_b32 s64, s60, 10")
    a("s_add_u32 s65, s64, 4096")
    a("s_add_u32 s66, s64, 8192")
    a("s_cmp_ge_u32 s%d, 22" % S_GRP)
    a("s_cselect_b32 s70, %d, 0" % (1280 - 160))
    for i in range(3):
        a("s_lshl_b32 s67, s60, 6")
        a("s_add_u32 s67, s67, %d" % (256 * i))
        a("v_add_u32 v11, s67, v0")
        if i == 2:
            a("v_subrev_u32 v14, 128, v11")
            a("v_cmp_le_u32 vcc, 640, v11")
            a("v_cndmask_b32 v11, v11, v14, vcc")
        divmod_const(a, 12, 13, 11, 20, 640, None)
        a("v_mul_u32_u24 v12, 3840, v12")
        a("v_lshl_add_u32 v%d, v13, 4, v12" % (8 + i))
        a("v_mov_b32 v14, s70")
        a("v_cmp_le_u32 vcc, 10, v13")
        a("v_cndmask_b32 v14, 0, v14, vcc")
        a("v_add_u32 v%d, v%d, v14" % (8 + i, 8 + i))
    a("s_mov_b32 s68, %d" % (32 * 3840))
    a("s_sub_u32 s69, s%d, 18" % S_GRP)
    a("s_mul_i32 s69, s69, 320")
    a("s_sub_u32 s71, s%d, 22" % S_GRP)
    a("s_mul_i32 s71, s71, 160")
    a("s_add_u32 s71, s71, 1280")
    a("s_cmp_ge_u32 s%d, 22" % S_GRP)
    a("s_cselect_b32 s69, s71, s69")
    a.label("K1_LD_GO"); a.flush()
    a("s_mov_b32 s72, 0")
    a("s_mov_b32 s73, s%d" % S_ROT)
    a("s_mov_b32 s74, %d" % WBASE)
    a("s_mov_b32 s75, 0")
    a("s_mul_i32 s76, s%d, %d" % (S_MT, 256 * 1280))
    a("s_mul_i32 s77, s60, %d" % (4 * 10240))
    a("s_add_u32 s76, s76, s77")
    a("s_lshl_b32 s77, s60, 12")
    a.label("K1_LD_LOOP")
    for hf in range(2):
        a("s_lshl_b32 s78, s73, 1")
        if hf:
            a("s_add_u32 s78, s78, 1")
        a("s_mul_i32 s78, s78, s68")
        a("s_add_u32 s78, s78, s69")
        for i, (srdw, dst) in enumerate(((SRD_W0, 64), (SRD_W1, 65), (SRD_W2, 66))):
            a("s_add_u32 m0, s74, s%d" % dst)
            a("buffer_load_dwordx4 v%d, s[%d:%d], s78 offen lds" % (8 + i, srdw, srdw + 3))
        a("s_add_u32 s74, s74, %d" % WSLOT)
        a("s_cmp_ge_u32 s74, %d" % (WBASE + WRING * WSLOT))
        a("s_cselect_b32 s74, %d, s74" % WBASE)
        a("s_lshl_b32 s79, s73, 7")
        a("s_add_u32 s79, s79, s76")
        a("s_add_u32 s80, s75, s77")
        if hf:
            a("s_add_u32 s79, s79, %d" % (16 * 10240))
            a("s_add_u32 s80, s80, %d" % (16 * 1024))
        for i in range(4):
            a("s_add_u32 m0, s80, %d" % (i * 1024))
            a("s_add_u32 s81, s79, %d" % (i * 10240))
            a("buffer_load_dwordx4 v%d, s[%d:%d], s81 offen lds" % (2 + (i & 1), SRD_X, SRD_X + 3))
        lab = a.newlabel("K1_LD_SKIP")
        a("s_cmp_lt_u32 s72, %d" % (1 if hf else 2))
        a("s_cbranch_scc1 %s" % lab)
        a("s_waitcnt vmcnt(14)")
        a("s_barrier")
        a.label(lab)
    a("s_add_u32 s75, s75, %d" % XSLOT)
    a("s_cmp_ge_u32 s75, %d" % (XRING * XSLOT))
    a("s_cselect_b32 s75, 0, s75")
    a("s_add_u32 s73, s73, 1")
    a("s_cmp_ge_u32 s73, 10")
    a("s_cselect_b32 s73, 0, s73")
    a("s_add_u32 s72, s72, 1")
    a("s_cmp_lt_u32 s72, 10")
    a("s_cbranch_scc1 K1_LD_LOOP")
    a("s_waitcnt vmcnt(7)")
    a("s_barrier")
    a("s_waitcnt vmcnt(0)")
    a("s_barrier")
    a("s_endpgm")

ACC = 16
FR = 112
V_XB = 2
V_WB = 6
V_XA = 7
V_WA = 8
V_SUM, V_SQ = 9, 10
V_CS = 11
V_T = 152

def gen_compute(a, typ, ch):
    nt = 3 if (typ == "F" or ch == 0) else 2
    t0 = 3 * ch
    orient = "N" if typ == "K" else "T"
    tag = "%s%d" % (typ, ch)
    def acc(t, rb): return ACC + (t * 2 + rb) * 16
    def xf(st, rb): return FR + st * 20 + rb * 4
    def wf(st, t): return FR + st * 20 + 8 + t * 4
    a("v_and_b32 v14, 31, v0")
    a("v_lshrrev_b32 v15, 5, v0")
    a("v_bfe_u32 v%d, v0, 1, 3" % V_T)
    a("v_xor_b32 v%d, v%d, v15" % (V_T, V_T))
    a("s_lshl_b32 s61, s60, 13")
    a("v_lshl_add_u32 v%d, v14, 7, s61" % (V_T + 1))
    for c in range(4):
        a("v_xor_b32 v%d, %d, v%d" % (V_T + 2, 2 * c, V_T))
        a("v_lshl_add_u32 v%d, v%d, 4, v%d" % (V_XB + c, V_T + 2, V_T + 1))
    rowb = 192 if typ == "F" else 320
    a("v_bfe_u32 v%d, v0, 2, 2" % V_T)
    a("v_lshl_add_u32 v%d, v15, 3, v%d" % (V_T, V_T))
    a("v_mul_u32_u24 v%d, %d, v%d" % (V_T, rowb, V_T))
    a("v_and_b32 v%d, 3, v0" % (V_T + 1))
    a("v_lshl_add_u32 v%d, v%d, 3, v%d" % (V_T, V_T + 1, V_T))
    a("v_bfe_u32 v%d, v0, 4, 1" % (V_T + 1))
    a("v_mul_u32_u24 v%d, %d, v%d" % (V_T + 1, UPOFF if typ == "F" else 32, V_T + 1))
    a("v_add_u32 v%d, v%d, v%d" % (V_WB, V_T, V_T + 1))
    tstride = 32 if typ == "F" else 64
    def woff(kk2, half, t): return (16 * kk2 + 4 * half) * rowb + (t0 + t) * tstride
    for r in range(nt * 32):
        a("v_mov_b32 v%d, 0" % (ACC + r))
    for r in (V_SUM, V_SQ, V_CS, V_CS + 1, V_CS + 2):
        a("v_mov_b32 v%d, 0" % r)
    a("s_mov_b32 s62, 0x3f803f80")
    a("s_mov_b32 s63, 0")
    a("s_mov_b32 s64, %d" % XSLOT)
    a("s_mov_b32 s65, %d" % WBASE)
    a("s_mov_b32 s66, 0")
    def reads(st, chunk, xs, kk2):
        out = []
        out.append("v_add_u32 v%d, s%d, v%d" % (V_XA, xs, V_XB + chunk))
        out.append("ds_read_b64_tr_b16 %s, v%d offset:%d" % (vr(wf(st, 0), 2), V_WA, woff(kk2, 0, 0)))
        out.append("ds_read_b64_tr_b16 %s, v%d offset:%d" % (vr(wf(st, 0) + 2, 2), V_WA, woff(kk2, 1, 0)))
        out.append("ds_read_b128 %s, v%d" % (vr(xf(st, 0), 4), V_XA))
        out.append("ds_read_b128 %s, v%d offset:4096" % (vr(xf(st, 1), 4), V_XA))
        for t in range(1, nt):
            out.append("ds_read_b64_tr_b16 %s, v%d offset:%d" % (vr(wf(st, t), 2), V_WA, woff(kk2, 0, t)))
            out.append("ds_read_b64_tr_b16 %s, v%d offset:%d" % (vr(wf(st, t) + 2, 2), V_WA, woff(kk2, 1, t)))
        return out
    def mfma(st, t, rb):
        A, B = (wf(st, t), xf(st, rb)) if orient == "T" else (xf(st, rb), wf(st, t))
        return "v_mfma_f32_32x32x16_bf16 %s, %s, %s, %s" % (vr(acc(t, rb), 16), vr(A, 4), vr(B, 4), vr(acc(t, rb), 16))
    def wadv():
        return ["s_add_u32 s65, s65, %d" % WSLOT,
                "s_cmp_ge_u32 s65, %d" % (WBASE + WRING * WSLOT),
                "s_cselect_b32 s65, %d, s65" % WBASE,
                "v_add_u32 v%d, s65, v%d" % (V_WA, V_WB)]
    a("v_add_u32 v%d, s65, v%d" % (V_WA, V_WB))
    a("s_barrier")
    for t in reads(0, 0, 63, 0):
        a(t)
    a.label("K1_LOOP_" + tag)
    for kk in range(4):
        cur, nxt = kk & 1, (kk & 1) ^ 1
        ms = [mfma(cur, t, rb) for t in range(nt) for rb in range(2)]
        fill = []
        if kk & 1:
            fill += wadv()
            fill += reads(nxt, (kk + 1) & 3, 63 if kk == 1 else 64, 0)
        else:
            fill += reads(nxt, kk + 1, 63, 1)
        st = []
        for r in range(4):
            st.append("v_dot2c_f32_bf16 v%d, s62, v%d" % (V_SUM, xf(cur, ch) + r))
            st.append("v_dot2c_f32_bf16 v%d, v%d, v%d" % (V_SQ, xf(cur, ch) + r, xf(cur, ch) + r))
        a("s_waitcnt lgkmcnt(0)")
        a(ms[0])
        if kk & 1:
            a("s_barrier")
        rest = ms[1:]
        fill = fill + st
        per = (len(fill) + len(rest) - 1) // len(rest)
        for i, m in enumerate(rest):
            for f in fill[i * per:(i + 1) * per]:
                a(f)
            a(m)
        lab = a.newlabel("K1_CS")
        a("s_cmp_lg_u32 s60, %d" % kk)
        a("s_cbranch_scc1 %s" % lab)
        for r in range(4):
            for t in range(nt):
                a("v_dot2c_f32_bf16 v%d, s62, v%d" % (V_CS + t, wf(cur, t) + r))
        a.label(lab)
    a("s_mov_b32 s63, s64")
    a("s_add_u32 s64, s64, %d" % XSLOT)
    a("s_cmp_ge_u32 s64, %d" % (XRING * XSLOT))
    a("s_cselect_b32 s64, 0, s64")
    a("s_add_u32 s66, s66, 1")
    a("s_cmp_lt_u32 s66, 10")
    a("s_cbranch_scc1 K1_LOOP_" + tag)
    a("s_waitcnt lgkmcnt(0)")
    a("s_lshl_b32 s61, s60, 10")
    a("s_add_u32 s61, s61, %d" % (ch * 512))
    a("v_lshl_add_u32 v%d, v14, 4, s61" % V_T)
    a("v_lshl_add_u32 v%d, v15, 3, v%d" % (V_T, V_T))
    a("v_mov_b32 v%d, v%d" % (V_T + 2, V_SUM))
    a("v_mov_b32 v%d, v%d" % (V_T + 3, V_SQ))
    a("ds_write_b64 v%d, %s" % (V_T, vr(V_T + 2, 2)))
    a("s_lshl_b32 s61, s60, 3")
    a("v_lshl_add_u32 v%d, v14, 5, s61" % (V_T + 1))
    a("v_lshl_add_u32 v%d, v15, 2, v%d" % (V_T + 1, V_T + 1))
    for t in range(nt):
        a("ds_write_b32 v%d, v%d offset:%d" % (V_T + 1, V_CS + t, 4096 + (t0 + t) * 1024))
    a("s_waitcnt lgkmcnt(0)")
    a("s_barrier")
    a("s_lshl_b32 s61, s60, 10")
    a("v_lshl_add_u32 v%d, v0, 4, s61" % V_T)
    a("ds_read_b128 %s, v%d" % (vr(V_T + 4, 4), V_T))
    a("v_lshlrev_b32 v%d, 5, v14" % (V_T + 1))
    for t in range(nt):
        a("ds_read_b128 %s, v%d offset:%d" % (vr(FR + t * 8, 4), V_T + 1, 4096 + (t0 + t) * 1024))
        a("ds_read_b128 %s, v%d offset:%d" % (vr(FR + t * 8 + 4, 4), V_T + 1, 4096 + (t0 + t) * 1024 + 16))
    a("s_waitcnt lgkmcnt(0)")
    M, VAR, RS = V_T + 8, V_T + 9, V_T + 10
    a("v_add_f32 v%d, v%d, v%d" % (M, V_T + 4, V_T + 6))
    a("v_add_f32 v%d, v%d, v%d" % (VAR, V_T + 5, V_T + 7))
    a("v_mul_f32 v%d, %s, v%d" % (M, f32bits(1.0 / 640), M))
    a("v_mul_f32 v%d, %s, v%d" % (VAR, f32bits(1.0 / 640), VAR))
    a("v_fma_f32 v%d, -v%d, v%d, v%d" % (VAR, M, M, VAR))
    a("v_max_f32 v%d, 0, v%d" % (VAR, VAR))
    def rbf(r):
        a("v_cvt_pk_bf16_f32 v%d, v%d, v%d" % (r, r, r))
        a("v_and_b32 v%d, 0xffff0000, v%d" % (r, r))
    rbf(VAR)
    a("v_add_f32 v%d, %s, v%d" % (VAR, f32bits(1e-5), VAR))
    rbf(VAR)
    a("v_sqrt_f32 v%d, v%d" % (VAR, VAR))
    rbf(VAR)
    a("v_rcp_f32 v%d, v%d" % (RS, VAR))
    XC0, XC1 = FR + 24, FR + 28
    a("v_sub_f32 v%d, 0, v%d" % (M, M))
    a("v_cvt_pk_bf16_f32 v%d, v%d, v%d" % (M, M, M))
    a("v_cmp_gt_u32 vcc, 32, v0")
    for r in range(1, 4):
        a("v_mov_b32 v%d, 0" % (XC0 + r))
        a("v_mov_b32 v%d, 0" % (XC1 + r))
    a("v_cndmask_b32 v%d, 0, v%d, vcc" % (XC0, M))
    a("v_cndmask_b32 v%d, v%d, 0, vcc" % (XC1, M))
    for t in range(nt):
        b = FR + t * 8
        a("v_add_f32 v%d, v%d, v%d" % (b, b, b + 1))
        a("v_add_f32 v%d, v%d, v%d" % (b + 2, b + 2, b + 3))
        a("v_add_f32 v%d, v%d, v%d" % (b + 4, b + 4, b + 5))
        a("v_add_f32 v%d, v%d, v%d" % (b + 6, b + 6, b + 7))
        a("v_add_f32 v%d, v%d, v%d" % (b, b, b + 2))
        a("v_add_f32 v%d, v%d, v%d" % (b + 4, b + 4, b + 6))
        a("v_add_f32 v%d, v%d, v%d" % (b, b, b + 4))
        a("v_cvt_pk_bf16_f32 v%d, v%d, v%d" % (b + 1, b, b))
        a("v_and_b32 v%d, 0xffff0000, v%d" % (b + 1, b + 1))
        a("v_sub_f32 v%d, v%d, v%d" % (b + 2, b, b + 1))
        a("v_cvt_pk_bf16_f32 v%d, v%d, v%d" % (b, b + 1, b + 2))
        for r in range(1, 4):
            a("v_mov_b32 v%d, 0" % (b + r))
    for t in range(nt):
        for rb in range(2):
            W, X = FR + t * 8, (XC0, XC1)[rb]
            A, B = (W, X) if orient == "T" else (X, W)
            a("v_mfma_f32_32x32x16_bf16 %s, %s, %s, %s" % (vr(acc(t, rb), 16), vr(A, 4), vr(B, 4), vr(acc(t, rb), 16)))
    if typ == "F":
        epi_ffn(a, ch, nt, t0, acc, RS)
    elif typ == "Q":
        epi_q(a, ch, nt, t0, acc, RS)
    else:
        epi_kv(a, ch, nt, t0, acc, RS)

def rs_both(a, RS, R0, R1):
    a("v_mov_b32 v%d, v%d" % (R0, RS))
    a("v_mov_b32 v%d, v%d" % (R1, RS))
    a("v_permlane32_swap_b32 v%d, v%d" % (R0, R1))

def epi_ffn(a, ch, nt, t0, acc, RS):
    R0, R1 = FR + 32, FR + 33
    rs_both(a, RS, R0, R1)
    c0 = -2.0 * math.sqrt(2.0 / math.pi) * LOG2E
    K = [FR + 0, FR + 8]
    for rb, R in enumerate((R0, R1)):
        k = K[rb]
        a("v_mul_f32 v%d, v%d, v%d" % (k + 4, R, R))
        a("v_mul_f32 v%d, %s, v%d" % (k, f32bits(c0), R))
        a("v_mul_f32 v%d, v%d, v%d" % (k + 2, k, k + 4))
        a("v_mul_f32 v%d, %s, v%d" % (k + 2, f32bits(0.044715), k + 2))
    VA = FR + 34
    a("v_bfe_u32 v%d, v0, 4, 1" % VA)
    a("v_lshlrev_b32 v%d, 10, v%d" % (VA, VA))
    a("v_and_b32 v%d, 15, v0" % (VA + 1))
    a("v_lshl_add_u32 v%d, v%d, 4, v%d" % (VA, VA + 1, VA))
    a("v_lshl_add_u32 v%d, v15, 8, v%d" % (VA, VA))
    a("s_lshl_b32 s61, s%d, 2" % S_MT)
    a("s_add_u32 s61, s61, s60")
    a("s_mul_i32 s61, s61, %d" % (54 * 4096))
    a("s_mul_i32 s62, s%d, %d" % (S_GRP, 3 * 4096))
    a("s_add_u32 s61, s61, s62")
    if WS_H:
        a("s_add_u32 s61, s61, %d" % WS_H)
    T = V_T
    n = 0
    for t in range(nt):
        for rb in range(2):
            k = K[rb]
            D = acc(t, rb)
            out = FR + 16 + 4 * (n & 1)
            n += 1
            for j in range(0, 8, 4):
                prs = (j, j + 2)
                for i, p in enumerate(prs):
                    a("v_pk_mul_f32 %s, %s, %s" % (vr(T + 2 * i, 2), vr(D + p, 2), vr(D + p, 2)))
                for i, p in enumerate(prs):
                    a("v_pk_fma_f32 %s, %s, %s, %s op_sel_hi:[1,0,0]" % (vr(T + 2 * i, 2), vr(T + 2 * i, 2), vr(k + 2, 2), vr(k, 2)))
                for i, p in enumerate(prs):
                    a("v_pk_mul_f32 %s, %s, %s" % (vr(T + 2 * i, 2), vr(T + 2 * i, 2), vr(D + p, 2)))
                for i in range(4):
                    a("v_exp_f32 v%d, v%d" % (T + i, T + i))
                for i, p in enumerate(prs):
                    a("v_pk_mul_f32 %s, %s, %s" % (vr(T + 4 + 2 * i, 2), vr(D + p, 2), vr(D + 8 + p, 2)))
                for i, p in enumerate(prs):
                    a("v_pk_add_f32 %s, %s, 1.0 op_sel_hi:[1,0]" % (vr(T + 2 * i, 2), vr(T + 2 * i, 2)))
                for i in range(4):
                    a("v_rcp_f32 v%d, v%d" % (T + i, T + i))
                for i, p in enumerate(prs):
                    a("v_pk_mul_f32 %s, %s, %s op_sel_hi:[1,0]" % (vr(T + 4 + 2 * i, 2), vr(T + 4 + 2 * i, 2), vr(k + 4, 2)))
                for i, p in enumerate(prs):
                    a("v_pk_mul_f32 %s, %s, %s" % (vr(T + 4 + 2 * i, 2), vr(T + 4 + 2 * i, 2), vr(T + 2 * i, 2)))
                for i, p in enumerate(prs):
                    a("v_cvt_pk_bf16_f32 v%d, v%d, v%d" % (out + p // 2, T + 4 + 2 * i, T + 5 + 2 * i))
            B = t0 + t
            off = (B >> 1) * 4096 + (B & 1) * 512 + rb * 2048
            a("s_add_u32 s62, s61, %d" % (off & ~4095))
            a("buffer_store_dwordx4 %s, v%d, s[%d:%d], s62 offen offset:%d" % (vr(out, 4), VA, SRD_WS, SRD_WS + 3, off & 4095))
    a("s_endpgm")

def phi_T(a, D, n, R, RL, T, out):
    for j in range(0, n, 4):
        for i in range(4):
            a("v_mul_f32 v%d, v%d, v%d" % (T + i, D + j + i, RL))
        for i in range(4):
            a("v_min_f32 v%d, 0, v%d" % (T + i, T + i))
        for i in range(4):
            a("v_exp_f32 v%d, v%d" % (T + i, T + i))
        for i in range(4):
            a("v_max_f32 v%d, 0, v%d" % (T + 4 + i, D + j + i))
        for i in range(4):
            a("v_fma_f32 v%d, v%d, v%d, v%d" % (T + i, T + 4 + i, R, T + i))
        for i in range(4):
            a("v_add_f32 v%d, %s, v%d" % (T + i, f32bits(1e-6), T + i))
        for i in range(2):
            a("v_cvt_pk_bf16_f32 v%d, v%d, v%d" % (out + j // 2 + i, T + 2 * i, T + 2 * i + 1))

def epi_q(a, ch, nt, t0, acc, RS):
    R0, R1, L0, L1 = FR + 32, FR + 33, FR + 34, FR + 35
    rs_both(a, RS, R0, R1)
    a("v_mul_f32 v%d, %s, v%d" % (L0, f32bits(LOG2E), R0))
    a("v_mul_f32 v%d, %s, v%d" % (L1, f32bits(LOG2E), R1))
    VA = FR + 36
    a("v_lshlrev_b32 v%d, 4, v0" % VA)
    a("s_lshl_b32 s61, s%d, 2" % S_MT)
    a("s_add_u32 s61, s61, s60")
    a("s_mul_i32 s61, s61, %d" % (40 * 2048))
    a("s_mul_i32 s62, s%d, %d" % (S_GRP, 10 * 2048))
    a("s_add_u32 s61, s61, s62")
    a("s_add_u32 s61, s61, %d" % WS_PQ)
    n = 0
    for t in range(nt):
        for rb in range(2):
            out = FR + 8 * (n & 1)
            n += 1
            phi_T(a, acc(t, rb), 16, (R0, R1)[rb], (L0, L1)[rb], V_T, out)
            a("s_add_u32 s62, s61, %d" % ((t0 + t) * 4096))
            for p in range(2):
                a("buffer_store_dwordx4 %s, v%d, s[%d:%d], s62 offen offset:%d" % (vr(out + 4 * p, 4), VA, SRD_WS, SRD_WS + 3, p * 2048 + rb * 1024))
    a("s_endpgm")

FRL = 16384
ST_RS = 12288
def epi_kv(a, ch, nt, t0, acc, RS):
    a("s_lshl_b32 s61, s60, 8")
    a("s_add_u32 s61, s61, %d" % (ST_RS + ch * 1024))
    a("v_lshl_add_u32 v%d, v0, 2, s61" % V_T)
    a("ds_write_b32 v%d, v%d" % (V_T, RS))
    a("v_lshl_add_u32 v%d, v15, 4, s61" % V_T)
    a("s_waitcnt lgkmcnt(0)")
    RR = FR
    for rb in range(2):
        for q in range(4):
            a("ds_read_b128 %s, v%d offset:%d" % (vr(RR + rb * 16 + q * 4, 4), V_T, rb * 128 + q * 32))
    VA = FR + 32
    a("s_lshl_b32 s61, s60, 12")
    a("v_lshl_add_u32 v%d, v0, 4, s61" % VA)
    a("v_add_u32 v%d, %d, v%d" % (VA, FRL + t0 * 16384, VA))
    a("s_mov_b32 s62, 0x0000ffff")
    a("s_mov_b32 s63, 0x0000ffff")
    a("s_mov_b32 s64, %s" % f32bits(1e-6))
    a("s_waitcnt lgkmcnt(0)")
    T = V_T
    for t in range(nt):
        tt = t0 + t
        for rb in range(2):
            D = acc(t, rb)
            for j in range(0, 16, 4):
                if tt >= 3:
                    for i in range(4):
                        a("v_mul_f32 v%d, v%d, v%d" % (T + i, D + j + i, RR + rb * 16 + j + i))
                else:
                    for i in range(4):
                        a("v_mul_f32 v%d, v%d, v%d" % (T + 8 + i, D + j + i, RR + rb * 16 + j + i))
                    for i in range(4):
                        a("v_min_f32 v%d, 0, v%d" % (T + i, T + 8 + i))
                    for i in range(4):
                        a("v_mul_f32 v%d, %s, v%d" % (T + i, f32bits(LOG2E), T + i))
                    for i in range(4):
                        a("v_exp_f32 v%d, v%d" % (T + i, T + i))
                    for i in range(4):
                        a("v_max_f32 v%d, 0, v%d" % (T + 4 + i, T + 8 + i))
                    for i in range(4):
                        a("v_add_f32 v%d, v%d, v%d" % (T + i, T + 4 + i, T + i))
                    for i in range(4):
                        a("v_add_f32 v%d, s64, v%d" % (T + i, T + i))
                    if tt == 2:
                        for i in range(4):
                            a("v_cndmask_b32 v%d, v%d, v%d, s[62:63]" % (T + i, T + 8 + i, T + i))
                for i in range(2):
                    a("v_cvt_pk_bf16_f32 v%d, v%d, v%d" % (D + j // 2 + i, T + 2 * i, T + 2 * i + 1))
            for p in range(2):
                a("ds_write_b128 v%d, %s offset:%d" % (VA, vr(D + 4 * p, 4), t * 16384 + (rb * 2 + p) * 1024))
    a("s_waitcnt lgkmcnt(0)")
    a("s_barrier")
    a("s_branch K1_KVJOB")

def gen_kvjob(a):
    w = S_WAVE
    a("s_lshr_b32 s61, s%d, 1" % w)
    a("s_add_u32 s62, s%d, 1" % w)
    a("s_lshr_b32 s62, s62, 1")
    a("s_add_u32 s62, s62, 2")
    a("s_sub_u32 s63, s%d, 5" % w)
    a("s_cmp_ge_u32 s%d, 5" % w)
    a("s_cselect_b32 s61, s63, s61")
    a("s_cselect_b32 s62, s63, s62")
    a("s_cselect_b32 s64, 1, 0")
    a("s_lshl_b32 s65, s61, 14")
    a("s_lshl_b32 s66, s62, 14")
    a("v_lshlrev_b32 v2, 4, v0")
    a("v_add_u32 v2, %d, v2" % FRL)
    a("v_add_u32 v3, s66, v2")
    a("v_add_u32 v2, s65, v2")
    D = 16
    A0, B0 = 32, 96
    for k in range(16):
        a("ds_read_b128 %s, v2 offset:%d" % (vr(A0 + 4 * k, 4), k * 1024))
    a("s_cmp_eq_u32 s64, 1")
    a("s_cbranch_scc1 K1_KVJ_Z")
    for k in range(16):
        a("ds_read_b128 %s, v3 offset:%d" % (vr(B0 + 4 * k, 4), k * 1024))
    a("s_branch K1_KVJ_GO")
    a.label("K1_KVJ_Z"); a.flush()
    for r in range(64):
        a("v_mov_b32 v%d, 0x3f803f80" % (B0 + r))
    a.label("K1_KVJ_GO"); a.flush()
    a("v_and_b32 v4, 31, v0")
    a("v_lshrrev_b32 v5, 5, v0")
    a("s_lshl_b32 s67, s62, 5")
    a("s_sub_i32 s67, s67, 80")
    a("v_add_u32 v6, s67, v4")
    a("v_cmp_le_i32 s[68:69], 0, v6")
    a("v_max_i32 v6, 0, v6")
    divmod_const(a, 7, 8, 6, 20, 128, None)
    a("v_cmp_le_u32 vcc, 10, v8")
    a("v_cndmask_b32 v9, 0, 1, vcc")
    a("v_mul_u32_u24 v10, 10, v9")
    a("v_sub_u32 v10, v8, v10")
    a("v_lshrrev_b32 v11, 2, v10")
    a("v_lshlrev_b32 v11, 3, v11")
    a("v_lshl_add_u32 v11, v9, 2, v11")
    a("v_and_b32 v12, 3, v10")
    a("v_add_u32 v11, v11, v12")
    a("v_lshrrev_b32 v12, 1, v4")
    a("v_and_b32 v13, 1, v4")
    a("v_lshlrev_b32 v13, 2, v13")
    a("v_add_u32 v13, 18, v13")
    a("v_cmp_gt_u32 s[70:71], 8, v4")
    a("s_cmp_eq_u32 s64, 1")
    a("s_cselect_b64 s[68:69], s[70:71], s[68:69]")
    a("s_cselect_b64 s[72:73], -1, 0")
    a("v_cndmask_b32 v7, v7, v12, s[72:73]")
    a("v_cndmask_b32 v11, v11, v13, s[72:73]")
    a("v_lshl_add_u32 v11, v5, 5, v11")
    a("v_lshl_add_u32 v11, v7, 7, v11")
    a("v_lshlrev_b32 v11, 5, v11")
    a("s_lshl_b32 s67, s61, 1")
    a("v_mov_b32 v14, %d" % OOB)
    for p in range(2):
        a("v_sub_u32 v12, s67, v7")
        if p:
            a("v_add_u32 v12, 1, v12")
        a("v_cmp_gt_u32 vcc, 2, v12")
        a("s_and_b64 vcc, vcc, s[68:69]")
        a("v_lshl_add_u32 v13, v12, 11, v11")
        a("v_cndmask_b32 v%d, v14, v13, vcc" % (8 + p))
    a("s_lshl_b32 s67, s%d, 6" % S_MT)
    a("s_lshl_b32 s74, s%d, 3" % S_GRP)
    a("s_add_u32 s67, s67, s74")
    a("s_lshl_b32 s67, s67, 11")
    a("s_add_u32 s67, s67, %d" % WS_KVP)
    a("s_waitcnt lgkmcnt(0)")
    for k in range(16):
        a("v_mfma_f32_32x32x16_bf16 %s, %s, %s, %s" % (vr(D, 16), vr(A0 + 4 * k, 4), vr(B0 + 4 * k, 4), vr(D, 16) if k else "0"))
    for p in range(2):
        for q in range(2):
            a("buffer_store_dwordx4 %s, v%d, s[%d:%d], s67 offen offset:%d" % (vr(D + 8 * p + 4 * q, 4), 8 + p, SRD_WS, SRD_WS + 3, 16 * q))
    a("s_endpgm")

def gen_packer(a):
    a("s_sub_u32 s60, s29, 4")
    a("s_lshl_b32 s60, s60, 2")
    a("s_add_u32 s60, s60, s52")
    a("s_mul_i32 s60, s60, 12")
    a("s_add_u32 s60, s60, s%d" % S_WAVE)
    srd(a, SRD_W0, S_WD, 1728 * 1280)
    srd(a, SRD_W1, S_WO, 640 * 1280)
    a("s_mul_i32 s61, s%d, 10240" % S_WAVE)
    for i in range(10):
        a("v_add_u32 v2, %d, v0" % (64 * i))
        divmod_const(a, 20 + i, 3, 2, 20, 640, None)
        a("v_lshlrev_b32 v%d, 4, v3" % (30 + i))
    a("v_lshrrev_b32 v2, 4, v0")
    a("v_bfe_u32 v3, v0, 2, 2")
    a("v_lshl_add_u32 v2, v2, 3, v3")
    a("v_mul_u32_u24 v2, 320, v2")
    a("v_and_b32 v3, 3, v0")
    a("v_lshl_add_u32 v2, v3, 3, v2")
    a("v_add_u32 v10, s61, v2")
    a("v_lshlrev_b32 v11, 4, v0")
    a.label("K1_PK_LOOP")
    a("s_lshr_b32 s62, s60, 2")
    a("s_and_b32 s63, s60, 3")
    a("s_mul_i32 s64, s63, 320")
    a("s_cmp_ge_u32 s62, 54")
    a("s_cbranch_scc1 K1_PK_O")
    a("s_mul_i32 s65, s62, %d" % (32 * 1280))
    a("s_add_u32 s64, s64, s65")
    for i in range(10):
        r = 20 + i
        a("v_and_b32 v2, 19, v%d" % r)
        a("v_bfe_u32 v3, v%d, 3, 1" % r)
        a("v_lshl_add_u32 v2, v3, 2, v2")
        a("v_bfe_u32 v3, v%d, 2, 1" % r)
        a("v_lshl_add_u32 v2, v3, 3, v2")
        a("v_mul_u32_u24 v2, 1280, v2")
        a("v_add_u32 v2, v2, v%d" % (30 + i))
        a("s_add_u32 m0, s61, %d" % (i * 1024))
        a("buffer_load_dwordx4 v2, s[%d:%d], s64 offen lds" % (SRD_W0, SRD_W0 + 3))
    a("s_branch K1_PK_GO")
    a.label("K1_PK_O"); a.flush()
    a("s_sub_u32 s65, s62, 54")
    a("s_mul_i32 s66, s65, 52")
    a("s_lshr_b32 s66, s66, 8")
    a("s_mul_i32 s67, s66, 5")
    a("s_sub_u32 s67, s65, s67")
    a("s_lshl_b32 s67, s67, 4")
    a("s_mul_i32 s66, s66, %d" % (160 * 1280))
    a("s_add_u32 s64, s64, s66")
    for i in range(10):
        r = 20 + i
        a("v_and_b32 v2, 15, v%d" % r)
        a("v_add_u32 v2, s67, v2")
        divmod_const(a, 3, 4, 2, 10, 80, None)
        a("v_mul_u32_u24 v3, 20, v3")
        a("v_add_u32 v3, v3, v4")
        a("v_lshrrev_b32 v4, 4, v%d" % r)
        a("v_mul_u32_u24 v4, 10, v4")
        a("v_add_u32 v3, v3, v4")
        a("v_mul_u32_u24 v2, 1280, v3")
        a("v_add_u32 v2, v2, v%d" % (30 + i))
        a("s_add_u32 m0, s61, %d" % (i * 1024))
        a("buffer_load_dwordx4 v2, s[%d:%d], s64 offen lds" % (SRD_W1, SRD_W1 + 3))
    a.label("K1_PK_GO"); a.flush()
    a("s_lshl_b32 s65, s63, 1")
    a("s_mul_i32 s65, s65, 74")
    a("s_add_u32 s65, s65, s62")
    a("s_mul_i32 s65, s65, 5120")
    a("s_add_u32 s65, s65, %d" % WS_W2P)
    a("s_waitcnt vmcnt(0)")
    for c in range(10):
        a("ds_read_b64_tr_b16 %s, v10 offset:%d" % (vr(40 + 4 * c, 2), c * 32))
        a("ds_read_b64_tr_b16 %s, v10 offset:%d" % (vr(42 + 4 * c, 2), c * 32 + 4 * 320))
    a("s_waitcnt lgkmcnt(0)")
    for c in range(10):
        off = (c // 5) * 74 * 5120 + (c % 5) * 1024
        a("s_add_u32 s66, s65, %d" % off)
        a("buffer_store_dwordx4 %s, v11, s[%d:%d], s66 offen" % (vr(40 + 4 * c, 4), SRD_WS, SRD_WS + 3))
    a("s_add_u32 s60, s60, 192")
    a("s_cmp_lt_u32 s60, 296")
    a("s_cbranch_scc1 K1_PK_LOOP")
    a("s_endpgm")
```

```python
from asmlib import *
from k1 import WS_H, WS_PQ, WS_W2P, WS_KVP, WS_KVF, WS_END, OOB, srd, f32bits

K2_LDS = 4 * 3 * 5120

S_X, S_OUT, S_DBG, S_WS = 4, 18, 20, 22
SRD_X, SRD_OUT, SRD_DBG, SRD_WS = 32, 36, 40, 48
S_W, S_MT, S_NT = 24, 25, 26
S_HB, S_WB, S_PB, S_KB, S_WO = 52, 53, 54, 55, 56
ACC = 16
DT = [96, 112]
V_A = 2
V_B = 6
V_P = 7
V_POLL = 9
V_XO = 10
V_T = 11

class Sched:
    def __init__(self, a, slots):
        self.a = a
        self.free = list(slots)
        self.issued = 0
        self.pos = {}
        self.reg = {}
    def alloc(self, name):
        r = self.free.pop(0)
        self.reg[name] = r
        return r
    def release(self, name):
        self.free.append(self.reg.pop(name))
    def wait(self, names):
        last = max(self.pos[n] for n in names)
        n = self.issued - 1 - last
        self.a("s_waitcnt vmcnt(%d)" % min(n, 63))

def gen_k2(a, name, cfg):
    a.raw(".globl %s\n.p2align 8\n.type %s,@function\n%s:" % (name, name, name))
    a.flush()
    a("s_cmp_ge_u32 s2, 256")
    a("s_cbranch_scc1 K2_END")
    a("s_load_dwordx2 s[4:5], s[0:1], 0")
    a("s_load_dwordx2 s[18:19], s[0:1], 56")
    a("s_load_dwordx4 s[20:23], s[0:1], 64")
    a("v_lshrrev_b32 v1, 6, v0")
    a("v_and_b32 v0, 63, v0")
    a("v_readfirstlane_b32 s%d, v1" % S_W)
    a("s_and_b32 s29, s2, 7")
    a("s_lshr_b32 s30, s2, 3")
    if cfg.get("k2_xm", 8) == 8:
        a("s_lshl_b32 s31, s29, 2")
        a("s_and_b32 s27, s30, 3")
        a("s_add_u32 s%d, s31, s27" % S_MT)
        a("s_lshr_b32 s%d, s30, 2" % S_NT)
    else:
        a("s_and_b32 s31, s29, 3")
        a("s_lshl_b32 s31, s31, 3")
        a("s_and_b32 s27, s30, 7")
        a("s_add_u32 s%d, s31, s27" % S_MT)
        a("s_lshr_b32 s31, s29, 2")
        a("s_lshl_b32 s31, s31, 2")
        a("s_lshr_b32 s27, s30, 3")
        a("s_add_u32 s%d, s31, s27" % S_NT)
    a("v_lshlrev_b32 v%d, 4, v0" % V_B)
    for rb in range(4):
        a("s_xor_b32 s27, s%d, %d" % (S_W, rb))
        a("s_lshl_b32 s27, s27, 10")
        a("v_add_u32 v%d, s27, v%d" % (V_A + rb, V_B))
    a("s_and_b32 s27, s%d, 1" % S_W)
    a("s_lshl_b32 s27, s27, 8")
    a("v_xor_b32 v%d, s27, v%d" % (V_T, V_B))
    a("s_lshr_b32 s27, s%d, 1" % S_W)
    a("s_lshl_b32 s28, s27, 10")
    a("v_add_u32 v%d, s28, v%d" % (V_P, V_T))
    a("s_xor_b32 s28, s28, 1024")
    a("v_add_u32 v%d, s28, v%d" % (V_P + 1, V_T))
    a("s_mul_i32 s%d, s%d, %d" % (S_HB, S_MT, 54 * 4096))
    a("s_mul_i32 s%d, s%d, %d" % (S_WB, S_NT, 74 * 5120))
    a("s_add_u32 s%d, s%d, %d" % (S_WB, S_WB, WS_W2P))
    a("s_mul_i32 s27, s%d, %d" % (S_W, 5 * 5120))
    a("s_add_u32 s%d, s%d, s27" % (S_WO, S_WB))
    a("s_add_u32 s%d, s%d, %d" % (S_WO, S_WO, 54 * 5120))
    a("s_and_b32 s27, s%d, 1" % S_W)
    a("s_add_u32 s27, s27, 52")
    a("s_lshl_b32 s28, s27, 12")
    a("s_add_u32 s57, s%d, s28" % S_HB)
    a("s_mul_i32 s28, s27, 5120")
    a("s_add_u32 s58, s%d, s28" % S_WB)
    a("s_mul_i32 s27, s%d, %d" % (S_W, 13 * 4096))
    a("s_add_u32 s%d, s%d, s27" % (S_HB, S_HB))
    a("s_mul_i32 s27, s%d, %d" % (S_W, 13 * 5120))
    a("s_add_u32 s%d, s%d, s27" % (S_WB, S_WB))
    a("s_mul_i32 s%d, s%d, %d" % (S_PB, S_MT, 40 * 2048))
    a("s_mul_i32 s27, s%d, %d" % (S_W, 10 * 2048))
    a("s_add_u32 s%d, s%d, s27" % (S_PB, S_PB))
    a("s_add_u32 s%d, s%d, %d" % (S_PB, S_PB, WS_PQ))
    a("s_lshl_b32 s%d, s%d, 14" % (S_KB, S_W))
    a("s_add_u32 s%d, s%d, %d" % (S_KB, S_KB, WS_KVF))
    a("s_lshl_b32 s59, s%d, 6" % S_W)
    a("v_and_b32 v%d, 15, v0" % V_T)
    a("v_mul_u32_u24 v%d, 1280, v%d" % (V_XO, V_T))
    a("v_lshrrev_b32 v%d, 4, v0" % V_T)
    a("v_lshl_add_u32 v%d, v%d, 3, v%d" % (V_XO, V_T, V_XO))
    a("s_lshl_b32 s27, s%d, 2" % S_MT)
    a("s_add_u32 s27, s27, s%d" % S_W)
    a("s_mul_i32 s27, s27, %d" % (16 * 1280))
    a("s_mul_i32 s28, s%d, 160" % S_NT)
    a("s_add_u32 s60, s27, s28")
    a("s_waitcnt lgkmcnt(0)")
    srd(a, SRD_WS, S_WS, WS_END)
    srd(a, SRD_X, S_X, 2048 * 1280)
    srd(a, SRD_OUT, S_OUT, 2048 * 1280)
    srd(a, SRD_DBG, S_DBG, 256)
    a("s_cmp_lt_u32 s2, 64")
    a("s_cselect_b32 s61, 1, 0")
    a("s_cmp_eq_u32 s%d, 0" % S_W)
    a("s_cselect_b32 s61, s61, 0")
    a("s_cmp_eq_u32 s61, 0")
    a("s_cbranch_scc1 K2_NORED1")
    a("s_lshr_b32 s62, s2, 1")
    a("s_and_b32 s62, s62, 3")
    a("s_and_b32 s63, s2, 1")
    a("s_add_u32 s63, s63, s62")
    a("s_lshl_b32 s63, s63, 4")
    a("s_mul_i32 s62, s62, 20")
    a("s_sub_i32 s63, s63, s62")
    a("v_lshrrev_b32 v%d, 5, v0" % V_T)
    a("v_lshlrev_b32 v%d, 2, v%d" % (V_T, V_T))
    a("v_add_u32 v%d, s63, v%d" % (V_T, V_T))
    a("v_bfe_u32 v%d, v0, 3, 2" % (V_T + 1))
    a("v_and_b32 v%d, 3, v0" % (V_T + 2))
    a("v_lshl_add_u32 v%d, v%d, 2, v%d" % (V_T + 1, V_T + 1, V_T + 2))
    a("v_cmp_ge_u32 s[64:65], 10, v%d" % (V_T + 1))
    a("v_lshlrev_b32 v%d, 5, v0" % (V_T + 1))
    a("v_mov_b32 v%d, %d" % (V_T + 2, OOB))
    a("v_cmp_gt_u32 vcc, 20, v%d" % V_T)
    a("s_and_b64 vcc, vcc, s[64:65]")
    a("v_cndmask_b32 v%d, v%d, v%d, vcc" % (V_T + 3, V_T + 2, V_T + 1))
    a("v_add_u32 v%d, 8, v%d" % (V_T, V_T))
    a("v_cmp_gt_u32 vcc, 20, v%d" % V_T)
    a("s_and_b64 vcc, vcc, s[64:65]")
    a("v_cndmask_b32 v%d, v%d, v%d, vcc" % (V_T + 4, V_T + 2, V_T + 1))
    a("s_lshl_b32 s62, s2, 11")
    a("s_add_u32 s62, s62, %d" % WS_KVP)
    for mt in range(8):
        a("s_add_u32 s63, s62, %d" % (mt * 64 * 2048))
        a("buffer_load_dwordx4 %s, v%d, s[%d:%d], s63 offen" % (vr(ACC + 8 * mt, 4), V_T + 3, SRD_WS, SRD_WS + 3))
        a("buffer_load_dwordx4 %s, v%d, s[%d:%d], s63 offen offset:16" % (vr(ACC + 8 * mt + 4, 4), V_T + 4, SRD_WS, SRD_WS + 3))
    a.label("K2_NORED1")
    slots = list(range(128, 256, 4)) + list(range(96, 128, 4))
    S = Sched(a, slots)
    loads = []
    def L(name, fn): loads.append((name, fn))
    def hstep_loads(i):
        half = (i == 13)
        nrb = 2 if half else 4
        def pre():
            if half:
                a("s_mov_b32 s62, s57"); a("s_mov_b32 s63, s58")
            else:
                a("s_add_u32 s62, s%d, %d" % (S_HB, i * 4096)); a("s_add_u32 s63, s%d, %d" % (S_WB, i * 5120))
            a("s_add_u32 s64, s63, 4096")
        first = True
        order = [("B", 0), ("A", 0), ("A", 1), ("B", 1), ("A", 2), ("B", 2), ("A", 3), ("B", 3), ("B", 4)]
        for kind, j in order:
            if kind == "A" and j >= nrb:
                continue
            nm = "H%d%s%d" % (i, kind, j)
            def fn(r, kind=kind, j=j, first=first):
                if first: pre()
                if kind == "A":
                    a("buffer_load_dwordx4 %s, v%d, s[%d:%d], s62 offen" % (vr(r, 4), V_A + j, SRD_WS, SRD_WS + 3))
                elif j < 4:
                    a("buffer_load_dwordx4 %s, v%d, s[%d:%d], s63 offen offset:%d" % (vr(r, 4), V_B, SRD_WS, SRD_WS + 3, j * 1024))
                else:
                    a("buffer_load_dwordx4 %s, v%d, s[%d:%d], s64 offen" % (vr(r, 4), V_B, SRD_WS, SRD_WS + 3))
            L(nm, fn)
            first = False
    def pq_load(b, R):
        def fn(r):
            a("s_add_u32 s62, s%d, %d" % (S_PB, b * 2048))
            a("buffer_load_dwordx4 %s, v%d, s[%d:%d], s62 offen" % (vr(r, 4), V_P + R, SRD_WS, SRD_WS + 3))
        L("P%d_%d" % (b, R), fn)
    def kv_load(f):
        def fn(r):
            a("s_add_u32 s62, s%d, %d" % (S_KB, f * 1024))
            a("buffer_load_dwordx4 %s, v%d, s[%d:%d], s62 offen sc1" % (vr(r, 4), V_B, SRD_WS, SRD_WS + 3))
        L("K%d" % f, fn)
    def wo_load(phi, cb):
        def fn(r):
            a("s_add_u32 s62, s%d, %d" % (S_WO, phi * 5120 + cb * 1024))
            a("buffer_load_dwordx4 %s, v%d, s[%d:%d], s62 offen" % (vr(r, 4), V_B, SRD_WS, SRD_WS + 3))
        L("W%d_%d" % (phi, cb), fn)
    def x_load(cb):
        def fn(r):
            a("buffer_load_dwordx2 %s, v%d, s[%d:%d], s60 offen offset:%d" % (vr(r, 2), V_XO, SRD_X, SRD_X + 3, cb * 32))
        L("X%d" % cb, fn)

    NH1 = cfg.get("k2_nh1", 10)
    POLL_AT = cfg.get("k2_poll", 8)
    blocks = []
    for i in range(NH1):
        hstep_loads(i); blocks.append(("H", i))
        if i == POLL_AT:
            L("POLL", None)
    L("CHECK", None)
    seen = set()
    gdone = 0
    for hh in range(8):
        b0 = 5 * (hh >> 2) + (hh & 3)
        for b in (b0, b0 + 1):
            if b not in seen:
                seen.add(b)
                pq_load(b, 0); pq_load(b, 1)
        kv_load(2 * hh); kv_load(2 * hh + 1)
        blocks.append(("O", hh))
        while gdone < 5 and (16 * gdone + 15) // 10 <= hh:
            for cb in range(5):
                wo_load(gdone, cb)
            blocks.append(("G", gdone))
            gdone += 1
    for i in range(NH1, 14):
        hstep_loads(i); blocks.append(("H", i))
        if i == 12:
            for cb in range(5):
                x_load(cb)
    lp = [0]
    reserve = [0]
    dt_reserved = [False]
    def try_issue(maxn):
        n = 0
        while lp[0] < len(loads) and n < maxn:
            nm, fn = loads[lp[0]]
            if nm == "POLL":
                a("buffer_load_dword v%d, off, s[%d:%d], s59 sc1" % (V_POLL, SRD_DBG, SRD_DBG + 3))
                S.pos[nm] = S.issued; S.issued += 1; lp[0] += 1
                continue
            if nm == "CHECK":
                S.wait(["POLL"])
                a("v_readfirstlane_b32 s65, v%d" % V_POLL)
                a("s_cmp_ge_u32 s65, 16")
                a("s_cbranch_scc1 K2_READY")
                a("s_mov_b32 s66, 0")
                a.label("K2_SPIN")
                a("s_add_u32 s66, s66, 1")
                a("s_cmp_gt_u32 s66, 400000")
                a("s_cbranch_scc1 K2_READY")
                a("s_sleep 2")
                a("buffer_load_dword v%d, off, s[%d:%d], s59 sc1" % (V_POLL, SRD_DBG, SRD_DBG + 3))
                a("s_waitcnt vmcnt(0)")
                a("v_readfirstlane_b32 s65, v%d" % V_POLL)
                a("s_cmp_lt_u32 s65, 16")
                a("s_cbranch_scc1 K2_SPIN")
                a.label("K2_READY")
                lp[0] += 1
                dt_reserved[0] = True
                reserve[0] = 6
                continue
            avail = [r for r in S.free if not (dt_reserved[0] and 96 <= r < 128)]
            if len(avail) <= reserve[0]:
                break
            r = avail[0]
            S.free.remove(r); S.reg[nm] = r
            fn(r)
            S.pos[nm] = S.issued; S.issued += 1; lp[0] += 1
            n += 1
        return n
    try_issue(cfg.get("k2_pro", 27))
    n0 = S.issued
    a("s_cmp_eq_u32 s61, 0")
    a("s_cbranch_scc1 K2_NORED2")
    a("s_waitcnt vmcnt(%d)" % n0)
    for mt in range(1, 8):
        for j in range(0, 8, 2):
            a("v_pk_add_f32 %s, %s, %s" % (vr(ACC + j, 2), vr(ACC + j, 2), vr(ACC + 8 * mt + j, 2)))
    for j in range(4):
        a("v_cvt_pk_bf16_f32 v%d, v%d, v%d" % (ACC + 8 + j, ACC + 2 * j, ACC + 2 * j + 1))
    a("s_lshl_b32 s62, s2, 10")
    a("s_add_u32 s62, s62, %d" % WS_KVF)
    a("buffer_store_dwordx4 %s, v%d, s[%d:%d], s62 offen sc0 sc1" % (vr(ACC + 8, 4), V_B, SRD_WS, SRD_WS + 3))
    a("s_lshr_b32 s62, s2, 4")
    a("s_lshl_b32 s62, s62, 6")
    a("v_mov_b32 v%d, 1" % V_T)
    a("s_waitcnt vmcnt(0)")
    a("s_mov_b64 exec, 1")
    a("buffer_atomic_add v%d, off, s[%d:%d], s62 sc1" % (V_T, SRD_DBG, SRD_DBG + 3))
    a("s_mov_b64 exec, -1")
    a.label("K2_NORED2")
    a.nops(2)
    def acc(rb, cb): return ACC + (rb * 5 + cb) * 4
    started = set()
    def mf(rb, cb, A, B):
        c = vr(acc(rb, cb), 4) if (rb, cb) in started else "0"
        started.add((rb, cb))
        return "v_mfma_f32_16x16x32_bf16 %s, %s, %s, %s" % (vr(acc(rb, cb), 4), vr(A, 4), vr(B, 4), c)
    opiece = {}
    dsel = [0]
    for kind, arg in blocks:
        if kind == "H":
            i = arg
            nrb = 2 if i == 13 else 4
            names = ["H%dA%d" % (i, j) for j in range(nrb)] + ["H%dB%d" % (i, j) for j in range(5)]
            while any(n not in S.pos for n in names):
                assert try_issue(1) or all(n in S.pos for n in names), "deadlock in schedule H%d" % i
            S.wait(names)
            k = 0
            for cb in range(5):
                for rb in range(nrb):
                    a(mf(rb, cb, S.reg["H%dB%d" % (i, cb)], S.reg["H%dA%d" % (i, rb)]))
                    k += 1
                    if k % 2 == 0:
                        try_issue(1)
                S.release("H%dB%d" % (i, cb))
            for j in range(nrb):
                S.release("H%dA%d" % (i, j))
        elif kind == "O":
            hh = arg
            b0 = 5 * (hh >> 2) + (hh & 3)
            names = ["P%d_%d" % (b, R) for b in (b0, b0 + 1) for R in range(2)] + ["K%d" % (2 * hh), "K%d" % (2 * hh + 1)]
            while any(n not in S.pos for n in names):
                assert try_issue(1) or all(n in S.pos for n in names), "deadlock in schedule O%d" % hh
            S.wait(names)
            for R in range(2):
                assert all(r in S.free for r in range(DT[R], DT[R] + 16, 4)), "D temp busy"
                for i in range(2):
                    a("v_mfma_f32_32x32x16_bf16 %s, %s, %s, %s" % (vr(DT[R], 16), vr(S.reg["K%d" % (2 * hh + i)], 4), vr(S.reg["P%d_%d" % (b0 + i, R)], 4), vr(DT[R], 16) if i else "0"))
            S.release("K%d" % (2 * hh)); S.release("K%d" % (2 * hh + 1))
            S.release("P%d_0" % b0); S.release("P%d_1" % b0)
            if (hh & 3) == 3:
                S.release("P%d_0" % (b0 + 1)); S.release("P%d_1" % (b0 + 1))
            try_issue(4)
            for R in range(2):
                D = DT[R]
                a("v_add_f32 v%d, %s, v%d" % (D + 10, f32bits(1e-6), D + 10))
                a("v_rcp_f32 v%d, v%d" % (D + 10, D + 10))
                for j in range(0, 10, 2):
                    a("v_pk_mul_f32 %s, %s, %s op_sel_hi:[1,0]" % (vr(D + j, 2), vr(D + j, 2), vr(D + 10, 2)))
                for j in range(5):
                    d = 5 * hh + j
                    key = (R, d // 4)
                    if key not in opiece:
                        avail = [r for r in S.free if not (96 <= r < 128)]
                        assert avail, "no slot for o piece"
                        S.free.remove(avail[0]); opiece[key] = avail[0]
                    a("v_cvt_pk_bf16_f32 v%d, v%d, v%d" % (opiece[key] + d % 4, D + 2 * j, D + 2 * j + 1))
                try_issue(2)
            if hh == 7:
                dt_reserved[0] = False
                reserve[0] = 0
        elif kind == "G":
            phi = arg
            names = ["W%d_%d" % (phi, cb) for cb in range(5)]
            while any(n not in S.pos for n in names):
                assert try_issue(1) or all(n in S.pos for n in names), "deadlock in schedule G%d" % phi
            for R in range(2):
                for j in range(4):
                    a("v_permlane16_swap_b32 v%d, v%d" % (opiece[(R, 2 * phi)] + j, opiece[(R, 2 * phi + 1)] + j))
            S.wait(names)
            k = 0
            for cb in range(5):
                for rb in range(4):
                    a(mf(rb, cb, S.reg["W%d_%d" % (phi, cb)], opiece[(rb >> 1, 2 * phi + (rb & 1))]))
                    k += 1
                    if k % 2 == 0:
                        try_issue(1)
                S.release("W%d_%d" % (phi, cb))
            for R in range(2):
                for i in range(2):
                    S.free.append(opiece.pop((R, 2 * phi + i)))
    assert lp[0] == len(loads)
    for rb in range(1, 4):
        a("s_xor_b32 s62, s%d, %d" % (S_W, rb))
        a("s_mul_i32 s62, s62, %d" % (3 * 5120))
        a("v_add_u32 v%d, s62, v%d" % (V_T + rb - 1, V_B))
    for rb in range(1, 4):
        for cb in range(5):
            a("ds_write_b128 v%d, %s offset:%d" % (V_T + rb - 1, vr(acc(rb, cb), 4), (rb - 1) * 5120 + cb * 1024))
    a("s_mul_i32 s62, s%d, %d" % (S_W, 3 * 5120))
    a("v_add_u32 v%d, s62, v%d" % (V_T + 3, V_B))
    a("s_waitcnt lgkmcnt(0)")
    a("s_barrier")
    for j in range(3):
        for cb in range(5):
            a("ds_read_b128 %s, v%d offset:%d" % (vr(acc(1 + j, cb), 4), V_T + 3, j * 5120 + cb * 1024))
    S.wait(["X%d" % cb for cb in range(5)])
    a("s_waitcnt lgkmcnt(0)")
    for cb in range(5):
        c = acc(0, cb)
        xr = S.reg["X%d" % cb]
        for j in range(1, 4):
            for p in (0, 2):
                a("v_pk_add_f32 %s, %s, %s" % (vr(c + p, 2), vr(c + p, 2), vr(acc(j, cb) + p, 2)))
        t = acc(1, cb)
        a("v_lshlrev_b32 v%d, 16, v%d" % (t, xr))
        a("v_and_b32 v%d, 0xffff0000, v%d" % (t + 1, xr))
        a("v_lshlrev_b32 v%d, 16, v%d" % (t + 2, xr + 1))
        a("v_and_b32 v%d, 0xffff0000, v%d" % (t + 3, xr + 1))
        for p in (0, 2):
            a("v_pk_add_f32 %s, %s, %s" % (vr(c + p, 2), vr(c + p, 2), vr(t + p, 2)))
        a("v_cvt_pk_bf16_f32 v%d, v%d, v%d" % (xr, c, c + 1))
        a("v_cvt_pk_bf16_f32 v%d, v%d, v%d" % (xr + 1, c + 2, c + 3))
        a("buffer_store_dwordx2 %s, v%d, s[%d:%d], s60 offen offset:%d" % (vr(xr, 2), V_XO, SRD_OUT, SRD_OUT + 3, cb * 32))
    a.label("K2_END"); a.flush()
    a("s_endpgm")
```

```python
import sys, json
from asmlib import *
import k1, k2

HEADER = open("parallel_sum__linear_attn_block__geglu_ffn__prompt.s.ref").read().split("; Override launch geometry")[0]

def kd(name, vgpr, sgpr=102):
    return """.amdhsa_kernel %s
  .amdhsa_next_free_vgpr %d
  .amdhsa_next_free_sgpr %d
  .amdhsa_accum_offset %d
  .amdhsa_group_segment_fixed_size 0
  .amdhsa_kernarg_size 80
  .amdhsa_user_sgpr_count 2
  .amdhsa_user_sgpr_kernarg_segment_ptr 1
  .amdhsa_system_sgpr_workgroup_id_x 1
.end_amdhsa_kernel
""" % (name, vgpr, sgpr, (vgpr + 3) // 4 * 4)

def build(cfg):
    a = Asm()
    N1 = "parallel_sum__linear_attn_block__geglu_ffn__prompt_kernel"
    N2 = "psum_stage2_kernel"
    a.raw(HEADER.rstrip("\n"))
    a.raw("; @launch kernel=%s grid=(256,1,1) block=(768,1,1) lds=%d" % (N1, k1.K1_LDS))
    a.raw("; @launch kernel=%s grid=(256,1,1) block=(256,1,1) lds=%d" % (N2, k2.K2_LDS))
    a.raw('.amdgcn_target "amdgcn-amd-amdhsa--gfx950"\n.text')
    k1.gen_k1(a, N1)
    k2.gen_k2(a, N2, cfg)
    a.raw('.section .rodata,"a"\n.p2align 6')
    a.raw(kd(N1, 168, 96))
    a.raw(".p2align 6")
    a.raw(kd(N2, 256, 96))
    return a.text()

if __name__ == "__main__":
    out = sys.argv[1] if len(sys.argv) > 1 else "parallel_sum__linear_attn_block__geglu_ffn__prompt.s"
    cfg = json.loads(sys.argv[2]) if len(sys.argv) > 2 else {}
    open(out, "w").write(build(cfg))
    print("wrote", out)
```

```python
from asmlib import *
import math, struct

WS_H = 0
WS_PQ = WS_H + 32 * 54 * 4096
WS_W2P = WS_PQ + 32 * 40 * 2048
WS_KVP = WS_W2P + 8 * 74 * 5120
WS_KVF = WS_KVP + 8 * 64 * 2048
WS_RST = WS_KVF + 65536
WS_CSP = WS_RST + 2048 * 8
CSP_STRIDE = 5376 * 4
WS_END = WS_CSP + 8 * CSP_STRIDE
OOB = 0x40000000

XSLOT = 32768
XRING = 3
WSLOT = 12352
WRING = 5
WBASE = XSLOT * XRING
UPOFF = 6176
ST_BASE = WBASE + WRING * WSLOT
ST_ROW = ST_BASE
ST_COL = ST_BASE + 2048
K1_LDS = ST_COL + 768

LOG2E = 1.4426950408889634
def f32bits(x):
    return "0x%08x" % struct.unpack("<I", struct.pack("<f", x))[0]

S_X, S_WQKV, S_WO, S_WG, S_WU, S_WD, S_OUT, S_DBG, S_WS = 4, 6, 8, 12, 14, 16, 18, 20, 22
S_WAVE, S_MT, S_GRP, S_ROT = 24, 25, 26, 27
S_XCD, S_IDX, S_I3, S_GI, S_NQ = 29, 30, 52, 53, 54
SRD_X, SRD_W0, SRD_W1, SRD_W2, SRD_WS = 32, 36, 40, 44, 48
SRD_DBG = 56

STAMP = False
CFG = {}
WS_ST = 16 << 20

def stflag():
    return CFG.get("k1_st", "")

def srd(a, base, ptr, nbytes):
    a("s_mov_b32 s%d, s%d" % (base, ptr))
    a("s_and_b32 s%d, s%d, 0xffff" % (base + 1, ptr + 1))
    a("s_mov_b32 s%d, %d" % (base + 2, nbytes))
    a("s_mov_b32 s%d, 0x20000" % (base + 3))

def divmod_const(a, q, r, x, d, maxx):
    sh = 16
    m = (1 << sh) // d + 1
    assert all((v * m) >> sh == v // d for v in range(maxx)), (d, maxx)
    assert m * maxx < (1 << 32) and m < (1 << 24)
    a("v_mul_u32_u24 v%d, %d, v%d" % (q, m, x))
    a("v_lshrrev_b32 v%d, %d, v%d" % (q, sh, q))
    a("v_mul_u32_u24 v%d, %d, v%d" % (r, d, q))
    a("v_sub_u32 v%d, v%d, v%d" % (r, x, r))

def stamp(a, idx):
    if STAMP:
        a("s_memrealtime s[%d:%d]" % (84 + 2 * idx, 85 + 2 * idx))
def stamp_flush(a, kernel_no, wave_sgpr, n):
    if not STAMP:
        return
    a("s_waitcnt lgkmcnt(0) vmcnt(0)")
    a("s_memrealtime s[%d:%d]" % (84 + 2 * n, 85 + 2 * n))
    a("s_mov_b32 s50, 0x7fffffff")
    a("s_lshl_b32 s82, s2, 4")
    a("s_add_u32 s82, s82, s%d" % wave_sgpr)
    a("s_lshl_b32 s82, s82, 6")
    a("s_add_u32 s82, s82, %d" % (WS_ST + kernel_no * (1 << 20)))
    a("s_waitcnt lgkmcnt(0)")
    a("s_mov_b64 exec, 1")
    for i in range(n + 1):
        a("v_mov_b32 v2, s%d" % (84 + 2 * i))
        a("v_mov_b32 v3, s%d" % (85 + 2 * i))
        a("buffer_store_dwordx2 v[2:3], off, s[48:51], s82 offset:%d" % (8 * i))
        a("s_nop 1")
    if n == 4:
        a("s_sub_u32 s96, s98, s96")
        a("v_mov_b32 v2, s96")
        a("v_mov_b32 v3, 0")
        a("buffer_store_dwordx2 v[2:3], off, s[48:51], s82 offset:56")

def rbf(a, r):
    a("v_cvt_pk_bf16_f32 v%d, v%d, v%d" % (r, r, r))
    a("v_and_b32 v%d, 0xffff0000, v%d" % (r, r))

def gen_k1(a, name):
    a.raw(".globl %s\n.p2align 8\n.type %s,@function\n%s:" % (name, name, name))
    a.flush()
    a("s_cmp_ge_u32 s2, 256")
    a("s_cbranch_scc1 K1_END")
    a("s_load_dwordx16 s[4:19], s[0:1], 0")
    a("s_load_dwordx4 s[20:23], s[0:1], 64")
    a("v_lshrrev_b32 v1, 6, v0")
    a("v_and_b32 v0, 63, v0")
    a("v_readfirstlane_b32 s%d, v1" % S_WAVE)
    a("s_and_b32 s29, s2, 7")
    a("s_lshr_b32 s30, s2, 3")
    a("s_and_b32 s31, s29, 1")
    a("s_lshl_b32 s31, s31, 2")
    a("s_and_b32 s52, s30, 3")
    a("s_add_u32 s%d, s31, s52" % S_MT)
    a("s_lshr_b32 s53, s30, 2")
    a("s_lshr_b32 s54, s29, 1")
    a("s_lshl_b32 s55, s54, 3")
    a("s_cmp_eq_u32 s54, 3")
    a("s_cselect_b32 s60, 1, 0")
    a("s_sub_u32 s55, s55, s60")
    a("s_add_u32 s%d, s55, s53" % S_GRP)
    if CFG.get("k1_rot", 0):
        a("s_mul_i32 s60, s52, 5")
        a("s_lshr_b32 s60, s60, 1")
        a("s_add_u32 s60, s60, s53")
        a("s_cmp_ge_u32 s60, 10")
        a("s_cselect_b32 s61, 10, 0")
        a("s_sub_u32 s%d, s60, s61" % S_ROT)
    else:
        a("s_mov_b32 s%d, 0" % S_ROT)
    a("s_cmp_ge_u32 s54, 2")
    a("s_cselect_b32 s60, 7, 8")
    a("s_waitcnt lgkmcnt(0)")
    stamp(a, 0)
    srd(a, SRD_WS, S_WS, WS_END)
    srd(a, SRD_X, S_X, 2048 * 1280)
    a("s_cmp_ge_u32 s53, s60")
    a("s_cbranch_scc1 K1_PACK")
    a("s_cmp_lt_u32 s%d, 8" % S_WAVE)
    a("s_cbranch_scc1 K1_COMP")
    gen_loader(a)
    a.label("K1_COMP"); a.flush()
    gen_stats(a)
    a("s_and_b32 s60, s%d, 3" % S_WAVE)
    a("s_cmp_ge_u32 s%d, 22" % S_GRP)
    a("s_cbranch_scc1 K1_KV")
    a("s_cmp_ge_u32 s%d, 18" % S_GRP)
    a("s_cbranch_scc1 K1_Q")
    a("s_cmp_ge_u32 s%d, 4" % S_WAVE)
    a("s_cbranch_scc1 K1_F1")
    gen_compute(a, "F", 0)
    a.label("K1_F1"); a.flush()
    gen_compute(a, "F", 1)
    a.label("K1_Q"); a.flush()
    a("s_sub_u32 s%d, s%d, 18" % (S_GRP, S_GRP))
    a("s_cmp_ge_u32 s%d, 4" % S_WAVE)
    a("s_cbranch_scc1 K1_Q1")
    gen_compute(a, "Q", 0)
    a.label("K1_Q1"); a.flush()
    gen_compute(a, "Q", 1)
    a.label("K1_KV"); a.flush()
    a("s_sub_u32 s%d, s%d, 22" % (S_GRP, S_GRP))
    a("s_cmp_ge_u32 s%d, 4" % S_WAVE)
    a("s_cbranch_scc1 K1_KV1")
    gen_compute(a, "K", 0)
    a.label("K1_KV1"); a.flush()
    gen_compute(a, "K", 1)
    a.label("K1_KVJOB"); a.flush()
    gen_kvjob(a)
    a.label("K1_PACK"); a.flush()
    gen_packer(a)
    a.label("K1_END"); a.flush()
    a("s_endpgm")

def gen_loader(a):
    noload = CFG.get("no_load")
    a("s_sub_u32 s60, s%d, 8" % S_WAVE)
    a("v_lshrrev_b32 v4, 3, v0")
    a("v_mul_u32_u24 v4, 1280, v4")
    a("v_lshrrev_b32 v5, 4, v0")
    a("v_and_b32 v6, 7, v0")
    a("v_xor_b32 v7, v6, v5")
    a("v_lshl_add_u32 v2, v7, 4, v4")
    a("v_xor_b32 v7, 4, v7")
    a("v_lshl_add_u32 v3, v7, 4, v4")
    a("s_mov_b32 s73, s%d" % S_ROT)
    a("s_lshl_b32 s61, s%d, 1" % S_ROT)
    a("s_mov_b32 s74, %d" % WBASE)
    a("s_mov_b32 s75, 0")
    a("s_mul_i32 s76, s%d, %d" % (S_MT, 256 * 1280))
    a("s_mul_i32 s77, s60, %d" % (4 * 10240))
    a("s_add_u32 s76, s76, s77")
    a("s_lshl_b32 s77, s60, 12")
    def xhalf(hf):
        a("s_lshl_b32 s79, s73, 7")
        a("s_add_u32 s79, s79, s76")
        a("s_add_u32 s80, s75, s77")
        for i in range(4):
            a("s_add_u32 m0, s80, %d" % (i * 1024 + hf * 16384))
            a("s_add_u32 s81, s79, %d" % (i * 10240 + hf * 16 * 10240))
            if not noload: a("buffer_load_dwordx4 v%d, s[%d:%d], s81 offen lds" % (2 + (i & 1), SRD_X, SRD_X + 3))
        if hf:
            a("s_add_u32 s75, s75, %d" % XSLOT)
            a("s_cmp_ge_u32 s75, %d" % (XRING * XSLOT))
            a("s_cselect_b32 s75, 0, s75")
            a("s_add_u32 s73, s73, 1")
            a("s_cmp_ge_u32 s73, 10")
            a("s_cselect_b32 s73, 0, s73")
    def wsub():
        a("s_mul_i32 s78, s61, s68")
        a("s_add_u32 s78, s78, s69")
        for i, (srdw, dst) in enumerate(((SRD_W0, 64), (SRD_W1, 65), (SRD_W2, 66))):
            a("s_add_u32 m0, s74, s%d" % dst)
            if not noload: a("buffer_load_dwordx4 v%d, s[%d:%d], s78 offen lds" % (8 + i, srdw, srdw + 3))
        a("s_add_u32 s74, s74, %d" % WSLOT)
        a("s_cmp_ge_u32 s74, %d" % (WBASE + WRING * WSLOT))
        a("s_cselect_b32 s74, %d, s74" % WBASE)
        a("s_add_u32 s61, s61, 1")
        a("s_cmp_ge_u32 s61, 20")
        a("s_cselect_b32 s61, 0, s61")
    xhalf(0); xhalf(1)
    a("s_lshl_b32 s67, s60, 6")
    a("v_add_u32 v17, s67, v0")
    a("s_cmp_ge_u32 s%d, 18" % S_GRP)
    a("s_cbranch_scc1 K1_LD_QKV")
    srd(a, SRD_W0, S_WG, 640 * 3456)
    srd(a, SRD_W2, S_WU, 640 * 3456)
    a("s_cmp_ge_u32 s60, 2")
    a("s_cselect_b32 s%d, s%d, s%d" % (SRD_W1, S_WU, S_WG))
    a("s_cselect_b32 s%d, s%d, s%d" % (SRD_W1 + 1, SRD_W2 + 1, SRD_W0 + 1))
    a("s_mov_b32 s%d, %d" % (SRD_W1 + 2, 640 * 3456))
    a("s_mov_b32 s%d, 0x20000" % (SRD_W1 + 3))
    a("s_add_u32 s70, s60, 4")
    a("s_sub_u32 s62, s60, 2")
    a("s_cmp_ge_u32 s60, 2")
    a("s_cselect_b32 s70, s62, s70")
    a("s_cselect_b32 s63, %d, 0" % UPOFF)
    a("s_add_u32 s62, s60, 2")
    a("s_lshl_b32 s64, s60, 10")
    a("s_lshl_b32 s65, s70, 10")
    a("s_add_u32 s65, s65, s63")
    a("s_lshl_b32 s66, s62, 10")
    a("s_add_u32 s66, s66, %d" % UPOFF)
    for i, sl in enumerate((60, 70, 62)):
        a("s_lshl_b32 s67, s%d, 6" % sl)
        a("v_add_u32 v11, s67, v0")
        divmod_const(a, 12, 13, 11, 12, 384)
        a("v_mul_u32_u24 v12, 3456, v12")
        a("v_lshl_add_u32 v%d, v13, 4, v12" % (8 + i))
    a("s_mov_b32 s68, %d" % (32 * 3456))
    a("s_mul_i32 s69, s%d, 192" % S_GRP)
    a("v_lshrrev_b32 v11, 5, v17")
    a("v_and_b32 v12, 15, v17")
    a("v_lshl_add_u32 v11, v11, 4, v12")
    a("v_bfe_u32 v12, v17, 4, 1")
    a("v_mul_u32_u24 v12, 1728, v12")
    a("s_mul_i32 s67, s%d, 96" % S_GRP)
    a("s_add_u32 s67, s67, 1920")
    a("v_add3_u32 v16, v11, v12, s67")
    a("s_branch K1_LD_GO")
    a.label("K1_LD_QKV"); a.flush()
    srd(a, SRD_W0, S_WQKV, 640 * 3840)
    srd(a, SRD_W1, S_WQKV, 640 * 3840)
    srd(a, SRD_W2, S_WQKV, 640 * 3840)
    a("s_lshl_b32 s64, s60, 10")
    a("s_add_u32 s65, s64, 4096")
    a("s_add_u32 s66, s64, 8192")
    a("s_cmp_ge_u32 s%d, 22" % S_GRP)
    a("s_cselect_b32 s70, %d, 0" % (1280 - 160))
    for i in range(3):
        a("s_lshl_b32 s67, s60, 6")
        a("s_add_u32 s67, s67, %d" % (256 * i))
        a("v_add_u32 v11, s67, v0")
        if i == 2:
            a("v_subrev_u32 v14, 128, v11")
            a("v_cmp_le_u32 vcc, 640, v11")
            a("v_cndmask_b32 v11, v11, v14, vcc")
        divmod_const(a, 12, 13, 11, 20, 640)
        a("v_mul_u32_u24 v12, 3840, v12")
        a("v_lshl_add_u32 v%d, v13, 4, v12" % (8 + i))
        a("v_mov_b32 v14, s70")
        a("v_cmp_le_u32 vcc, 10, v13")
        a("v_cndmask_b32 v14, 0, v14, vcc")
        a("v_add_u32 v%d, v%d, v14" % (8 + i, 8 + i))
    a("s_mov_b32 s68, %d" % (32 * 3840))
    a("s_sub_u32 s69, s%d, 18" % S_GRP)
    a("s_mul_i32 s69, s69, 320")
    a("s_sub_u32 s71, s%d, 22" % S_GRP)
    a("s_mul_i32 s71, s71, 160")
    a("s_add_u32 s71, s71, 1280")
    a("s_cmp_ge_u32 s%d, 22" % S_GRP)
    a("s_cselect_b32 s69, s71, s69")
    a("s_lshr_b32 s67, s69, 1")
    a("s_lshr_b32 s71, s70, 1")
    a("v_mov_b32 v14, s71")
    a("v_cmp_le_u32 vcc, 80, v17")
    a("v_cndmask_b32 v14, 0, v14, vcc")
    a("v_add3_u32 v16, v17, v14, s67")
    a.label("K1_LD_GO"); a.flush()
    wsub(); wsub(); xhalf(0)
    a("s_waitcnt vmcnt(7)")
    a("s_barrier")
    wsub(); xhalf(1); wsub()
    a("s_waitcnt vmcnt(14)")
    a("s_barrier")
    wsub(); xhalf(0); wsub(); xhalf(1)
    a("s_waitcnt vmcnt(17)")
    a("s_barrier")
    srd(a, SRD_DBG, S_DBG, 256)
    a("s_cmp_lg_u32 s60, 0")
    a("s_cbranch_scc1 K1_LD_NOSIG")
    a("v_mov_b32 v18, 1")
    a("s_mov_b64 exec, 1")
    a("buffer_atomic_add v18, off, s[%d:%d], 0 sc1" % (SRD_DBG, SRD_DBG + 3))
    a("s_mov_b64 exec, -1")
    a.label("K1_LD_NOSIG")
    a("s_mov_b32 s72, 0")
    a.label("K1_LD_LOOP")
    for hf in range(2):
        wsub(); xhalf(hf)
        a("s_waitcnt vmcnt(14)")
        a("s_barrier")
    a("s_add_u32 s72, s72, 1")
    a("s_cmp_lt_u32 s72, 7")
    a("s_cbranch_scc1 K1_LD_LOOP")
    a("buffer_load_dword v18, off, s[%d:%d], 0 sc1" % (SRD_DBG, SRD_DBG + 3))
    a("v_lshlrev_b32 v16, 2, v16")
    a("v_lshlrev_b32 v19, 5, v0")
    a("s_waitcnt vmcnt(8)")
    a("s_barrier")
    a("s_waitcnt vmcnt(0)")
    a("v_readfirstlane_b32 s62, v18")
    a("s_cmp_ge_u32 s62, 240")
    a("s_cbranch_scc1 K1_LD_READY")
    a("s_mov_b32 s63, 0")
    a.label("K1_LD_SPIN")
    a("s_add_u32 s63, s63, 1")
    a("s_cmp_gt_u32 s63, 400000")
    a("s_cbranch_scc1 K1_LD_READY")
    a("s_sleep 2")
    a("buffer_load_dword v18, off, s[%d:%d], 0 sc1" % (SRD_DBG, SRD_DBG + 3))
    a("s_waitcnt vmcnt(0)")
    a("v_readfirstlane_b32 s62, v18")
    a("s_cmp_lt_u32 s62, 240")
    a("s_cbranch_scc1 K1_LD_SPIN")
    a.label("K1_LD_READY")
    a("s_cmp_eq_u32 s60, 3")
    a("s_cbranch_scc1 K1_LD_ROWS")
    for c in range(8):
        a("s_mov_b32 s62, %d" % (WS_CSP + c * CSP_STRIDE))
        a("buffer_load_dword v%d, v16, s[%d:%d], s62 offen sc1" % (20 + c, SRD_WS, SRD_WS + 3))
    a("s_barrier")
    a("s_barrier")
    a("s_waitcnt vmcnt(0)")
    for (d, x, y) in ((20, 20, 21), (22, 22, 23), (24, 24, 25), (26, 26, 27), (20, 20, 22), (24, 24, 26), (20, 20, 24)):
        a("v_add_f32 v%d, v%d, v%d" % (d, x, y))
    a("v_cvt_pk_bf16_f32 v21, v20, v20")
    a("v_and_b32 v21, 0xffff0000, v21")
    a("v_sub_f32 v22, v20, v21")
    a("v_cvt_pk_bf16_f32 v20, v21, v22")
    a("v_lshlrev_b32 v17, 2, v17")
    a("v_add_u32 v17, %d, v17" % ST_COL)
    a("ds_write_b32 v17, v20")
    a("s_waitcnt lgkmcnt(0)")
    a("s_barrier")
    stamp_flush(a, 0, S_WAVE, 1)
    a("s_endpgm")
    a.label("K1_LD_ROWS"); a.flush()
    a("s_lshl_b32 s62, s%d, 11" % S_MT)
    a("s_add_u32 s62, s62, %d" % WS_RST)
    a("buffer_load_dwordx4 v[20:23], v19, s[%d:%d], s62 offen sc1" % (SRD_WS, SRD_WS + 3))
    a("buffer_load_dwordx4 v[24:27], v19, s[%d:%d], s62 offen offset:16 sc1" % (SRD_WS, SRD_WS + 3))
    a("v_add_u32 v19, %d, v19" % ST_ROW)
    a("s_barrier")
    a("s_barrier")
    a("s_waitcnt vmcnt(0)")
    a("ds_write_b128 v19, v[20:23]")
    a("ds_write_b128 v19, v[24:27] offset:16")
    a("s_waitcnt lgkmcnt(0)")
    a("s_barrier")
    stamp_flush(a, 0, S_WAVE, 1)
    a("s_endpgm")

def gen_stats(a):
    a("s_cmp_ge_u32 s%d, 4" % S_WAVE)
    a("s_cbranch_scc1 K1_ST_COL")
    a("s_cmp_ge_u32 s%d, 16" % S_GRP)
    a("s_cbranch_scc1 K1_ST_DONE")
    a("s_lshl_b32 s60, s%d, 8" % S_MT)
    a("s_lshl_b32 s61, s%d, 4" % S_GRP)
    a("s_add_u32 s60, s60, s61")
    a("s_lshl_b32 s61, s%d, 2" % S_WAVE)
    a("s_add_u32 s60, s60, s61")
    a("s_mul_i32 s61, s60, 1280")
    a("v_lshrrev_b32 v2, 4, v0")
    a("v_mul_u32_u24 v3, 1280, v2")
    a("v_and_b32 v4, 15, v0")
    a("v_lshl_add_u32 v3, v4, 4, v3")
    for i in range(5):
        a("buffer_load_dwordx4 %s, v3, s[%d:%d], s61 offen offset:%d" % (vr(16 + 4 * i, 4), SRD_X, SRD_X + 3, 256 * i))
    a("v_lshlrev_b32 v5, 3, v2")
    a("v_mov_b32 v6, %d" % OOB)
    a("v_cmp_eq_u32 vcc, 0, v4")
    a("v_cndmask_b32 v5, v6, v5, vcc")
    a("s_lshl_b32 s61, s60, 3")
    a("s_add_u32 s61, s61, %d" % WS_RST)
    U = 40
    a("s_waitcnt vmcnt(0)")
    for d in range(20):
        a("v_lshlrev_b32 v%d, 16, v%d" % (U + 2 * d, 16 + d))
        a("v_and_b32 v%d, 0xffff0000, v%d" % (U + 2 * d + 1, 16 + d))
    a("v_pk_add_f32 v[8:9], %s, %s" % (vr(U, 2), vr(U + 2, 2)))
    a("v_pk_add_f32 v[10:11], %s, %s" % (vr(U + 4, 2), vr(U + 6, 2)))
    for d in range(4, 20, 2):
        a("v_pk_add_f32 v[8:9], v[8:9], %s" % vr(U + 2 * d, 2))
        a("v_pk_add_f32 v[10:11], v[10:11], %s" % vr(U + 2 * d + 2, 2))
    a("v_pk_add_f32 v[8:9], v[8:9], v[10:11]")
    a("v_add_f32 v8, v8, v9")
    for sh in (8, 4, 2, 1):
        a("v_add_f32_dpp v8, v8, v8 row_ror:%d row_mask:0xf bank_mask:0xf" % sh)
    a("v_mul_f32 v8, %s, v8" % f32bits(-1.0 / 640))
    for d in range(20):
        a("v_pk_add_f32 %s, %s, v[8:9] op_sel_hi:[1,0]" % (vr(U + 2 * d, 2), vr(U + 2 * d, 2)))
    a("v_pk_mul_f32 v[10:11], %s, %s" % (vr(U, 2), vr(U, 2)))
    a("v_pk_mul_f32 v[12:13], %s, %s" % (vr(U + 2, 2), vr(U + 2, 2)))
    for d in range(2, 20, 2):
        a("v_pk_fma_f32 v[10:11], %s, %s, v[10:11]" % (vr(U + 2 * d, 2), vr(U + 2 * d, 2)))
        a("v_pk_fma_f32 v[12:13], %s, %s, v[12:13]" % (vr(U + 2 * d + 2, 2), vr(U + 2 * d + 2, 2)))
    a("v_pk_add_f32 v[10:11], v[10:11], v[12:13]")
    a("v_add_f32 v10, v10, v11")
    for sh in (8, 4, 2, 1):
        a("v_add_f32_dpp v10, v10, v10 row_ror:%d row_mask:0xf bank_mask:0xf" % sh)
    a("v_mul_f32 v10, %s, v10" % f32bits(1.0 / 640))
    rbf(a, 10)
    a("v_add_f32 v10, %s, v10" % f32bits(1e-5))
    rbf(a, 10)
    a("v_sqrt_f32 v10, v10")
    rbf(a, 10)
    a("v_rcp_f32 v9, v10")
    a("v_cvt_pk_bf16_f32 v8, v8, v8")
    a("buffer_store_dwordx2 v[8:9], v5, s[%d:%d], s61 offen sc0 sc1" % (SRD_WS, SRD_WS + 3))
    a("s_branch K1_ST_DONE")
    a.label("K1_ST_COL"); a.flush()
    a("s_lshl_b32 s60, s%d, 2" % S_GI)
    a("s_add_u32 s60, s60, s%d" % S_WAVE)
    a("s_sub_u32 s60, s60, 4")
    a("s_cmp_ge_u32 s%d, 2" % S_NQ)
    a("s_cbranch_scc1 K1_ST_NQ23")
    a("s_cmp_ge_u32 s60, 24")
    a("s_cbranch_scc1 K1_ST_DONE")
    a("s_mul_i32 s61, s%d, 12" % S_NQ)
    a("s_add_u32 s61, s61, s60")
    a("s_add_u32 s61, s61, 30")
    a("s_add_u32 s62, s61, 15")
    a("s_cmp_ge_u32 s60, 12")
    a("s_cselect_b32 s61, s62, s61")
    a("s_branch K1_ST_GO")
    a.label("K1_ST_NQ23"); a.flush()
    a("s_cmp_eq_u32 s%d, 3" % S_NQ)
    a("s_cbranch_scc1 K1_ST_NQ3")
    a("s_cmp_ge_u32 s60, 20")
    a("s_cbranch_scc1 K1_ST_DONE")
    a("s_add_u32 s61, s60, 54")
    a("s_add_u32 s62, s60, 78")
    a("s_cmp_ge_u32 s60, 3")
    a("s_cselect_b32 s61, s62, s61")
    a("s_sub_u32 s62, s60, 6")
    a("s_cmp_ge_u32 s60, 6")
    a("s_cselect_b32 s61, s62, s61")
    a("s_add_u32 s62, s60, 2")
    a("s_cmp_ge_u32 s60, 18")
    a("s_cselect_b32 s61, s62, s61")
    a("s_branch K1_ST_GO")
    a.label("K1_ST_NQ3"); a.flush()
    a("s_cmp_ge_u32 s60, 16")
    a("s_cbranch_scc1 K1_ST_DONE")
    a("s_add_u32 s61, s60, 12")
    a("s_add_u32 s62, s60, 14")
    a("s_cmp_ge_u32 s60, 8")
    a("s_cselect_b32 s61, s62, s61")
    a.label("K1_ST_GO"); a.flush()
    a("s_movk_i32 s63, 3840")
    a("s_cmp_ge_u32 s61, 30")
    a("s_cselect_b32 s%d, s%d, s%d" % (SRD_W0, S_WG, S_WQKV))
    a("s_cselect_b32 s%d, s%d, s%d" % (SRD_W0 + 1, S_WG + 1, S_WQKV + 1))
    a("s_cselect_b32 s63, 3456, s63")
    a("s_cselect_b32 s64, 30, 0")
    a("s_cmp_ge_u32 s61, 57")
    a("s_cselect_b32 s%d, s%d, s%d" % (SRD_W0, S_WU, SRD_W0))
    a("s_cselect_b32 s%d, s%d, s%d" % (SRD_W0 + 1, S_WU + 1, SRD_W0 + 1))
    a("s_cselect_b32 s64, 57, s64")
    a("s_and_b32 s%d, s%d, 0xffff" % (SRD_W0 + 1, SRD_W0 + 1))
    a("s_mul_i32 s%d, s63, 640" % (SRD_W0 + 2))
    a("s_mov_b32 s%d, 0x20000" % (SRD_W0 + 3))
    a("s_sub_u32 s64, s61, s64")
    a("s_lshl_b32 s64, s64, 7")
    a("s_mul_i32 s65, s%d, 80" % S_MT)
    a("s_mul_i32 s65, s65, s63")
    a("s_add_u32 s64, s64, s65")
    a("s_lshl_b32 s65, s63, 3")
    a("v_lshrrev_b32 v2, 3, v0")
    a("v_mul_lo_u32 v3, v2, s63")
    a("v_and_b32 v4, 7, v0")
    a("v_lshl_add_u32 v3, v4, 4, v3")
    for i in range(10):
        a("buffer_load_dwordx4 %s, v3, s[%d:%d], s64 offen" % (vr(16 + 4 * i, 4), SRD_W0, SRD_W0 + 3))
        if i < 9:
            a("s_add_u32 s64, s64, s65")
    a("v_lshl_add_u32 v5, v4, 3, v2")
    a("v_lshlrev_b32 v5, 2, v5")
    a("s_lshl_b32 s62, s61, 8")
    a("s_mul_i32 s64, s%d, %d" % (S_MT, CSP_STRIDE))
    a("s_add_u32 s62, s62, s64")
    a("s_add_u32 s62, s62, %d" % WS_CSP)
    a("v_and_b32 v6, 8, v0")
    a("v_cmp_eq_u32 s[66:67], 0, v6")
    A = 60
    for i in range(10):
        a("s_waitcnt vmcnt(%d)" % (9 - i))
        T = A if i == 0 else 68
        for d in range(4):
            a("v_lshlrev_b32 v%d, 16, v%d" % (T + 2 * d, 16 + 4 * i + d))
            a("v_and_b32 v%d, 0xffff0000, v%d" % (T + 2 * d + 1, 16 + 4 * i + d))
        if i:
            for d in range(4):
                a("v_pk_add_f32 %s, %s, %s" % (vr(A + 2 * d, 2), vr(A + 2 * d, 2), vr(T + 2 * d, 2)))
    for j in range(4):
        a("v_permlane32_swap_b32 v%d, v%d" % (A + j, A + 4 + j))
    for j in range(4):
        a("v_add_f32 v%d, v%d, v%d" % (A + j, A + j, A + 4 + j))
    for j in range(2):
        a("v_permlane16_swap_b32 v%d, v%d" % (A + j, A + 2 + j))
    for j in range(2):
        a("v_add_f32 v%d, v%d, v%d" % (A + j, A + j, A + 2 + j))
    a("v_cndmask_b32 v%d, v%d, v%d, s[66:67]" % (A + 2, A + 1, A))
    a("v_cndmask_b32 v%d, v%d, v%d, s[66:67]" % (A + 3, A, A + 1))
    a("v_add_f32_dpp v%d, v%d, v%d row_ror:8 row_mask:0xf bank_mask:0xf" % (A + 2, A + 3, A + 2))
    a("buffer_store_dword v%d, v5, s[%d:%d], s62 offen sc0 sc1" % (A + 2, SRD_WS, SRD_WS + 3))
    a.label("K1_ST_DONE"); a.flush()
    a.nops(2)

ACC = 16
FR = 112
V_XB = 2
V_WB = 6
V_XA = 7
V_WA = 8
V_T = 152

def gen_compute(a, typ, ch):
    nt = 3 if (typ == "F" or ch == 0) else 2
    t0 = 3 * ch
    orient = "N" if typ == "K" else "T"
    tag = "%s%d" % (typ, ch)
    def acc(t, rb): return ACC + (t * 2 + rb) * 16
    def xf(st, rb): return FR + st * 20 + rb * 4
    def wf(st, t): return FR + st * 20 + 8 + t * 4
    a("v_and_b32 v14, 31, v0")
    a("v_lshrrev_b32 v15, 5, v0")
    a("v_bfe_u32 v%d, v0, 1, 3" % V_T)
    a("v_xor_b32 v%d, v%d, v15" % (V_T, V_T))
    a("s_lshl_b32 s61, s60, 13")
    a("v_lshl_add_u32 v%d, v14, 7, s61" % (V_T + 1))
    for c in range(4):
        a("v_xor_b32 v%d, %d, v%d" % (V_T + 2, 2 * c, V_T))
        a("v_lshl_add_u32 v%d, v%d, 4, v%d" % (V_XB + c, V_T + 2, V_T + 1))
    rowb = 192 if typ == "F" else 320
    a("v_bfe_u32 v%d, v0, 2, 2" % V_T)
    a("v_lshl_add_u32 v%d, v15, 3, v%d" % (V_T, V_T))
    a("v_mul_u32_u24 v%d, %d, v%d" % (V_T, rowb, V_T))
    a("v_and_b32 v%d, 3, v0" % (V_T + 1))
    a("v_lshl_add_u32 v%d, v%d, 3, v%d" % (V_T, V_T + 1, V_T))
    a("v_bfe_u32 v%d, v0, 4, 1" % (V_T + 1))
    a("v_mul_u32_u24 v%d, %d, v%d" % (V_T + 1, UPOFF if typ == "F" else 32, V_T + 1))
    a("v_add_u32 v%d, v%d, v%d" % (V_WB, V_T, V_T + 1))
    tstride = 32 if typ == "F" else 64
    def woff(kk2, half, t): return (16 * kk2 + 4 * half) * rowb + (t0 + t) * tstride
    for r in range(nt * 32):
        a("v_mov_b32 v%d, 0" % (ACC + r))
    a("s_lshl_b32 s61, s60, 9")
    a("s_add_u32 s61, s61, %d" % ST_ROW)
    a("v_lshl_add_u32 v9, v0, 3, s61")
    a("v_lshlrev_b32 v10, 2, v14")
    a("v_add_u32 v10, %d, v10" % (ST_COL + t0 * 128))
    a("s_mov_b32 s63, 0")
    a("s_mov_b32 s64, %d" % XSLOT)
    a("s_mov_b32 s65, %d" % WBASE)
    a("s_mov_b32 s66, 0")
    def reads(st, chunk, xs, kk2):
        out = []
        out.append("v_add_u32 v%d, s%d, v%d" % (V_XA, xs, V_XB + chunk))
        out.append("ds_read_b64_tr_b16 %s, v%d offset:%d" % (vr(wf(st, 0), 2), V_WA, woff(kk2, 0, 0)))
        out.append("ds_read_b64_tr_b16 %s, v%d offset:%d" % (vr(wf(st, 0) + 2, 2), V_WA, woff(kk2, 1, 0)))
        out.append("ds_read_b128 %s, v%d" % (vr(xf(st, 0), 4), V_XA))
        out.append("ds_read_b128 %s, v%d offset:4096" % (vr(xf(st, 1), 4), V_XA))
        for t in range(1, nt):
            out.append("ds_read_b64_tr_b16 %s, v%d offset:%d" % (vr(wf(st, t), 2), V_WA, woff(kk2, 0, t)))
            out.append("ds_read_b64_tr_b16 %s, v%d offset:%d" % (vr(wf(st, t) + 2, 2), V_WA, woff(kk2, 1, t)))
        return out
    def mfma(st, t, rb):
        A, B = (wf(st, t), xf(st, rb)) if orient == "T" else (xf(st, rb), wf(st, t))
        return "v_mfma_f32_32x32x16_bf16 %s, %s, %s, %s" % (vr(acc(t, rb), 16), vr(A, 4), vr(B, 4), vr(acc(t, rb), 16))
    def wadv():
        return ["s_add_u32 s65, s65, %d" % WSLOT,
                "s_cmp_ge_u32 s65, %d" % (WBASE + WRING * WSLOT),
                "s_cselect_b32 s65, %d, s65" % WBASE,
                "v_add_u32 v%d, s65, v%d" % (V_WA, V_WB)]
    a("v_add_u32 v%d, s65, v%d" % (V_WA, V_WB))
    a("s_barrier")
    stamp(a, 1)
    if STAMP: a("s_memtime s[96:97]")
    for t in reads(0, 0, 63, 0):
        a(t)
    a.label("K1_LOOP_" + tag)
    for kk in range(4):
        cur, nxt = kk & 1, (kk & 1) ^ 1
        ms = [mfma(cur, t, rb) for t in range(nt) for rb in range(2)]
        fill = []
        if kk & 1:
            fill += wadv()
            fill += reads(nxt, (kk + 1) & 3, 63 if kk == 1 else 64, 0)
        else:
            fill += reads(nxt, kk + 1, 63, 1)
        if CFG.get("no_ds"): fill = [f for f in fill if not f.startswith("ds_")]
        if CFG.get("no_mfma"): ms = ["s_nop 0"] * len(ms)
        a("s_waitcnt lgkmcnt(0)" if kk != 3 else "s_waitcnt vmcnt(0) lgkmcnt(0)")
        a(ms[0])
        if kk & 1:
            a("s_barrier")
        rest = ms[1:]
        per = CFG.get("k1_per", 3)
        for i, m in enumerate(rest):
            for f in fill[i * per:(i + 1) * per]:
                a(f)
            if i == len(rest) - 1:
                for f in fill[(i + 1) * per:]:
                    a(f)
            a(m)
    a("s_mov_b32 s63, s64")
    a("s_add_u32 s64, s64, %d" % XSLOT)
    a("s_cmp_ge_u32 s64, %d" % (XRING * XSLOT))
    a("s_cselect_b32 s64, 0, s64")
    a("s_add_u32 s66, s66, 1")
    a("s_cmp_lt_u32 s66, 10")
    a("s_cbranch_scc1 K1_LOOP_" + tag)
    stamp(a, 2)
    if STAMP: a("s_memtime s[98:99]")
    M, RS = V_T + 8, V_T + 9
    XC0, XC1 = FR + 24, FR + 28
    WC = FR + 32
    a("ds_read_b64 %s, v9" % vr(M, 2))
    wc = [V_T, V_T + 4, V_T + 12]
    for t in range(nt):
        a("ds_read_b32 v%d, v10 offset:%d" % (wc[t], t * 128))
    a("v_cmp_gt_u32 vcc, 32, v0")
    for r in range(1, 4):
        a("v_mov_b32 v%d, 0" % (XC0 + r))
        a("v_mov_b32 v%d, 0" % (XC1 + r))
        for t in range(nt):
            a("v_mov_b32 v%d, 0" % (wc[t] + r))
    a("s_waitcnt lgkmcnt(0)")
    a("v_cndmask_b32 v%d, 0, v%d, vcc" % (XC0, M))
    a("v_cndmask_b32 v%d, v%d, 0, vcc" % (XC1, M))
    for t in range(nt):
        for rb in range(2):
            W, X = wc[t], (XC0, XC1)[rb]
            A, B = (W, X) if orient == "T" else (X, W)
            a("v_mfma_f32_32x32x16_bf16 %s, %s, %s, %s" % (vr(acc(t, rb), 16), vr(A, 4), vr(B, 4), vr(acc(t, rb), 16)))
    a("v_mov_b32 v11, v%d" % RS)
    RS = 11
    stamp(a, 3)
    if typ == "F":
        epi_ffn(a, ch, nt, t0, acc, RS)
    elif typ == "Q":
        epi_q(a, ch, nt, t0, acc, RS)
    else:
        epi_kv(a, ch, nt, t0, acc, RS)

def rs_both(a, RS, R0, R1):
    a("v_mov_b32 v%d, v%d" % (R0, RS))
    a("v_mov_b32 v%d, v%d" % (R1, RS))
    a("v_permlane32_swap_b32 v%d, v%d" % (R0, R1))

def epi_ffn(a, ch, nt, t0, acc, RS):
    R0, R1 = FR + 32, FR + 33
    rs_both(a, RS, R0, R1)
    c0 = -2.0 * math.sqrt(2.0 / math.pi) * LOG2E
    K = [FR + 0, FR + 8]
    for rb, R in enumerate((R0, R1)):
        k = K[rb]
        a("v_mul_f32 v%d, v%d, v%d" % (k + 4, R, R))
        a("v_mul_f32 v%d, %s, v%d" % (k, f32bits(c0), R))
        a("v_mul_f32 v%d, v%d, v%d" % (k + 2, k, k + 4))
        a("v_mul_f32 v%d, %s, v%d" % (k + 2, f32bits(0.044715), k + 2))
    VA = FR + 34
    a("v_bfe_u32 v%d, v0, 4, 1" % VA)
    a("v_lshlrev_b32 v%d, 10, v%d" % (VA, VA))
    a("v_and_b32 v%d, 15, v0" % (VA + 1))
    a("v_lshl_add_u32 v%d, v%d, 4, v%d" % (VA, VA + 1, VA))
    a("v_lshl_add_u32 v%d, v15, 8, v%d" % (VA, VA))
    a("s_lshl_b32 s61, s%d, 2" % S_MT)
    a("s_add_u32 s61, s61, s60")
    a("s_mul_i32 s61, s61, %d" % (54 * 4096))
    a("s_mul_i32 s62, s%d, %d" % (S_GRP, 3 * 4096))
    a("s_add_u32 s61, s61, s62")
    T = V_T
    n = 0
    for t in range(nt):
        for rb in range(2):
            k = K[rb]
            D = acc(t, rb)
            out = FR + 16 + 4 * (n & 1)
            n += 1
            for j in range(0, 8, 4):
                prs = (j, j + 2)
                for i, p in enumerate(prs):
                    a("v_pk_mul_f32 %s, %s, %s" % (vr(T + 2 * i, 2), vr(D + p, 2), vr(D + p, 2)))
                for i, p in enumerate(prs):
                    a("v_pk_fma_f32 %s, %s, %s, %s op_sel_hi:[1,0,0]" % (vr(T + 2 * i, 2), vr(T + 2 * i, 2), vr(k + 2, 2), vr(k, 2)))
                for i, p in enumerate(prs):
                    a("v_pk_mul_f32 %s, %s, %s" % (vr(T + 2 * i, 2), vr(T + 2 * i, 2), vr(D + p, 2)))
                for i in range(4):
                    a("v_exp_f32 v%d, v%d" % (T + i, T + i))
                for i, p in enumerate(prs):
                    a("v_pk_mul_f32 %s, %s, %s" % (vr(T + 4 + 2 * i, 2), vr(D + p, 2), vr(D + 8 + p, 2)))
                for i, p in enumerate(prs):
                    a("v_pk_add_f32 %s, %s, 1.0 op_sel_hi:[1,0]" % (vr(T + 2 * i, 2), vr(T + 2 * i, 2)))
                for i in range(4):
                    a("v_rcp_f32 v%d, v%d" % (T + i, T + i))
                for i, p in enumerate(prs):
                    a("v_pk_mul_f32 %s, %s, %s op_sel_hi:[1,0]" % (vr(T + 4 + 2 * i, 2), vr(T + 4 + 2 * i, 2), vr(k + 4, 2)))
                for i, p in enumerate(prs):
                    a("v_pk_mul_f32 %s, %s, %s" % (vr(T + 4 + 2 * i, 2), vr(T + 4 + 2 * i, 2), vr(T + 2 * i, 2)))
                for i, p in enumerate(prs):
                    a("v_cvt_pk_bf16_f32 v%d, v%d, v%d" % (out + p // 2, T + 4 + 2 * i, T + 5 + 2 * i))
            B = t0 + t
            off = (B >> 1) * 4096 + (B & 1) * 512 + rb * 2048
            a("s_add_u32 s62, s61, %d" % (off & ~4095))
            a("buffer_store_dwordx4 %s, v%d, s[%d:%d], s62 offen offset:%d %s" % (vr(out, 4), VA, SRD_WS, SRD_WS + 3, off & 4095, stflag()))
    stamp_flush(a, 0, S_WAVE, 4)
    a("s_endpgm")

def phi_T(a, D, n, R, RL, T, out):
    for j in range(0, n, 4):
        for i in range(4):
            a("v_mul_f32 v%d, v%d, v%d" % (T + i, D + j + i, RL))
        for i in range(4):
            a("v_min_f32 v%d, 0, v%d" % (T + i, T + i))
        for i in range(4):
            a("v_exp_f32 v%d, v%d" % (T + i, T + i))
        for i in range(4):
            a("v_max_f32 v%d, 0, v%d" % (T + 4 + i, D + j + i))
        for i in range(4):
            a("v_fma_f32 v%d, v%d, v%d, v%d" % (T + i, T + 4 + i, R, T + i))
        for i in range(4):
            a("v_add_f32 v%d, %s, v%d" % (T + i, f32bits(1e-6), T + i))
        for i in range(2):
            a("v_cvt_pk_bf16_f32 v%d, v%d, v%d" % (out + j // 2 + i, T + 2 * i, T + 2 * i + 1))

def epi_q(a, ch, nt, t0, acc, RS):
    R0, R1, L0, L1 = FR + 32, FR + 33, FR + 34, FR + 35
    rs_both(a, RS, R0, R1)
    a("v_mul_f32 v%d, %s, v%d" % (L0, f32bits(LOG2E), R0))
    a("v_mul_f32 v%d, %s, v%d" % (L1, f32bits(LOG2E), R1))
    VA = FR + 36
    a("v_lshlrev_b32 v%d, 4, v0" % VA)
    a("s_lshl_b32 s61, s%d, 2" % S_MT)
    a("s_add_u32 s61, s61, s60")
    a("s_mul_i32 s61, s61, %d" % (40 * 2048))
    a("s_mul_i32 s62, s%d, %d" % (S_GRP, 10 * 2048))
    a("s_add_u32 s61, s61, s62")
    a("s_add_u32 s61, s61, %d" % WS_PQ)
    n = 0
    for t in range(nt):
        for rb in range(2):
            out = FR + 8 * (n & 1)
            n += 1
            phi_T(a, acc(t, rb), 16, (R0, R1)[rb], (L0, L1)[rb], V_T, out)
            a("s_add_u32 s62, s61, %d" % ((t0 + t) * 4096))
            for p in range(2):
                a("buffer_store_dwordx4 %s, v%d, s[%d:%d], s62 offen offset:%d %s" % (vr(out + 4 * p, 4), VA, SRD_WS, SRD_WS + 3, p * 2048 + rb * 1024, stflag()))
    stamp_flush(a, 0, S_WAVE, 4)
    a("s_endpgm")

FRL = 16384
ST_RS = 12288
def epi_kv(a, ch, nt, t0, acc, RS):
    a("s_lshl_b32 s61, s60, 8")
    a("s_add_u32 s61, s61, %d" % (ST_RS + ch * 1024))
    a("v_lshl_add_u32 v12, v0, 2, s61")
    a("ds_write_b32 v12, v%d" % RS)
    a("v_lshl_add_u32 v12, v15, 4, s61")
    a("s_waitcnt lgkmcnt(0)")
    RR = FR
    for rb in range(2):
        for q in range(4):
            a("ds_read_b128 %s, v12 offset:%d" % (vr(RR + rb * 16 + q * 4, 4), rb * 128 + q * 32))
    VA = FR + 32
    a("s_lshl_b32 s61, s60, 12")
    a("v_lshl_add_u32 v%d, v0, 4, s61" % VA)
    a("v_add_u32 v%d, %d, v%d" % (VA, FRL + t0 * 16384, VA))
    a("s_mov_b32 s62, 0x0000ffff")
    a("s_mov_b32 s63, 0x0000ffff")
    a("s_mov_b32 s64, %s" % f32bits(1e-6))
    a("s_waitcnt lgkmcnt(0)")
    T = V_T
    for t in range(nt):
        tt = t0 + t
        for rb in range(2):
            D = acc(t, rb)
            for j in range(0, 16, 4):
                if tt >= 3:
                    for i in range(0, 4, 2):
                        a("v_pk_mul_f32 %s, %s, %s" % (vr(T + i, 2), vr(D + j + i, 2), vr(RR + rb * 16 + j + i, 2)))
                else:
                    for i in range(0, 4, 2):
                        a("v_pk_mul_f32 %s, %s, %s" % (vr(T + 8 + i, 2), vr(D + j + i, 2), vr(RR + rb * 16 + j + i, 2)))
                    for i in range(4):
                        a("v_min_f32 v%d, 0, v%d" % (T + i, T + 8 + i))
                    for i in range(4):
                        a("v_mul_f32 v%d, %s, v%d" % (T + i, f32bits(LOG2E), T + i))
                    for i in range(4):
                        a("v_exp_f32 v%d, v%d" % (T + i, T + i))
                    for i in range(4):
                        a("v_max_f32 v%d, 0, v%d" % (T + 4 + i, T + 8 + i))
                    for i in range(0, 4, 2):
                        a("v_pk_add_f32 %s, %s, %s" % (vr(T + i, 2), vr(T + 4 + i, 2), vr(T + i, 2)))
                    for i in range(4):
                        a("v_add_f32 v%d, s64, v%d" % (T + i, T + i))
                    if tt == 2:
                        for i in range(4):
                            a("v_cndmask_b32 v%d, v%d, v%d, s[62:63]" % (T + i, T + 8 + i, T + i))
                for i in range(2):
                    a("v_cvt_pk_bf16_f32 v%d, v%d, v%d" % (D + j // 2 + i, T + 2 * i, T + 2 * i + 1))
            for p in range(2):
                a("ds_write_b128 v%d, %s offset:%d" % (VA, vr(D + 4 * p, 4), t * 16384 + (rb * 2 + p) * 1024))
    a("s_waitcnt lgkmcnt(0)")
    a("s_barrier")
    a("s_branch K1_KVJOB")

def gen_kvjob(a):
    w = S_WAVE
    a("s_lshr_b32 s61, s%d, 1" % w)
    a("s_add_u32 s62, s%d, 1" % w)
    a("s_lshr_b32 s62, s62, 1")
    a("s_add_u32 s62, s62, 2")
    a("s_sub_u32 s63, s%d, 5" % w)
    a("s_cmp_ge_u32 s%d, 5" % w)
    a("s_cselect_b32 s61, s63, s61")
    a("s_cselect_b32 s62, s63, s62")
    a("s_cselect_b32 s64, 1, 0")
    a("s_lshl_b32 s65, s61, 14")
    a("s_lshl_b32 s66, s62, 14")
    a("v_lshlrev_b32 v2, 4, v0")
    a("v_add_u32 v2, %d, v2" % FRL)
    a("v_add_u32 v3, s66, v2")
    a("v_add_u32 v2, s65, v2")
    D = 16
    A0, B0 = 32, 96
    for k in range(16):
        a("ds_read_b128 %s, v2 offset:%d" % (vr(A0 + 4 * k, 4), k * 1024))
    a("s_cmp_eq_u32 s64, 1")
    a("s_cbranch_scc1 K1_KVJ_Z")
    for k in range(16):
        a("ds_read_b128 %s, v3 offset:%d" % (vr(B0 + 4 * k, 4), k * 1024))
    a("s_branch K1_KVJ_GO")
    a.label("K1_KVJ_Z"); a.flush()
    for r in range(64):
        a("v_mov_b32 v%d, 0x3f803f80" % (B0 + r))
    a.label("K1_KVJ_GO"); a.flush()
    a("v_and_b32 v4, 31, v0")
    a("v_lshrrev_b32 v5, 5, v0")
    a("s_lshl_b32 s67, s62, 5")
    a("s_sub_i32 s67, s67, 80")
    a("v_add_u32 v6, s67, v4")
    a("v_cmp_le_i32 s[68:69], 0, v6")
    a("v_max_i32 v6, 0, v6")
    divmod_const(a, 7, 8, 6, 20, 128)
    a("v_cmp_le_u32 vcc, 10, v8")
    a("v_cndmask_b32 v9, 0, 1, vcc")
    a("v_mul_u32_u24 v10, 10, v9")
    a("v_sub_u32 v10, v8, v10")
    a("v_lshrrev_b32 v11, 2, v10")
    a("v_lshlrev_b32 v11, 3, v11")
    a("v_lshl_add_u32 v11, v9, 2, v11")
    a("v_and_b32 v12, 3, v10")
    a("v_add_u32 v11, v11, v12")
    a("v_lshrrev_b32 v12, 1, v4")
    a("v_and_b32 v13, 1, v4")
    a("v_lshlrev_b32 v13, 2, v13")
    a("v_add_u32 v13, 18, v13")
    a("v_cmp_gt_u32 s[70:71], 8, v4")
    a("s_cmp_eq_u32 s64, 1")
    a("s_cselect_b64 s[68:69], s[70:71], s[68:69]")
    a("s_cselect_b64 s[72:73], -1, 0")
    a("v_cndmask_b32 v7, v7, v12, s[72:73]")
    a("v_cndmask_b32 v11, v11, v13, s[72:73]")
    a("v_lshl_add_u32 v11, v5, 5, v11")
    a("v_lshl_add_u32 v11, v7, 7, v11")
    a("v_lshlrev_b32 v11, 5, v11")
    a("s_lshl_b32 s67, s61, 1")
    a("v_mov_b32 v14, %d" % OOB)
    for p in range(2):
        a("v_sub_u32 v12, s67, v7")
        if p:
            a("v_add_u32 v12, 1, v12")
        a("v_cmp_gt_u32 vcc, 2, v12")
        a("s_and_b64 vcc, vcc, s[68:69]")
        a("v_lshl_add_u32 v13, v12, 11, v11")
        a("v_cndmask_b32 v%d, v14, v13, vcc" % (8 + p))
    a("s_lshl_b32 s67, s%d, 6" % S_MT)
    a("s_lshl_b32 s74, s%d, 3" % S_GRP)
    a("s_add_u32 s67, s67, s74")
    a("s_lshl_b32 s67, s67, 11")
    a("s_add_u32 s67, s67, %d" % WS_KVP)
    a("s_waitcnt lgkmcnt(0)")
    for k in range(16):
        a("v_mfma_f32_32x32x16_bf16 %s, %s, %s, %s" % (vr(D, 16), vr(A0 + 4 * k, 4), vr(B0 + 4 * k, 4), vr(D, 16) if k else "0"))
    for p in range(2):
        for q in range(2):
            a("buffer_store_dwordx4 %s, v%d, s[%d:%d], s67 offen offset:%d %s" % (vr(D + 8 * p + 4 * q, 4), 8 + p, SRD_WS, SRD_WS + 3, 16 * q, stflag()))
    stamp_flush(a, 0, S_WAVE, 4)
    a("s_endpgm")

def gen_packer(a):
    a("s_sub_u32 s60, s29, 4")
    a("s_lshl_b32 s60, s60, 2")
    a("s_add_u32 s60, s60, s52")
    a("s_mul_i32 s60, s60, 12")
    a("s_add_u32 s60, s60, s%d" % S_WAVE)
    srd(a, SRD_W0, S_WD, 1728 * 1280)
    srd(a, SRD_W1, S_WO, 640 * 1280)
    a("s_mul_i32 s61, s%d, 10240" % S_WAVE)
    for i in range(10):
        a("v_add_u32 v2, %d, v0" % (64 * i))
        divmod_const(a, 20 + i, 3, 2, 20, 640)
        a("v_lshlrev_b32 v%d, 4, v3" % (30 + i))
    a("v_lshrrev_b32 v2, 4, v0")
    a("v_bfe_u32 v3, v0, 2, 2")
    a("v_lshl_add_u32 v2, v2, 3, v3")
    a("v_mul_u32_u24 v2, 320, v2")
    a("v_and_b32 v3, 3, v0")
    a("v_lshl_add_u32 v2, v3, 3, v2")
    a("v_add_u32 v10, s61, v2")
    a("v_lshlrev_b32 v11, 4, v0")
    a.label("K1_PK_LOOP")
    a("s_lshr_b32 s62, s60, 2")
    a("s_and_b32 s63, s60, 3")
    a("s_mul_i32 s64, s63, 320")
    a("s_cmp_ge_u32 s62, 54")
    a("s_cbranch_scc1 K1_PK_O")
    a("s_mul_i32 s65, s62, %d" % (32 * 1280))
    a("s_add_u32 s64, s64, s65")
    for i in range(10):
        r = 20 + i
        a("v_and_b32 v2, 19, v%d" % r)
        a("v_bfe_u32 v3, v%d, 3, 1" % r)
        a("v_lshl_add_u32 v2, v3, 2, v2")
        a("v_bfe_u32 v3, v%d, 2, 1" % r)
        a("v_lshl_add_u32 v2, v3, 3, v2")
        a("v_mul_u32_u24 v2, 1280, v2")
        a("v_add_u32 v2, v2, v%d" % (30 + i))
        a("s_add_u32 m0, s61, %d" % (i * 1024))
        a("buffer_load_dwordx4 v2, s[%d:%d], s64 offen lds" % (SRD_W0, SRD_W0 + 3))
    a("s_branch K1_PK_GO")
    a.label("K1_PK_O"); a.flush()
    a("s_sub_u32 s65, s62, 54")
    a("s_mul_i32 s66, s65, 52")
    a("s_lshr_b32 s66, s66, 8")
    a("s_mul_i32 s67, s66, 5")
    a("s_sub_u32 s67, s65, s67")
    a("s_lshl_b32 s67, s67, 4")
    a("s_mul_i32 s66, s66, %d" % (160 * 1280))
    a("s_add_u32 s64, s64, s66")
    for i in range(10):
        r = 20 + i
        a("v_and_b32 v2, 15, v%d" % r)
        a("v_add_u32 v2, s67, v2")
        divmod_const(a, 3, 4, 2, 10, 80)
        a("v_mul_u32_u24 v3, 20, v3")
        a("v_add_u32 v3, v3, v4")
        a("v_lshrrev_b32 v4, 4, v%d" % r)
        a("v_mul_u32_u24 v4, 10, v4")
        a("v_add_u32 v3, v3, v4")
        a("v_mul_u32_u24 v2, 1280, v3")
        a("v_add_u32 v2, v2, v%d" % (30 + i))
        a("s_add_u32 m0, s61, %d" % (i * 1024))
        a("buffer_load_dwordx4 v2, s[%d:%d], s64 offen lds" % (SRD_W1, SRD_W1 + 3))
    a.label("K1_PK_GO"); a.flush()
    a("s_lshl_b32 s65, s63, 1")
    a("s_mul_i32 s65, s65, 74")
    a("s_add_u32 s65, s65, s62")
    a("s_mul_i32 s65, s65, 5120")
    a("s_add_u32 s65, s65, %d" % WS_W2P)
    a("s_waitcnt vmcnt(0)")
    for c in range(10):
        a("ds_read_b64_tr_b16 %s, v10 offset:%d" % (vr(40 + 4 * c, 2), c * 32))
        a("ds_read_b64_tr_b16 %s, v10 offset:%d" % (vr(42 + 4 * c, 2), c * 32 + 4 * 320))
    a("s_waitcnt lgkmcnt(0)")
    for c in range(10):
        off = (c // 5) * 74 * 5120 + (c % 5) * 1024
        a("s_add_u32 s66, s65, %d" % off)
        a("buffer_store_dwordx4 %s, v11, s[%d:%d], s66 offen %s" % (vr(40 + 4 * c, 4), SRD_WS, SRD_WS + 3, stflag()))
    a("s_add_u32 s60, s60, 192")
    a("s_cmp_lt_u32 s60, 296")
    a("s_cbranch_scc1 K1_PK_LOOP")
    stamp_flush(a, 0, S_WAVE, 1)
    a("s_endpgm")
```

```python
from asmlib import *
import k1
from k1 import stamp, stamp_flush
from k1 import WS_H, WS_PQ, WS_W2P, WS_KVP, WS_KVF, WS_END, OOB, srd, f32bits

K2_LDS = 4 * 3 * 5120

S_X, S_OUT, S_DBG, S_WS = 4, 18, 20, 22
SRD_X, SRD_OUT, SRD_DBG, SRD_WS = 32, 36, 40, 48
S_W, S_MT, S_NT = 24, 25, 26
S_HB, S_WB, S_PB, S_KB, S_WO = 52, 53, 54, 55, 56
ACC = 16
DT = [96, 112]
V_A = 2
V_B = 6
V_P = 7
V_POLL = 9
V_XO = 10
V_T = 11

class Sched:
    def __init__(self, a, slots):
        self.a = a
        self.free = list(slots)
        self.issued = 0
        self.pos = {}
        self.reg = {}
    def alloc(self, name):
        r = self.free.pop(0)
        self.reg[name] = r
        return r
    def release(self, name):
        self.free.append(self.reg.pop(name))
    def wait(self, names):
        last = max(self.pos[n] for n in names)
        n = self.issued - 1 - last
        self.a("s_waitcnt vmcnt(%d)" % min(n, 63))

def gen_k2(a, name, cfg):
    a.raw(".globl %s\n.p2align 8\n.type %s,@function\n%s:" % (name, name, name))
    a.flush()
    a("s_cmp_ge_u32 s2, 256")
    a("s_cbranch_scc1 K2_END")
    a("s_load_dwordx2 s[4:5], s[0:1], 0")
    a("s_load_dwordx2 s[18:19], s[0:1], 56")
    a("s_load_dwordx4 s[20:23], s[0:1], 64")
    a("v_lshrrev_b32 v1, 6, v0")
    a("v_and_b32 v0, 63, v0")
    a("v_readfirstlane_b32 s%d, v1" % S_W)
    a("s_and_b32 s29, s2, 7")
    a("s_lshr_b32 s30, s2, 3")
    if cfg.get("k2_xm", 8) == 8:
        a("s_lshl_b32 s31, s29, 2")
        a("s_and_b32 s27, s30, 3")
        a("s_add_u32 s%d, s31, s27" % S_MT)
        a("s_lshr_b32 s%d, s30, 2" % S_NT)
    else:
        a("s_and_b32 s31, s29, 3")
        a("s_lshl_b32 s31, s31, 3")
        a("s_and_b32 s27, s30, 7")
        a("s_add_u32 s%d, s31, s27" % S_MT)
        a("s_lshr_b32 s31, s29, 2")
        a("s_lshl_b32 s31, s31, 2")
        a("s_lshr_b32 s27, s30, 3")
        a("s_add_u32 s%d, s31, s27" % S_NT)
    a("v_lshlrev_b32 v%d, 4, v0" % V_B)
    for rb in range(4):
        a("s_xor_b32 s27, s%d, %d" % (S_W, rb))
        a("s_lshl_b32 s27, s27, 10")
        a("v_add_u32 v%d, s27, v%d" % (V_A + rb, V_B))
    a("s_and_b32 s27, s%d, 1" % S_W)
    a("s_lshl_b32 s27, s27, 8")
    a("v_xor_b32 v%d, s27, v%d" % (V_T, V_B))
    a("s_lshr_b32 s27, s%d, 1" % S_W)
    a("s_lshl_b32 s28, s27, 10")
    a("v_add_u32 v%d, s28, v%d" % (V_P, V_T))
    a("s_xor_b32 s28, s28, 1024")
    a("v_add_u32 v%d, s28, v%d" % (V_P + 1, V_T))
    a("s_mul_i32 s%d, s%d, %d" % (S_HB, S_MT, 54 * 4096))
    a("s_mul_i32 s%d, s%d, %d" % (S_WB, S_NT, 74 * 5120))
    a("s_add_u32 s%d, s%d, %d" % (S_WB, S_WB, WS_W2P))
    a("s_mul_i32 s27, s%d, %d" % (S_W, 5 * 5120))
    a("s_add_u32 s%d, s%d, s27" % (S_WO, S_WB))
    a("s_add_u32 s%d, s%d, %d" % (S_WO, S_WO, 54 * 5120))
    a("s_and_b32 s27, s%d, 1" % S_W)
    a("s_add_u32 s27, s27, 52")
    a("s_lshl_b32 s28, s27, 12")
    a("s_add_u32 s57, s%d, s28" % S_HB)
    a("s_mul_i32 s28, s27, 5120")
    a("s_add_u32 s58, s%d, s28" % S_WB)
    a("s_mul_i32 s27, s%d, %d" % (S_W, 13 * 4096))
    a("s_add_u32 s%d, s%d, s27" % (S_HB, S_HB))
    a("s_mul_i32 s27, s%d, %d" % (S_W, 13 * 5120))
    a("s_add_u32 s%d, s%d, s27" % (S_WB, S_WB))
    a("s_mul_i32 s%d, s%d, %d" % (S_PB, S_MT, 40 * 2048))
    a("s_mul_i32 s27, s%d, %d" % (S_W, 10 * 2048))
    a("s_add_u32 s%d, s%d, s27" % (S_PB, S_PB))
    a("s_add_u32 s%d, s%d, %d" % (S_PB, S_PB, WS_PQ))
    a("s_lshl_b32 s%d, s%d, 14" % (S_KB, S_W))
    a("s_add_u32 s%d, s%d, %d" % (S_KB, S_KB, WS_KVF))
    a("s_lshl_b32 s59, s%d, 6" % S_W)
    a("v_and_b32 v%d, 15, v0" % V_T)
    a("v_mul_u32_u24 v%d, 1280, v%d" % (V_XO, V_T))
    a("v_lshrrev_b32 v%d, 4, v0" % V_T)
    a("v_lshl_add_u32 v%d, v%d, 3, v%d" % (V_XO, V_T, V_XO))
    a("s_lshl_b32 s27, s%d, 2" % S_MT)
    a("s_add_u32 s27, s27, s%d" % S_W)
    a("s_mul_i32 s27, s27, %d" % (16 * 1280))
    a("s_mul_i32 s28, s%d, 160" % S_NT)
    a("s_add_u32 s60, s27, s28")
    a("s_waitcnt lgkmcnt(0)")
    stamp(a, 0)
    srd(a, SRD_WS, S_WS, WS_END)
    srd(a, SRD_X, S_X, 2048 * 1280)
    srd(a, SRD_OUT, S_OUT, 2048 * 1280)
    srd(a, SRD_DBG, S_DBG, 256)
    a("s_cmp_lt_u32 s2, 64")
    a("s_cselect_b32 s61, 1, 0")
    a("s_cmp_eq_u32 s%d, 0" % S_W)
    a("s_cselect_b32 s61, s61, 0")
    a("s_cmp_eq_u32 s61, 0")
    a("s_cbranch_scc1 K2_NORED1")
    a("s_lshr_b32 s62, s2, 1")
    a("s_and_b32 s62, s62, 3")
    a("s_and_b32 s63, s2, 1")
    a("s_add_u32 s63, s63, s62")
    a("s_lshl_b32 s63, s63, 4")
    a("s_mul_i32 s62, s62, 20")
    a("s_sub_i32 s63, s63, s62")
    a("v_lshrrev_b32 v%d, 5, v0" % V_T)
    a("v_lshlrev_b32 v%d, 2, v%d" % (V_T, V_T))
    a("v_add_u32 v%d, s63, v%d" % (V_T, V_T))
    a("v_bfe_u32 v%d, v0, 3, 2" % (V_T + 1))
    a("v_and_b32 v%d, 3, v0" % (V_T + 2))
    a("v_lshl_add_u32 v%d, v%d, 2, v%d" % (V_T + 1, V_T + 1, V_T + 2))
    a("v_cmp_ge_u32 s[64:65], 10, v%d" % (V_T + 1))
    a("v_lshlrev_b32 v%d, 5, v0" % (V_T + 1))
    a("v_mov_b32 v%d, %d" % (V_T + 2, OOB))
    a("v_cmp_gt_u32 vcc, 20, v%d" % V_T)
    a("s_and_b64 vcc, vcc, s[64:65]")
    a("v_cndmask_b32 v%d, v%d, v%d, vcc" % (V_T + 3, V_T + 2, V_T + 1))
    a("v_add_u32 v%d, 8, v%d" % (V_T, V_T))
    a("v_cmp_gt_u32 vcc, 20, v%d" % V_T)
    a("s_and_b64 vcc, vcc, s[64:65]")
    a("v_cndmask_b32 v%d, v%d, v%d, vcc" % (V_T + 4, V_T + 2, V_T + 1))
    a("s_lshl_b32 s62, s2, 11")
    a("s_add_u32 s62, s62, %d" % WS_KVP)
    for mt in range(8):
        a("s_add_u32 s63, s62, %d" % (mt * 64 * 2048))
        a("buffer_load_dwordx4 %s, v%d, s[%d:%d], s63 offen" % (vr(ACC + 8 * mt, 4), V_T + 3, SRD_WS, SRD_WS + 3))
        a("buffer_load_dwordx4 %s, v%d, s[%d:%d], s63 offen offset:16" % (vr(ACC + 8 * mt + 4, 4), V_T + 4, SRD_WS, SRD_WS + 3))
    a.label("K2_NORED1")
    slots = list(range(128, 256, 4)) + list(range(96, 128, 4))
    S = Sched(a, slots)
    loads = []
    def L(name, fn): loads.append((name, fn))
    def hstep_loads(i):
        half = (i == 13)
        nrb = 2 if half else 4
        def pre():
            if half:
                a("s_mov_b32 s62, s57"); a("s_mov_b32 s63, s58")
            else:
                a("s_add_u32 s62, s%d, %d" % (S_HB, i * 4096)); a("s_add_u32 s63, s%d, %d" % (S_WB, i * 5120))
            a("s_add_u32 s64, s63, 4096")
        first = True
        order = [("B", 0), ("A", 0), ("A", 1), ("B", 1), ("A", 2), ("B", 2), ("A", 3), ("B", 3), ("B", 4)]
        for kind, j in order:
            if kind == "A" and j >= nrb:
                continue
            nm = "H%d%s%d" % (i, kind, j)
            def fn(r, kind=kind, j=j, first=first):
                if first: pre()
                if kind == "A":
                    a("buffer_load_dwordx4 %s, v%d, s[%d:%d], s62 offen" % (vr(r, 4), V_A + j, SRD_WS, SRD_WS + 3))
                elif j < 4:
                    a("buffer_load_dwordx4 %s, v%d, s[%d:%d], s63 offen offset:%d" % (vr(r, 4), V_B, SRD_WS, SRD_WS + 3, j * 1024))
                else:
                    a("buffer_load_dwordx4 %s, v%d, s[%d:%d], s64 offen" % (vr(r, 4), V_B, SRD_WS, SRD_WS + 3))
            L(nm, fn)
            first = False
    def pq_load(b, R):
        def fn(r):
            a("s_add_u32 s62, s%d, %d" % (S_PB, b * 2048))
            a("buffer_load_dwordx4 %s, v%d, s[%d:%d], s62 offen" % (vr(r, 4), V_P + R, SRD_WS, SRD_WS + 3))
        L("P%d_%d" % (b, R), fn)
    def kv_load(f):
        def fn(r):
            a("s_add_u32 s62, s%d, %d" % (S_KB, f * 1024))
            a("buffer_load_dwordx4 %s, v%d, s[%d:%d], s62 offen sc1" % (vr(r, 4), V_B, SRD_WS, SRD_WS + 3))
        L("K%d" % f, fn)
    def wo_load(phi, cb):
        def fn(r):
            a("s_add_u32 s62, s%d, %d" % (S_WO, phi * 5120 + cb * 1024))
            a("buffer_load_dwordx4 %s, v%d, s[%d:%d], s62 offen" % (vr(r, 4), V_B, SRD_WS, SRD_WS + 3))
        L("W%d_%d" % (phi, cb), fn)
    def x_load(cb):
        def fn(r):
            a("buffer_load_dwordx2 %s, v%d, s[%d:%d], s60 offen offset:%d" % (vr(r, 2), V_XO, SRD_X, SRD_X + 3, cb * 32))
        L("X%d" % cb, fn)

    NH1 = cfg.get("k2_nh1", 10)
    POLL_AT = cfg.get("k2_poll", 8)
    blocks = []
    for i in range(NH1):
        hstep_loads(i); blocks.append(("H", i))
        if i == POLL_AT:
            L("POLL", None)
    L("CHECK", None)
    seen = set()
    gdone = 0
    for hh in range(8):
        b0 = 5 * (hh >> 2) + (hh & 3)
        for b in (b0, b0 + 1):
            if b not in seen:
                seen.add(b)
                pq_load(b, 0); pq_load(b, 1)
        kv_load(2 * hh); kv_load(2 * hh + 1)
        blocks.append(("O", hh))
        while gdone < 5 and (16 * gdone + 15) // 10 <= hh:
            for cb in range(5):
                wo_load(gdone, cb)
            blocks.append(("G", gdone))
            gdone += 1
    for i in range(NH1, 14):
        hstep_loads(i); blocks.append(("H", i))
        if i == 12:
            for cb in range(5):
                x_load(cb)
    lp = [0]
    reserve = [0]
    dt_reserved = [False]
    def try_issue(maxn):
        n = 0
        while lp[0] < len(loads) and n < maxn:
            nm, fn = loads[lp[0]]
            if nm == "POLL":
                a("buffer_load_dword v%d, off, s[%d:%d], s59 sc1" % (V_POLL, SRD_DBG, SRD_DBG + 3))
                S.pos[nm] = S.issued; S.issued += 1; lp[0] += 1
                continue
            if nm == "CHECK":
                S.wait(["POLL"])
                a("v_readfirstlane_b32 s65, v%d" % V_POLL)
                a("s_cmp_ge_u32 s65, 16")
                a("s_cbranch_scc1 K2_READY")
                a("s_mov_b32 s66, 0")
                a.label("K2_SPIN")
                a("s_add_u32 s66, s66, 1")
                a("s_cmp_gt_u32 s66, 400000")
                a("s_cbranch_scc1 K2_READY")
                a("s_sleep 2")
                a("buffer_load_dword v%d, off, s[%d:%d], s59 sc1" % (V_POLL, SRD_DBG, SRD_DBG + 3))
                a("s_waitcnt vmcnt(0)")
                a("v_readfirstlane_b32 s65, v%d" % V_POLL)
                a("s_cmp_lt_u32 s65, 16")
                a("s_cbranch_scc1 K2_SPIN")
                a.label("K2_READY")
                stamp(a, 2)
                lp[0] += 1
                dt_reserved[0] = True
                reserve[0] = 6
                continue
            avail = [r for r in S.free if not (dt_reserved[0] and 96 <= r < 128)]
            if len(avail) <= reserve[0]:
                break
            r = avail[0]
            S.free.remove(r); S.reg[nm] = r
            fn(r)
            S.pos[nm] = S.issued; S.issued += 1; lp[0] += 1
            n += 1
        return n
    try_issue(cfg.get("k2_pro", 27))
    n0 = S.issued
    a("s_cmp_eq_u32 s61, 0")
    a("s_cbranch_scc1 K2_NORED2")
    a("s_waitcnt vmcnt(%d)" % n0)
    for mt in range(1, 8):
        for j in range(0, 8, 2):
            a("v_pk_add_f32 %s, %s, %s" % (vr(ACC + j, 2), vr(ACC + j, 2), vr(ACC + 8 * mt + j, 2)))
    for j in range(4):
        a("v_cvt_pk_bf16_f32 v%d, v%d, v%d" % (ACC + 8 + j, ACC + 2 * j, ACC + 2 * j + 1))
    a("s_lshl_b32 s62, s2, 10")
    a("s_add_u32 s62, s62, %d" % WS_KVF)
    a("buffer_store_dwordx4 %s, v%d, s[%d:%d], s62 offen sc0 sc1" % (vr(ACC + 8, 4), V_B, SRD_WS, SRD_WS + 3))
    a("s_lshr_b32 s62, s2, 4")
    a("s_lshl_b32 s62, s62, 6")
    a("v_mov_b32 v%d, 1" % V_T)
    a("s_waitcnt vmcnt(0)")
    a("s_mov_b64 exec, 1")
    a("buffer_atomic_add v%d, off, s[%d:%d], s62 sc1" % (V_T, SRD_DBG, SRD_DBG + 3))
    a("s_mov_b64 exec, -1")
    a.label("K2_NORED2")
    a.nops(2)
    def acc(rb, cb): return ACC + (rb * 5 + cb) * 4
    started = set()
    def mf(rb, cb, A, B):
        c = vr(acc(rb, cb), 4) if (rb, cb) in started else "0"
        started.add((rb, cb))
        return "v_mfma_f32_16x16x32_bf16 %s, %s, %s, %s" % (vr(acc(rb, cb), 4), vr(A, 4), vr(B, 4), c)
    opiece = {}
    dsel = [0]
    for kind, arg in blocks:
        if kind == "H":
            i = arg
            nrb = 2 if i == 13 else 4
            names = ["H%dA%d" % (i, j) for j in range(nrb)] + ["H%dB%d" % (i, j) for j in range(5)]
            while any(n not in S.pos for n in names):
                assert try_issue(1) or all(n in S.pos for n in names), "deadlock in schedule H%d" % i
            S.wait(names)
            if i == 0: stamp(a, 1)
            k = 0
            for cb in range(5):
                for rb in range(nrb):
                    a(mf(rb, cb, S.reg["H%dB%d" % (i, cb)], S.reg["H%dA%d" % (i, rb)]))
                    k += 1
                    if k % 2 == 0:
                        try_issue(1)
                S.release("H%dB%d" % (i, cb))
            for j in range(nrb):
                S.release("H%dA%d" % (i, j))
        elif kind == "O":
            hh = arg
            b0 = 5 * (hh >> 2) + (hh & 3)
            names = ["P%d_%d" % (b, R) for b in (b0, b0 + 1) for R in range(2)] + ["K%d" % (2 * hh), "K%d" % (2 * hh + 1)]
            while any(n not in S.pos for n in names):
                assert try_issue(1) or all(n in S.pos for n in names), "deadlock in schedule O%d" % hh
            S.wait(names)
            for R in range(2):
                assert all(r in S.free for r in range(DT[R], DT[R] + 16, 4)), "D temp busy"
                for i in range(2):
                    a("v_mfma_f32_32x32x16_bf16 %s, %s, %s, %s" % (vr(DT[R], 16), vr(S.reg["K%d" % (2 * hh + i)], 4), vr(S.reg["P%d_%d" % (b0 + i, R)], 4), vr(DT[R], 16) if i else "0"))
            S.release("K%d" % (2 * hh)); S.release("K%d" % (2 * hh + 1))
            S.release("P%d_0" % b0); S.release("P%d_1" % b0)
            if (hh & 3) == 3:
                S.release("P%d_0" % (b0 + 1)); S.release("P%d_1" % (b0 + 1))
            try_issue(4)
            for R in range(2):
                D = DT[R]
                a("v_add_f32 v%d, %s, v%d" % (D + 10, f32bits(1e-6), D + 10))
                a("v_rcp_f32 v%d, v%d" % (D + 10, D + 10))
                for j in range(0, 10, 2):
                    a("v_pk_mul_f32 %s, %s, %s op_sel_hi:[1,0]" % (vr(D + j, 2), vr(D + j, 2), vr(D + 10, 2)))
                for j in range(5):
                    d = 5 * hh + j
                    key = (R, d // 4)
                    if key not in opiece:
                        avail = [r for r in S.free if not (96 <= r < 128)]
                        assert avail, "no slot for o piece"
                        S.free.remove(avail[0]); opiece[key] = avail[0]
                    a("v_cvt_pk_bf16_f32 v%d, v%d, v%d" % (opiece[key] + d % 4, D + 2 * j, D + 2 * j + 1))
                try_issue(2)
            if hh == 7:
                dt_reserved[0] = False
                reserve[0] = 0
        elif kind == "G":
            phi = arg
            names = ["W%d_%d" % (phi, cb) for cb in range(5)]
            while any(n not in S.pos for n in names):
                assert try_issue(1) or all(n in S.pos for n in names), "deadlock in schedule G%d" % phi
            for R in range(2):
                for j in range(4):
                    a("v_permlane16_swap_b32 v%d, v%d" % (opiece[(R, 2 * phi)] + j, opiece[(R, 2 * phi + 1)] + j))
            S.wait(names)
            k = 0
            for cb in range(5):
                for rb in range(4):
                    a(mf(rb, cb, S.reg["W%d_%d" % (phi, cb)], opiece[(rb >> 1, 2 * phi + (rb & 1))]))
                    k += 1
                    if k % 2 == 0:
                        try_issue(1)
                S.release("W%d_%d" % (phi, cb))
            for R in range(2):
                for i in range(2):
                    S.free.append(opiece.pop((R, 2 * phi + i)))
    assert lp[0] == len(loads)
    stamp(a, 3)
    for rb in range(1, 4):
        a("s_xor_b32 s62, s%d, %d" % (S_W, rb))
        a("s_mul_i32 s62, s62, %d" % (3 * 5120))
        a("v_add_u32 v%d, s62, v%d" % (V_T + rb - 1, V_B))
    for rb in range(1, 4):
        for cb in range(5):
            a("ds_write_b128 v%d, %s offset:%d" % (V_T + rb - 1, vr(acc(rb, cb), 4), (rb - 1) * 5120 + cb * 1024))
    a("s_mul_i32 s62, s%d, %d" % (S_W, 3 * 5120))
    a("v_add_u32 v%d, s62, v%d" % (V_T + 3, V_B))
    a("s_waitcnt lgkmcnt(0)")
    a("s_barrier")
    for j in range(3):
        for cb in range(5):
            a("ds_read_b128 %s, v%d offset:%d" % (vr(acc(1 + j, cb), 4), V_T + 3, j * 5120 + cb * 1024))
    S.wait(["X%d" % cb for cb in range(5)])
    a("s_waitcnt lgkmcnt(0)")
    for cb in range(5):
        c = acc(0, cb)
        xr = S.reg["X%d" % cb]
        for j in range(1, 4):
            for p in (0, 2):
                a("v_pk_add_f32 %s, %s, %s" % (vr(c + p, 2), vr(c + p, 2), vr(acc(j, cb) + p, 2)))
        t = acc(1, cb)
        a("v_lshlrev_b32 v%d, 16, v%d" % (t, xr))
        a("v_and_b32 v%d, 0xffff0000, v%d" % (t + 1, xr))
        a("v_lshlrev_b32 v%d, 16, v%d" % (t + 2, xr + 1))
        a("v_and_b32 v%d, 0xffff0000, v%d" % (t + 3, xr + 1))
        for p in (0, 2):
            a("v_pk_add_f32 %s, %s, %s" % (vr(c + p, 2), vr(c + p, 2), vr(t + p, 2)))
        a("v_cvt_pk_bf16_f32 v%d, v%d, v%d" % (xr, c, c + 1))
        a("v_cvt_pk_bf16_f32 v%d, v%d, v%d" % (xr + 1, c + 2, c + 3))
        a("buffer_store_dwordx2 %s, v%d, s[%d:%d], s60 offen offset:%d" % (vr(xr, 2), V_XO, SRD_OUT, SRD_OUT + 3, cb * 32))
    stamp_flush(a, 1, S_W, 4)
    a.label("K2_END"); a.flush()
    a("s_endpgm")
```

```python
import sys, json
from asmlib import *
import k1, k2

HEADER = open("parallel_sum__linear_attn_block__geglu_ffn__prompt.s.ref").read().split("; Override launch geometry")[0]

def kd(name, vgpr, sgpr=102):
    return """.amdhsa_kernel %s
  .amdhsa_next_free_vgpr %d
  .amdhsa_next_free_sgpr %d
  .amdhsa_accum_offset %d
  .amdhsa_group_segment_fixed_size 0
  .amdhsa_kernarg_size 80
  .amdhsa_user_sgpr_count 2
  .amdhsa_user_sgpr_kernarg_segment_ptr 1
  .amdhsa_system_sgpr_workgroup_id_x 1
.end_amdhsa_kernel
""" % (name, vgpr, sgpr, (vgpr + 3) // 4 * 4)

def build(cfg):
    k1.STAMP = bool(cfg.get('stamp'))
    k1.CFG = cfg
    a = Asm()
    N1 = "parallel_sum__linear_attn_block__geglu_ffn__prompt_kernel"
    N2 = "psum_stage2_kernel"
    a.raw(HEADER.rstrip("\n"))
    a.raw("; @launch kernel=%s grid=(256,1,1) block=(768,1,1) lds=%d" % (N1, k1.K1_LDS))
    a.raw("; @launch kernel=%s grid=(256,1,1) block=(256,1,1) lds=%d" % (N2, k2.K2_LDS))
    a.raw('.amdgcn_target "amdgcn-amd-amdhsa--gfx950"\n.text')
    k1.gen_k1(a, N1)
    k2.gen_k2(a, N2, cfg)
    a.raw('.section .rodata,"a"\n.p2align 6')
    a.raw(kd(N1, 168, 102))
    a.raw(".p2align 6")
    a.raw(kd(N2, 256, 102))
    return a.text()

if __name__ == "__main__":
    out = sys.argv[1] if len(sys.argv) > 1 else "parallel_sum__linear_attn_block__geglu_ffn__prompt.s"
    cfg = json.loads(sys.argv[2]) if len(sys.argv) > 2 else {}
    open(out, "w").write(build(cfg))
    print("wrote", out)
```

```python
from asmlib import *
import math, struct

WS_H = 0
WS_PQ = WS_H + 32 * 54 * 4096
WS_W2P = WS_PQ + 32 * 40 * 2048
WS_KVP = WS_W2P + 8 * 74 * 5120
WS_KVF = WS_KVP + 8 * 64 * 2048
WS_RST = WS_KVF + 65536
WS_CSP = WS_RST + 2048 * 8
CSP_STRIDE = 5376 * 8
WS_END = WS_CSP + 8 * CSP_STRIDE
OOB = 0x40000000

XSLOT = 32768
XRING = 3
WSLOT = 12288
WRING = 5
WBASE = XSLOT * XRING
UPOFF = 6144
ST_BASE = WBASE + WRING * WSLOT
ST_MEAN = ST_BASE
ST_RSTD = ST_BASE + 1024
ST_COL = ST_BASE + 2048
ST_FLAG = ST_COL + 768
K1_LDS = ST_FLAG + 64

LOG2E = 1.4426950408889634
def f32bits(x):
    return "0x%08x" % struct.unpack("<I", struct.pack("<f", x))[0]

S_X, S_WQKV, S_WO, S_WG, S_WU, S_WD, S_OUT, S_DBG, S_WS = 4, 6, 8, 12, 14, 16, 18, 20, 22
S_WAVE, S_MT, S_GRP, S_LIN = 24, 25, 26, 27
S_XCD, S_IDX, S_I3, S_GI, S_NQ = 29, 30, 52, 53, 54
SRD_X, SRD_W0, SRD_W1, SRD_W2, SRD_WS = 32, 36, 40, 44, 48
SRD_DBG = 56
SRD_ST = 8

STAMP = False
CFG = {}
WS_ST = 16 << 20

def stflag():
    return CFG.get("k1_st", "sc1")

def srd(a, base, ptr, nbytes):
    a("s_mov_b32 s%d, s%d" % (base, ptr))
    a("s_and_b32 s%d, s%d, 0xffff" % (base + 1, ptr + 1))
    a("s_mov_b32 s%d, %d" % (base + 2, nbytes))
    a("s_mov_b32 s%d, 0x20000" % (base + 3))

def divmod_const(a, q, r, x, d, maxx):
    sh = 16
    m = (1 << sh) // d + 1
    assert all((v * m) >> sh == v // d for v in range(maxx)), (d, maxx)
    assert m * maxx < (1 << 32) and m < (1 << 24)
    a("v_mul_u32_u24 v%d, %d, v%d" % (q, m, x))
    a("v_lshrrev_b32 v%d, %d, v%d" % (q, sh, q))
    a("v_mul_u32_u24 v%d, %d, v%d" % (r, d, q))
    a("v_sub_u32 v%d, v%d, v%d" % (r, x, r))

def stamp(a, idx):
    if STAMP:
        a("s_memrealtime s[%d:%d]" % (84 + 2 * idx, 85 + 2 * idx))
def stamp_flush(a, kernel_no, wave_sgpr, n):
    if not STAMP:
        return
    a("s_memrealtime s[100:101]")
    a("s_waitcnt lgkmcnt(0) vmcnt(0)")
    a("s_memrealtime s[%d:%d]" % (84 + 2 * n, 85 + 2 * n))
    a("s_mov_b32 s50, 0x7fffffff")
    a("s_lshl_b32 s82, s2, 4")
    a("s_add_u32 s82, s82, s%d" % wave_sgpr)
    a("s_lshl_b32 s82, s82, 6")
    a("s_add_u32 s82, s82, %d" % (WS_ST + kernel_no * (1 << 20)))
    a("s_waitcnt lgkmcnt(0)")
    a("s_mov_b64 exec, 1")
    for i in range(n + 1):
        a("v_mov_b32 v2, s%d" % (84 + 2 * i))
        a("v_mov_b32 v3, s%d" % (85 + 2 * i))
        a("buffer_store_dwordx2 v[2:3], off, s[48:51], s82 offset:%d" % (8 * i))
        a("s_nop 1")
    if n == 4:
        a("s_sub_u32 s96, s98, s96")
        a("v_mov_b32 v2, s96")
        a("v_mov_b32 v3, 0")
        a("buffer_store_dwordx2 v[2:3], off, s[48:51], s82 offset:56")
        a("s_nop 1")
        a("v_mov_b32 v2, s100")
        a("v_mov_b32 v3, s101")
        a("buffer_store_dwordx2 v[2:3], off, s[48:51], s82 offset:40")

def tl(a):
    if STAMP:
        a("s_memrealtime s[90:91]")
        a("s_waitcnt lgkmcnt(0)")
        a("s_mov_b32 m0, s94")
        a("s_nop 0")
        a("v_writelane_b32 v167, s90, m0")
        a("s_add_u32 s94, s94, 1")

def red8(a, r):
    a("v_add_f32_dpp v%d, v%d, v%d quad_perm:[1,0,3,2] row_mask:0xf bank_mask:0xf" % (r, r, r))
    a("v_add_f32_dpp v%d, v%d, v%d quad_perm:[2,3,0,1] row_mask:0xf bank_mask:0xf" % (r, r, r))
    a("v_add_f32_dpp v%d, v%d, v%d row_half_mirror row_mask:0xf bank_mask:0xf" % (r, r, r))

def rbf(a, r):
    a("v_cvt_pk_bf16_f32 v%d, v%d, v%d" % (r, r, r))
    a("v_and_b32 v%d, 0xffff0000, v%d" % (r, r))

def gen_k1(a, name):
    a.raw(".globl %s\n.p2align 8\n.type %s,@function\n%s:" % (name, name, name))
    a.flush()
    a("s_cmp_ge_u32 s2, 256")
    a("s_cbranch_scc1 K1_END")
    a("s_load_dwordx16 s[4:19], s[0:1], 0")
    a("s_load_dwordx4 s[20:23], s[0:1], 64")
    a("v_lshrrev_b32 v1, 6, v0")
    a("v_and_b32 v0, 63, v0")
    a("v_readfirstlane_b32 s%d, v1" % S_WAVE)
    a("s_and_b32 s29, s2, 7")
    a("s_lshr_b32 s30, s2, 3")
    a("s_and_b32 s31, s29, 1")
    a("s_lshl_b32 s31, s31, 2")
    a("s_and_b32 s52, s30, 3")
    a("s_add_u32 s%d, s31, s52" % S_MT)
    a("s_lshr_b32 s53, s30, 2")
    a("s_lshr_b32 s54, s29, 1")
    a("s_lshl_b32 s55, s54, 3")
    a("s_cmp_eq_u32 s54, 3")
    a("s_cselect_b32 s60, 1, 0")
    a("s_sub_u32 s55, s55, s60")
    a("s_add_u32 s%d, s55, s53" % S_LIN)
    a("s_mul_i32 s61, s54, 5")
    a("s_sub_u32 s61, s61, s60")
    a("s_add_u32 s%d, s61, s53" % S_GRP)
    a("s_cmp_ge_u32 s54, 2")
    a("s_cselect_b32 s61, 4, 5")
    a("s_add_u32 s62, s54, 18")
    a("s_cmp_eq_u32 s53, s61")
    a("s_cselect_b32 s%d, s62, s%d" % (S_GRP, S_GRP))
    a("s_lshl_b32 s62, s54, 1")
    a("s_add_u32 s62, s62, s53")
    a("s_sub_u32 s62, s62, s61")
    a("s_add_u32 s62, s62, 21")
    a("s_cmp_gt_u32 s53, s61")
    a("s_cselect_b32 s%d, s62, s%d" % (S_GRP, S_GRP))
    a("s_cmp_ge_u32 s54, 2")
    a("s_cselect_b32 s60, 7, 8")
    a("s_waitcnt lgkmcnt(0)")
    stamp(a, 0)
    srd(a, SRD_X, S_X, 2048 * 1280)
    srd(a, SRD_WS, S_WS, WS_END)
    a("s_cmp_ge_u32 s53, s60")
    a("s_cbranch_scc1 K1_PACK")
    a("s_cmp_lt_u32 s%d, 8" % S_WAVE)
    a("s_cbranch_scc1 K1_COMP")
    gen_loader(a)
    a.label("K1_COMP"); a.flush()
    if CFG.get("k1_pf", 0):
        gen_prefetch(a)
    a("s_and_b32 s60, s%d, 3" % S_WAVE)
    a("s_lshr_b32 s67, s%d, 2" % S_WAVE)
    a("s_cmp_ge_u32 s%d, 22" % S_GRP)
    a("s_cbranch_scc1 K1_KV")
    a("s_cmp_ge_u32 s%d, 18" % S_GRP)
    a("s_cbranch_scc1 K1_Q")
    gen_compute(a, "F")
    a.label("K1_Q"); a.flush()
    a("s_sub_u32 s%d, s%d, 18" % (S_GRP, S_GRP))
    gen_compute(a, "Q")
    a.label("K1_KV"); a.flush()
    a("s_sub_u32 s%d, s%d, 22" % (S_GRP, S_GRP))
    gen_compute(a, "K")
    a.label("K1_PACK"); a.flush()
    gen_packer(a)
    a.label("K1_END"); a.flush()
    a("s_endpgm")

def gen_prefetch(a):
    nst = CFG.get("pf_n", 1)
    a("s_and_b32 s60, s%d, 3" % S_WAVE)
    a("s_cmp_ge_u32 s%d, 4" % S_WAVE)
    a("s_cbranch_scc1 K1_PF_CHK")
    a("s_cmp_ge_u32 s%d, 18" % S_GRP)
    a("s_cbranch_scc1 K1_PF_CHK")
    a("s_and_b32 s60, s%d, 1" % S_WAVE)
    a("s_lshl_b32 s60, s60, 1")
    a.label("K1_PF_CHK")
    a("s_cmp_ge_u32 s60, %d" % nst)
    a("s_cbranch_scc1 K1_PF_DONE")
    a("s_cmp_ge_u32 s%d, 4" % S_WAVE)
    a("s_cbranch_scc1 K1_PF_X")
    a("s_cmp_ge_u32 s%d, 18" % S_GRP)
    a("s_cbranch_scc1 K1_PF_QKV")
    a("s_cmp_ge_u32 s%d, 2" % S_WAVE)
    a("s_cselect_b32 s%d, s%d, s%d" % (SRD_W0, S_WU, S_WG))
    a("s_cselect_b32 s%d, s%d, s%d" % (SRD_W0 + 1, S_WU + 1, S_WG + 1))
    a("s_and_b32 s%d, s%d, 0xffff" % (SRD_W0 + 1, SRD_W0 + 1))
    a("s_mov_b32 s%d, %d" % (SRD_W0 + 2, 640 * 3456))
    a("s_mov_b32 s%d, 0x20000" % (SRD_W0 + 3))
    a("v_lshrrev_b32 v2, 5, v0")
    a("v_bfe_u32 v3, v0, 1, 4")
    a("v_lshl_add_u32 v2, v2, 6, v3")
    a("v_mul_u32_u24 v2, 3456, v2")
    a("v_and_b32 v3, 1, v0")
    a("v_lshl_add_u32 v2, v3, 7, v2")
    a("s_and_b32 s60, s%d, 1" % S_WAVE)
    a("s_lshl_b32 s60, s60, 7")
    a("s_lshl_b32 s61, s%d, 4" % S_I3)
    a("s_add_u32 s60, s60, s61")
    a("s_add_u32 s60, s60, 64")
    a("s_mul_i32 s60, s60, 3456")
    a("s_mul_i32 s61, s%d, 192" % S_GRP)
    a("s_add_u32 s60, s60, s61")
    a("buffer_load_dword v1, v2, s[%d:%d], s60 offen" % (SRD_W0, SRD_W0 + 3))
    a("s_branch K1_PF_DONE")
    a.label("K1_PF_QKV"); a.flush()
    srd(a, SRD_W0, S_WQKV, 640 * 3840)
    a("v_lshrrev_b32 v2, 2, v0")
    a("v_mul_u32_u24 v2, 3840, v2")
    a("v_and_b32 v3, 1, v0")
    a("v_bfe_u32 v4, v0, 1, 1")
    a("s_cmp_ge_u32 s%d, 22" % S_GRP)
    a("s_movk_i32 s61, 192")
    a("s_cselect_b32 s61, 1280, s61")
    a("s_movk_i32 s60, 124")
    a("s_cselect_b32 s60, 156, s60")
    a("v_mul_lo_u32 v3, v3, s60")
    a("v_mul_lo_u32 v4, v4, s61")
    a("v_add3_u32 v2, v2, v3, v4")
    a("s_sub_u32 s62, s%d, 18" % S_GRP)
    a("s_mul_i32 s62, s62, 320")
    a("s_sub_u32 s63, s%d, 22" % S_GRP)
    a("s_mul_i32 s63, s63, 160")
    a("s_add_u32 s63, s63, 1280")
    a("s_cmp_ge_u32 s%d, 22" % S_GRP)
    a("s_cselect_b32 s62, s63, s62")
    a("s_add_u32 s60, s%d, 1" % S_WAVE)
    a("s_lshl_b32 s60, s60, 6")
    a("s_lshl_b32 s61, s%d, 4" % S_I3)
    a("s_add_u32 s60, s60, s61")
    a("s_mul_i32 s60, s60, 3840")
    a("s_add_u32 s60, s60, s62")
    a("buffer_load_dword v1, v2, s[%d:%d], s60 offen" % (SRD_W0, SRD_W0 + 3))
    a("s_branch K1_PF_DONE")
    a.label("K1_PF_X"); a.flush()
    a("s_mul_i32 s60, s%d, 37" % S_GI)
    a("v_add_u32 v2, s60, v0")
    a("v_mul_u32_u24 v3, 1280, v2")
    a("v_mov_b32 v4, %d" % OOB)
    a("v_cmp_gt_u32 vcc, 256, v2")
    a("v_cndmask_b32 v3, v4, v3, vcc")
    a("v_cmp_gt_u32 vcc, 37, v0")
    a("v_cndmask_b32 v2, v4, v3, vcc")
    a("s_mul_i32 s60, s%d, %d" % (S_MT, 256 * 1280))
    a("s_sub_u32 s61, s%d, 3" % S_WAVE)
    a("s_lshl_b32 s61, s61, 7")
    a("s_add_u32 s60, s60, s61")
    a("buffer_load_dword v1, v2, s[%d:%d], s60 offen" % (SRD_X, SRD_X + 3))
    a.label("K1_PF_DONE"); a.flush()

def gen_loader(a):
    noload = CFG.get("no_load")
    a("s_sub_u32 s60, s%d, 8" % S_WAVE)
    if CFG.get("ld_prio", 3): a("s_setprio %d" % CFG.get("ld_prio", 3))
    if STAMP:
        a("s_mov_b32 s94, 0")
        a("v_mov_b32 v167, 0")
    a("v_lshrrev_b32 v4, 3, v0")
    a("v_mul_u32_u24 v12, 1280, v4")
    a("v_lshrrev_b32 v5, 4, v0")
    a("v_and_b32 v6, 7, v0")
    a("v_xor_b32 v7, v6, v5")
    a("v_lshl_add_u32 v2, v7, 4, v12")
    a("v_xor_b32 v7, 4, v7")
    a("v_lshl_add_u32 v3, v7, 4, v12")
    a("s_mov_b32 s74, %d" % WBASE)
    a("s_mul_i32 s76, s%d, %d" % (S_MT, 256 * 1280))
    a("s_mul_i32 s77, s60, %d" % (4 * 10240))
    a("s_add_u32 s76, s76, s77")
    a("s_lshl_b32 s75, s60, 12")
    a("s_add_u32 s77, s75, %d" % (XRING * XSLOT))
    def xhalf(hf):
        for i in range(4):
            a("s_add_u32 m0, s75, %d" % (i * 1024 + hf * 16384))
            a("s_add_u32 s81, s76, %d" % (i * 10240 + hf * 16 * 10240))
            if not noload: a("buffer_load_dwordx4 v%d, s[%d:%d], s81 offen lds" % (2 + (i & 1), SRD_X, SRD_X + 3))
        if hf:
            a("s_add_u32 s75, s75, %d" % XSLOT)
            a("s_sub_u32 s79, s75, %d" % (XRING * XSLOT))
            a("s_cmp_ge_u32 s75, s77")
            a("s_cselect_b32 s75, s79, s75")
            a("s_add_u32 s76, s76, 128")
    def wsub():
        for i, (srdw, dst) in enumerate(((SRD_W0, 64), (SRD_W1, 65), (SRD_W2, 66))):
            a("s_add_u32 m0, s74, s%d" % dst)
            if i == 0: a("s_add_u32 s74, s74, %d" % WSLOT) if False else None
            if not noload: a("buffer_load_dwordx4 v%d, s[%d:%d], s69 offen lds" % (8 + i, srdw, srdw + 3))
        a("s_add_u32 s74, s74, %d" % WSLOT)
        a("s_cmp_ge_u32 s74, %d" % (WBASE + WRING * WSLOT))
        a("s_cselect_b32 s74, %d, s74" % WBASE)
        a("s_add_u32 s69, s69, s68")
    xhalf(0); xhalf(1)
    a("s_lshl_b32 s67, s60, 6")
    a("v_add_u32 v17, s67, v0")
    a("s_cmp_ge_u32 s%d, 18" % S_GRP)
    a("s_cbranch_scc1 K1_LD_QKV")
    srd(a, SRD_W0, S_WG, 640 * 3456)
    srd(a, SRD_W2, S_WU, 640 * 3456)
    a("s_cmp_ge_u32 s60, 2")
    a("s_cselect_b32 s%d, s%d, s%d" % (SRD_W1, S_WU, S_WG))
    a("s_cselect_b32 s%d, s%d, s%d" % (SRD_W1 + 1, SRD_W2 + 1, SRD_W0 + 1))
    a("s_mov_b32 s%d, %d" % (SRD_W1 + 2, 640 * 3456))
    a("s_mov_b32 s%d, 0x20000" % (SRD_W1 + 3))
    a("s_add_u32 s70, s60, 4")
    a("s_sub_u32 s62, s60, 2")
    a("s_cmp_ge_u32 s60, 2")
    a("s_cselect_b32 s70, s62, s70")
    a("s_add_u32 s62, s60, 2")
    for i, sl in enumerate((60, 70, 62)):
        a("s_lshl_b32 s67, s%d, 6" % sl)
        a("v_add_u32 v11, s67, v0")
        divmod_const(a, 12, 13, 11, 12, 384)
        a("v_bfe_u32 v14, v12, 3, 1")
        a("v_lshlrev_b32 v14, 1, v14")
        a("v_xor_b32 v13, v13, v14")
        a("v_mul_u32_u24 v12, 3456, v12")
        a("v_lshl_add_u32 v%d, v13, 4, v12" % (8 + i))
    a("s_mov_b32 s68, %d" % (32 * 3456))
    a("s_mul_i32 s69, s%d, 192" % S_GRP)
    a("v_lshrrev_b32 v11, 5, v17")
    a("v_and_b32 v12, 15, v17")
    a("v_lshl_add_u32 v11, v11, 4, v12")
    a("v_bfe_u32 v12, v17, 4, 1")
    a("v_mul_u32_u24 v12, 1728, v12")
    a("s_mul_i32 s67, s%d, 96" % S_GRP)
    a("s_add_u32 s67, s67, 1920")
    a("v_add3_u32 v16, v11, v12, s67")
    a("s_branch K1_LD_GO")
    a.label("K1_LD_QKV"); a.flush()
    srd(a, SRD_W0, S_WQKV, 640 * 3840)
    srd(a, SRD_W1, S_WQKV, 640 * 3840)
    srd(a, SRD_W2, S_WQKV, 640 * 3840)
    a("s_cmp_ge_u32 s%d, 22" % S_GRP)
    a("s_cselect_b32 s70, %d, 0" % (1280 - 160))
    for i in range(3):
        a("s_lshl_b32 s67, s60, 6")
        a("s_add_u32 s67, s67, %d" % (256 * i))
        a("v_add_u32 v11, s67, v0")
        if i == 2:
            a("v_subrev_u32 v14, 128, v11")
            a("v_cmp_le_u32 vcc, 640, v11")
            a("v_cndmask_b32 v11, v11, v14, vcc")
        divmod_const(a, 12, 13, 11, 20, 640)
        a("v_bfe_u32 v14, v12, 3, 1")
        a("v_lshlrev_b32 v14, 1, v14")
        a("v_xor_b32 v13, v13, v14")
        a("v_mul_u32_u24 v12, 3840, v12")
        a("v_lshl_add_u32 v%d, v13, 4, v12" % (8 + i))
        a("v_mov_b32 v14, s70")
        a("v_cmp_le_u32 vcc, 10, v13")
        a("v_cndmask_b32 v14, 0, v14, vcc")
        a("v_add_u32 v%d, v%d, v14" % (8 + i, 8 + i))
    a("s_mov_b32 s68, %d" % (32 * 3840))
    a("s_sub_u32 s69, s%d, 18" % S_GRP)
    a("s_mul_i32 s69, s69, 320")
    a("s_sub_u32 s71, s%d, 22" % S_GRP)
    a("s_mul_i32 s71, s71, 160")
    a("s_add_u32 s71, s71, 1280")
    a("s_cmp_ge_u32 s%d, 22" % S_GRP)
    a("s_cselect_b32 s69, s71, s69")
    a("s_lshr_b32 s67, s69, 1")
    a("s_lshr_b32 s71, s70, 1")
    a("v_mov_b32 v14, s71")
    a("v_cmp_le_u32 vcc, 80, v17")
    a("v_cndmask_b32 v14, 0, v14, vcc")
    a("v_add3_u32 v16, v17, v14, s67")
    a.label("K1_LD_GO"); a.flush()
    a("s_lshl_b32 s64, s60, 10")
    a("s_add_u32 s65, s64, 4096")
    a("s_add_u32 s66, s64, 8192")
    ops = ["x0"] * 4 + ["x1"] * 4
    def W(n): wsub(); ops.extend(["w%d" % n] * 3)
    def X(n): xhalf(n & 1); ops.extend(["x%d" % n] * 4)
    def wait(tags):
        last = max(i for i, t in enumerate(ops) if t in tags)
        a("s_waitcnt vmcnt(%d)" % min(63, len(ops) - 1 - last))
    def bar(u):
        tags = ["w%d" % (u + 1)]
        if (u + 1) % 2 == 0:
            tags += ["x%d" % (u + 1), "x%d" % (u + 2)]
        tags = [t for t in tags if t in ops]
        if tags: wait(tags)
        tl(a); a("s_barrier"); tl(a)
    W(0); W(1)
    a("s_mov_b32 s61, 2")
    a("s_mov_b32 s62, s%d" % S_LIN)
    a("s_cmp_eq_u32 s60, 3")
    a("s_cbranch_scc1 K1_ST_DEC")
    a("s_mul_i32 s63, s%d, 3" % S_GI)
    a("s_add_u32 s63, s63, s60")
    a("s_mov_b32 s61, 1")
    a("s_lshl_b32 s67, s%d, 3" % S_NQ)
    a("s_lshr_b32 s70, 0x150f0800, s67")
    a("s_and_b32 s70, s70, 255")
    a("s_lshr_b32 s71, 0x06060708, s67")
    a("s_and_b32 s71, s71, 255")
    a("s_lshr_b32 s72, 0x170f0800, s67")
    a("s_and_b32 s72, s72, 255")
    a("s_lshr_b32 s73, 0x07080708, s67")
    a("s_and_b32 s73, s73, 255")
    a("s_add_u32 s62, s70, s63")
    a("s_add_u32 s62, s62, 30")
    a("s_sub_u32 s67, s62, s71")
    a("s_add_u32 s67, s67, 27")
    a("s_cmp_ge_u32 s63, s71")
    a("s_cselect_b32 s62, s67, s62")
    a("s_lshl_b32 s71, s71, 1")
    a("s_sub_u32 s67, s63, s71")
    a("s_add_u32 s72, s72, s67")
    a("s_cmp_ge_u32 s63, s71")
    a("s_cselect_b32 s62, s72, s62")
    a("s_add_u32 s71, s71, s73")
    a("s_cmp_ge_u32 s63, s71")
    a("s_cselect_b32 s61, 0, s61")
    a("s_cselect_b32 s67, 1, 0")
    a("s_cmp_eq_u32 s%d, 3" % S_NQ)
    a("s_cselect_b32 s67, s67, 0")
    a("s_cmp_eq_u32 s67, 1")
    a("s_cselect_b32 s61, 2, s61")
    a.label("K1_ST_DEC"); a.flush()
    a("s_movk_i32 s63, 3840")
    a("s_cmp_ge_u32 s62, 30")
    a("s_cselect_b32 s%d, s%d, s%d" % (SRD_ST, S_WG, S_WQKV))
    a("s_cselect_b32 s%d, s%d, s%d" % (SRD_ST + 1, S_WG + 1, S_WQKV + 1))
    a("s_cselect_b32 s63, 3456, s63")
    a("s_cselect_b32 s67, 30, 0")
    a("s_cmp_ge_u32 s62, 57")
    a("s_cselect_b32 s%d, s%d, s%d" % (SRD_ST, S_WU, SRD_ST))
    a("s_cselect_b32 s%d, s%d, s%d" % (SRD_ST + 1, S_WU + 1, SRD_ST + 1))
    a("s_cselect_b32 s67, 57, s67")
    a("s_sub_u32 s70, s62, s67")
    a("s_lshl_b32 s70, s70, 7")
    a("s_lshl_b32 s71, s%d, 3" % S_MT)
    a("s_mul_i32 s71, s71, s63")
    a("s_add_u32 s70, s70, s71")
    a("s_lshl_b32 s71, s63, 6")
    a("s_mul_i32 s%d, s63, 640" % (SRD_ST + 2))
    a("s_lshl_b32 s72, s%d, 8" % S_MT)
    a("s_lshl_b32 s73, s62, 3")
    a("s_add_u32 s72, s72, s73")
    a("s_mul_i32 s73, s72, 1280")
    a("s_cmp_eq_u32 s61, 2")
    a("s_cselect_b32 s%d, s%d, s%d" % (SRD_ST, S_X, SRD_ST))
    a("s_cselect_b32 s%d, s%d, s%d" % (SRD_ST + 1, S_X + 1, SRD_ST + 1))
    a("s_cselect_b32 s63, 1280, s63")
    a("s_cselect_b32 s70, s73, s70")
    a("s_cselect_b32 s71, 128, s71")
    a("s_cselect_b32 s%d, %d, s%d" % (SRD_ST + 2, 2048 * 1280, SRD_ST + 2))
    a("s_cmp_eq_u32 s61, 0")
    a("s_cselect_b32 s%d, 0, s%d" % (SRD_ST + 2, SRD_ST + 2))
    a("s_and_b32 s%d, s%d, 0xffff" % (SRD_ST + 1, SRD_ST + 1))
    a("s_mov_b32 s%d, 0x20000" % (SRD_ST + 3))
    a("v_mov_b32 v19, 0")
    a("v_mul_lo_u32 v18, v4, s63")
    a("v_lshl_add_u32 v18, v6, 4, v18")
    srd(a, SRD_DBG, S_DBG, 256)
    LD, U, A = 32, 72, 20
    order = CFG.get("st_order", [1, 2, 3, 4, 5, 6, 7, 8, 9, 0])
    pace = CFG.get("st_pace", [1] * 10)
    nld = [0]
    def S(cnt):
        for _ in range(cnt):
            i = order[nld[0]]
            a("s_mul_i32 s73, s71, %d" % i)
            a("s_add_u32 s73, s73, s70")
            a("buffer_load_dwordx4 %s, v18, s[%d:%d], s73 offen" % (vr(LD + 4 * nld[0], 4), SRD_ST, SRD_ST + 3))
            ops.append("s%d" % nld[0]); nld[0] += 1
    done = [0]
    def P(upto):
        for i in range(done[0], upto):
            for d in range(4):
                a("v_lshlrev_b32 v%d, 16, v%d" % (U + 8 * i + 2 * d, LD + 4 * i + d))
                a("v_and_b32 v%d, 0xffff0000, v%d" % (U + 8 * i + 2 * d + 1, LD + 4 * i + d))
            if i == 1:
                for d in range(4):
                    a("v_pk_add_f32 %s, %s, %s" % (vr(A + 2 * d, 2), vr(U + 2 * d, 2), vr(U + 8 + 2 * d, 2)))
            elif i > 1:
                for d in range(4):
                    a("v_pk_add_f32 %s, %s, %s" % (vr(A + 2 * d, 2), vr(A + 2 * d, 2), vr(U + 8 * i + 2 * d, 2)))
        done[0] = upto
    landed = [0]
    def note_landed(tags):
        last = max(i for i, t in enumerate(ops) if t in tags)
        landed[0] = max(landed[0], sum(1 for t in ops[:last + 1] if t.startswith("s") and t != "st"))
    S(10)
    bar(-1)
    bar(0)
    nw, nx = [2], [2]
    def ring(u, cap):
        n = 0
        while n < cap:
            wok = nw[0] < 20 and nw[0] - 5 <= u - 1
            xok = nx[0] < 20 and 2 * (nx[0] // 2) - 5 <= u - 1
            if xok and (not wok or 2 * (nx[0] // 2) <= nw[0]):
                X(nx[0]); nx[0] += 1; n += 4
            elif wok:
                W(nw[0]); nw[0] += 1; n += 3
            else:
                break
    ring(1, 17)
    a("buffer_load_dword v13, off, s[%d:%d], 0 sc1" % (SRD_DBG, SRD_DBG + 3)); ops.append("tag")
    bar(1)
    landed[0] = 10
    phase = 0
    u_store = None
    for u in range(2, 16):
        ring(u, CFG.get("ld_cap", 14))
        if done[0] < 10:
            P(min(landed[0], done[0] + CFG.get("st_chunk", 5)))
        elif phase == 0:
            phase = 1
            a("s_cmp_eq_u32 s61, 2")
            a("s_cbranch_scc1 K1_ST_ROW")
            a("v_lshl_add_u32 v19, v6, 3, v4")
            a("v_lshlrev_b32 v19, 3, v19")
            a("s_lshl_b32 s70, s62, 9")
            a("s_mul_i32 s71, s%d, %d" % (S_MT, CSP_STRIDE))
            a("s_add_u32 s70, s70, s71")
            a("s_add_u32 s70, s70, %d" % WS_CSP)
            a("s_cmp_eq_u32 s61, 0")
            a("s_cselect_b32 s70, %d, s70" % OOB)
            a("v_and_b32 v7, 8, v0")
            a("v_cmp_eq_u32 s[82:83], 0, v7")
            for j in range(4):
                a("v_permlane32_swap_b32 v%d, v%d" % (A + j, A + 4 + j))
            for j in range(4):
                a("v_add_f32 v%d, v%d, v%d" % (A + j, A + j, A + 4 + j))
            for j in range(2):
                a("v_permlane16_swap_b32 v%d, v%d" % (A + j, A + 2 + j))
            for j in range(2):
                a("v_add_f32 v%d, v%d, v%d" % (A + j, A + j, A + 2 + j))
            a("v_cndmask_b32 v%d, v%d, v%d, s[82:83]" % (A + 2, A + 1, A))
            a("v_cndmask_b32 v%d, v%d, v%d, s[82:83]" % (A + 3, A, A + 1))
            a("v_add_f32_dpp v%d, v%d, v%d row_ror:8 row_mask:0xf bank_mask:0xf" % (A + 2, A + 3, A + 2))
            a("s_branch K1_ST_A")
            a.label("K1_ST_ROW"); a.flush()
            a("v_pk_add_f32 %s, %s, %s" % (vr(A, 2), vr(A, 2), vr(A + 2, 2)))
            a("v_pk_add_f32 %s, %s, %s" % (vr(A + 4, 2), vr(A + 4, 2), vr(A + 6, 2)))
            a("v_pk_add_f32 %s, %s, %s" % (vr(A, 2), vr(A, 2), vr(A + 4, 2)))
            a("v_add_f32 v%d, v%d, v%d" % (A, A, A + 1))
            red8(a, A)
            a("v_mul_f32 v%d, %s, v%d" % (A, f32bits(-1.0 / 640), A))
            for d in range(40):
                a("v_pk_add_f32 %s, %s, %s op_sel_hi:[1,0]" % (vr(U + 2 * d, 2), vr(U + 2 * d, 2), vr(A, 2)))
            a.label("K1_ST_A"); a.flush()
        elif phase == 1:
            phase = 2
            a("s_mov_b32 s73, 0")
            a.label("K1_TAG_CHK")
            a("v_readfirstlane_b32 s78, v13")
            a("s_cmp_lg_u32 s78, 0")
            a("s_cbranch_scc1 K1_TAG_OK")
            a("s_add_u32 s73, s73, 1")
            a("s_cmp_gt_u32 s73, 200000")
            a("s_cbranch_scc1 K1_TAG_OK")
            a("s_sleep 8")
            a("buffer_load_dword v13, off, s[%d:%d], 0 sc1" % (SRD_DBG, SRD_DBG + 3))
            a("s_waitcnt vmcnt(0)")
            a("s_branch K1_TAG_CHK")
            a.label("K1_TAG_OK"); a.flush()
            a("s_cmp_eq_u32 s61, 2")
            a("s_cbranch_scc1 K1_ST_ROW2")
            a("v_mov_b32 v%d, v13" % (A + 3))
            a("buffer_store_dwordx2 %s, v19, s[%d:%d], s70 offen sc0 sc1" % (vr(A + 2, 2), SRD_WS, SRD_WS + 3))
            a("s_branch K1_ST_B")
            a.label("K1_ST_ROW2"); a.flush()
            a("v_pk_mul_f32 %s, %s, %s" % (vr(A + 2, 2), vr(U, 2), vr(U, 2)))
            a("v_pk_mul_f32 %s, %s, %s" % (vr(A + 4, 2), vr(U + 2, 2), vr(U + 2, 2)))
            for d in range(2, 40, 2):
                a("v_pk_fma_f32 %s, %s, %s, %s" % (vr(A + 2, 2), vr(U + 2 * d, 2), vr(U + 2 * d, 2), vr(A + 2, 2)))
                a("v_pk_fma_f32 %s, %s, %s, %s" % (vr(A + 4, 2), vr(U + 2 * d + 2, 2), vr(U + 2 * d + 2, 2), vr(A + 4, 2)))
            a("v_pk_add_f32 %s, %s, %s" % (vr(A + 2, 2), vr(A + 2, 2), vr(A + 4, 2)))
            a("v_add_f32 v%d, v%d, v%d" % (A + 2, A + 2, A + 3))
            red8(a, A + 2)
            a("v_mul_f32 v%d, %s, v%d" % (A + 2, f32bits(1.0 / 640), A + 2))
            rbf(a, A + 2)
            a("v_add_f32 v%d, %s, v%d" % (A + 2, f32bits(1e-5), A + 2))
            rbf(a, A + 2)
            a("v_sqrt_f32 v%d, v%d" % (A + 2, A + 2))
            a("v_cvt_pk_bf16_f32 v%d, v%d, v%d" % (A, A, A + 2))
            a("v_mov_b32 v%d, v13" % (A + 1))
            a("v_lshlrev_b32 v19, 3, v4")
            a("v_mov_b32 v7, %d" % OOB)
            a("v_cmp_eq_u32 vcc, 0, v6")
            a("v_cndmask_b32 v19, v7, v19, vcc")
            a("s_lshl_b32 s70, s72, 3")
            a("s_add_u32 s70, s70, %d" % WS_RST)
            a("buffer_store_dwordx2 %s, v19, s[%d:%d], s70 offen sc0 sc1" % (vr(A, 2), SRD_WS, SRD_WS + 3))
            a.label("K1_ST_B"); a.flush()
            ops.append("st"); u_store = u
        bar(u)
    assert phase == 2
    print("loader: stat store at u=%d" % u_store)
    a("v_lshlrev_b32 v16, 3, v16")
    a("v_lshlrev_b32 v15, 5, v0")
    a("s_mov_b32 s63, 0")
    a("s_cmp_eq_u32 s60, 3")
    a("s_cbranch_scc1 K1_LD_ROWS")
    def colloads():
        for c in range(8):
            a("s_mov_b32 s62, %d" % (WS_CSP + c * CSP_STRIDE))
            a("buffer_load_dwordx2 %s, v16, s[%d:%d], s62 offen sc1" % (vr(20 + 2 * c, 2), SRD_WS, SRD_WS + 3))
    assert nw[0] == 20 and nx[0] == 20
    def tailwait(tags, extra):
        last = max(i for i, t in enumerate(ops) if t in tags)
        a("s_waitcnt vmcnt(%d)" % (len(ops) - 1 - last + extra))
    colloads()
    tailwait(["w17"], 8)
    tl(a); a("s_barrier"); tl(a)
    a("s_waitcnt vmcnt(8)")
    tl(a); a("s_barrier"); tl(a)
    a.label("K1_LD_CCHK")
    a("s_waitcnt vmcnt(0)")
    a("v_xor_b32 v14, v13, v21")
    for c in range(1, 8):
        a("v_xor_b32 v12, v13, v%d" % (21 + 2 * c))
        a("v_or_b32 v14, v14, v12")
    a("v_cmp_ne_u32 vcc, 0, v14")
    a("s_cmp_eq_u64 vcc, 0")
    a("s_cbranch_scc1 K1_LD_COK")
    a("s_add_u32 s63, s63, 1")
    a("s_cmp_gt_u32 s63, 200000")
    a("s_cbranch_scc1 K1_LD_COK")
    a("s_sleep 8")
    colloads()
    a("s_branch K1_LD_CCHK")
    a.label("K1_LD_COK"); a.flush()
    for (d, x, y) in ((20, 20, 22), (24, 24, 26), (28, 28, 30), (32, 32, 34), (20, 20, 24), (28, 28, 32), (20, 20, 28)):
        a("v_add_f32 v%d, v%d, v%d" % (d, x, y))
    a("v_cvt_pk_bf16_f32 v21, v20, v20")
    a("v_and_b32 v21, 0xffff0000, v21")
    a("v_sub_f32 v22, v20, v21")
    a("v_cvt_pk_bf16_f32 v20, v21, v22")
    a("v_lshlrev_b32 v17, 2, v17")
    a("v_add_u32 v17, %d, v17" % ST_COL)
    a("ds_write_b32 v17, v20")
    a("s_branch K1_LD_FIN")
    a.label("K1_LD_ROWS"); a.flush()
    a("s_lshl_b32 s62, s%d, 11" % S_MT)
    a("s_add_u32 s62, s62, %d" % WS_RST)
    def rowloads():
        for i in range(4):
            a("buffer_load_dwordx2 %s, v15, s[%d:%d], s62 offen offset:%d sc1" % (vr(20 + 2 * i, 2), SRD_WS, SRD_WS + 3, 8 * i))
    rowloads()
    tailwait(["w17"], 4)
    tl(a); a("s_barrier"); tl(a)
    a("s_waitcnt vmcnt(4)")
    tl(a); a("s_barrier"); tl(a)
    a.label("K1_LD_RCHK")
    a("s_waitcnt vmcnt(0)")
    a("v_xor_b32 v14, v13, v21")
    for c in range(1, 4):
        a("v_xor_b32 v12, v13, v%d" % (21 + 2 * c))
        a("v_or_b32 v14, v14, v12")
    a("v_cmp_ne_u32 vcc, 0, v14")
    a("s_cmp_eq_u64 vcc, 0")
    a("s_cbranch_scc1 K1_LD_ROK")
    a("s_add_u32 s63, s63, 1")
    a("s_cmp_gt_u32 s63, 200000")
    a("s_cbranch_scc1 K1_LD_ROK")
    a("s_sleep 8")
    rowloads()
    a("s_branch K1_LD_RCHK")
    a.label("K1_LD_ROK"); a.flush()
    a("v_lshrrev_b32 v15, 1, v15")
    a("v_add_u32 v15, %d, v15" % ST_MEAN)
    for i in range(4):
        a("v_and_b32 v%d, 0xffff, v%d" % (28 + i, 20 + 2 * i))
        a("v_lshl_or_b32 v%d, v%d, 16, v%d" % (28 + i, 28 + i, 28 + i))
        a("v_and_b32 v%d, 0xffff0000, v%d" % (32 + i, 20 + 2 * i))
        a("v_rcp_f32 v%d, v%d" % (32 + i, 32 + i))
    a("s_nop 0")
    a("ds_write_b128 v15, v[28:31]")
    a("ds_write_b128 v15, v[32:35] offset:1024")
    a.label("K1_LD_FIN")
    a("s_waitcnt lgkmcnt(0)")
    tl(a); a("s_barrier"); tl(a)
    if STAMP:
        a("s_mov_b32 s50, 0x7fffffff")
        a("s_lshl_b32 s82, s2, 2")
        a("s_add_u32 s82, s82, s60")
        a("s_lshl_b32 s82, s82, 8")
        a("s_add_u32 s82, s82, %d" % (WS_ST + (1 << 19)))
        a("v_lshlrev_b32 v2, 2, v0")
        a("buffer_store_dword v167, v2, s[48:51], s82 offen")
    stamp_flush(a, 0, S_WAVE, 1)
    a("s_endpgm")

ACC = 16
XS = [112, 128]
WA, WB = 144, 156
V_XB = 2
V_WE, V_WO = 4, 5
V_XA, V_WAE, V_WAO = 6, 7, 8
T0 = 112

def gen_compute(a, typ):
    nt = 6 if typ == "F" else 5
    orient = "N" if typ == "K" else "T"
    rowb = 192 if typ == "F" else 320
    def acc(t, rb): return ACC + (t * 4 + rb) * 4
    def wf(t): return (WA + 4 * t) if t < 3 else (WB + 4 * (t - 3))
    a("v_and_b32 v14, 15, v0")
    a("v_lshrrev_b32 v15, 4, v0")
    a("v_bfe_u32 v9, v0, 1, 3")
    a("v_xor_b32 v9, v9, v15")
    a("s_lshl_b32 s61, s60, 13")
    a("v_lshl_add_u32 v10, v14, 7, s61")
    a("v_lshl_add_u32 v%d, v9, 4, v10" % V_XB)
    a("v_xor_b32 v9, 4, v9")
    a("v_lshl_add_u32 v%d, v9, 4, v10" % (V_XB + 1))
    a("v_bfe_u32 v9, v0, 2, 2")
    a("v_lshl_add_u32 v9, v15, 3, v9")
    a("v_mul_u32_u24 v9, %d, v9" % rowb)
    a("v_and_b32 v10, 3, v0")
    a("v_lshl_add_u32 v9, v10, 3, v9")
    a("v_bfe_u32 v10, v0, 4, 1")
    a("v_lshlrev_b32 v10, 5, v10")
    if typ in "FQ":
        P = 3 if typ == "F" else 5
        a("s_mul_i32 s62, s67, %d" % (32 * P))
        a("v_add_u32 v9, s62, v9")
        a("v_add_u32 v11, v9, v10")
        a("v_sub_u32 v12, v9, v10")
        a("s_cmp_eq_u32 s67, 0")
        a("s_cselect_b64 s[68:69], -1, 0")
        a("v_cndmask_b32 v%d, v12, v11, s[68:69]" % V_WE)
        a("v_cndmask_b32 v%d, v11, v12, s[68:69]" % V_WO)
        if typ == "F":
            tl = [((t & 1) * UPOFF + (t >> 1) * 32, (t >> 1) & 1) for t in range(6)]
        else:
            tl = [(t * 32, t & 1) for t in range(5)]
    else:
        a("s_mul_i32 s62, s67, 96")
        a("v_add_u32 v9, s62, v9")
        a("v_add_u32 v11, v9, v10")
        a("v_sub_u32 v12, v9, v10")
        a("s_cmp_eq_u32 s67, 0")
        a("s_cselect_b64 s[68:69], -1, 0")
        a("v_cndmask_b32 v%d, v12, v11, s[68:69]" % V_WE)
        a("v_cndmask_b32 v%d, v11, v12, s[68:69]" % V_WO)
        a("s_lshl_b32 s70, s67, 6")
        tl = [(0, 0), (32, 1), (64, 2), (160, 1), (192, 0)]
    for r in range(nt * 16):
        a("v_mov_b32 v%d, 0" % (ACC + r))
    a("s_mov_b32 s63, 0")
    a("s_mov_b32 s64, %d" % XSLOT)
    a("s_mov_b32 s65, %d" % WBASE)
    a("s_mov_b32 s66, 0")
    def waddr():
        out = ["v_add_u32 v%d, s65, v%d" % (V_WAE, V_WE), "v_add_u32 v%d, s65, v%d" % (V_WAO, V_WO)]
        if typ == "K":
            out.append("v_add_u32 v13, s70, v%d" % V_WAE)
        return out
    def wreads(ts):
        out = []
        for t in ts:
            off, par = tl[t]
            reg = (V_WAE, V_WAO, 13)[par]
            out.append("ds_read_b64_tr_b16 %s, v%d offset:%d" % (vr(wf(t), 2), reg, off))
            out.append("ds_read_b64_tr_b16 %s, v%d offset:%d" % (vr(wf(t) + 2, 2), reg, off + 4 * rowb))
        return out
    def xreads(st, hf, xs):
        out = ["v_add_u32 v%d, s%d, v%d" % (V_XA, xs, V_XB + hf)]
        for rb in range(4):
            out.append("ds_read_b128 %s, v%d offset:%d" % (vr(XS[st] + 4 * rb, 4), V_XA, rb * 2048))
        return out
    def mfma(t, rb, W, X):
        A, B = (W, X) if orient == "T" else (X, W)
        return "v_mfma_f32_16x16x32_bf16 %s, %s, %s, %s" % (vr(acc(t, rb), 4), vr(A, 4), vr(B, 4), vr(acc(t, rb), 4))
    def wadv():
        return ["s_add_u32 s65, s65, %d" % WSLOT,
                "s_cmp_ge_u32 s65, %d" % (WBASE + WRING * WSLOT),
                "s_cselect_b32 s65, %d, s65" % WBASE] + waddr()
    for t in waddr(): a(t)
    a("s_barrier")
    stamp(a, 1)
    if STAMP: a("s_memtime s[96:97]")
    xr = xreads(0, 0, 63); wr = wreads([0, 1, 2])
    for t in xr[:1] + wr[:2] + xr[1:] + wr[2:]:
        a(t)
    a.label("K1_LOOP_" + typ)
    def phase(ms, fill, barrier):
        if CFG.get("no_ds"): fill = [f for f in fill if not f.startswith("ds_")]
        if CFG.get("no_mfma"): ms = ["s_nop 0"] * len(ms)
        a("s_waitcnt lgkmcnt(0)")
        nb = CFG.get("k1_prebar", 2)
        for m in ms[:nb]: a(m)
        if barrier: a("s_barrier")
        rest = ms[nb:]
        k = 0
        for i, m in enumerate(rest):
            per = 2 if len(fill) - k > len(rest) - i else 1
            for f in fill[k:k + per]: a(f)
            k += per
            a(m)
        for f in fill[k:]: a(f)
    for hf in range(2):
        cur = hf
        msA = [mfma(t, rb, wf(t), XS[cur] + 4 * rb) for t in range(3) for rb in range(4)]
        msB = [mfma(t, rb, wf(t), XS[cur] + 4 * rb) for t in range(3, nt) for rb in range(4)]
        phase(msA, wreads(range(3, nt)), False)
        xr = xreads(cur ^ 1, hf ^ 1, 63 if hf == 0 else 64); wr = wreads([0, 1, 2])
        phase(msB, wadv() + xr[:1] + wr[:2] + xr[1:] + wr[2:], True)
    a("s_mov_b32 s63, s64")
    a("s_add_u32 s64, s64, %d" % XSLOT)
    a("s_cmp_ge_u32 s64, %d" % (XRING * XSLOT))
    a("s_cselect_b32 s64, 0, s64")
    a("s_add_u32 s66, s66, 1")
    a("s_cmp_lt_u32 s66, 10")
    a("s_cbranch_scc1 K1_LOOP_" + typ)
    stamp(a, 2)
    if STAMP: a("s_memtime s[98:99]")
    a("s_waitcnt lgkmcnt(0)")
    XC = T0
    WC = T0 + 16
    M = T0 + 40
    a("s_lshl_b32 s61, s60, 8")
    a("s_add_u32 s61, s61, %d" % ST_MEAN)
    a("v_lshl_add_u32 v9, v0, 2, s61")
    a("ds_read_b32 v%d, v9" % M)
    a("v_lshlrev_b32 v10, 2, v14")
    if typ == "F":
        a("s_mul_i32 s62, s67, %d" % (3 * 128))
        co = [(t >> 1) * 128 + (t & 1) * 64 for t in range(6)]
    elif typ == "Q":
        a("s_mul_i32 s62, s67, %d" % (5 * 64))
        co = [t * 64 for t in range(5)]
    else:
        a("s_mul_i32 s62, s67, %d" % (3 * 64))
        co = [0, 64, 128, 320, 384]
    a("s_add_u32 s62, s62, %d" % ST_COL)
    a("v_add_u32 v10, s62, v10")
    if typ == "K":
        a("s_lshl_b32 s70, s67, 7")
        a("v_add_u32 v11, s70, v10")
    for t in range(nt):
        a("ds_read_b32 v%d, v%d offset:%d" % (WC + 4 * t, 11 if (typ == "K" and t == 2) else 10, co[t]))
    RS = T0 + 44
    if orient == "T":
        a("v_lshl_add_u32 v9, v14, 2, s61")
        for rb in range(4):
            a("ds_read_b32 v%d, v9 offset:%d" % (RS + rb, 1024 + rb * 64))
    for r in range(1, 4):
        for k in range(4): a("v_mov_b32 v%d, 0" % (XC + 4 * k + r))
        for t in range(nt): a("v_mov_b32 v%d, 0" % (WC + 4 * t + r))
    for rb in range(4):
        a("v_cmp_eq_u32 s[%d:%d], %d, v15" % (72 + 2 * rb, 73 + 2 * rb, rb))
    a("s_waitcnt lgkmcnt(0)")
    for rb in range(4):
        a("v_cndmask_b32 v%d, 0, v%d, s[%d:%d]" % (XC + 4 * rb, M, 72 + 2 * rb, 73 + 2 * rb))
    for t in range(nt):
        for rb in range(4):
            a(mfma(t, rb, WC + 4 * t, XC + 4 * rb))
    stamp(a, 3)
    if typ == "F":
        epi_ffn(a, acc, RS)
    elif typ == "Q":
        epi_q(a, acc, RS)
    else:
        epi_kv(a, acc)

def epi_ffn(a, acc, RS):
    c0 = -2.0 * math.sqrt(2.0 / math.pi) * LOG2E
    K = T0
    for rb in range(4):
        k = K + rb * 6; R = RS + rb
        a("v_mul_f32 v%d, v%d, v%d" % (k + 4, R, R))
        a("v_mul_f32 v%d, %s, v%d" % (k, f32bits(c0), R))
        a("v_mul_f32 v%d, v%d, v%d" % (k + 2, k, k + 4))
        a("v_rcp_f32 v%d, v%d" % (k + 4, k + 4))
        a("v_mul_f32 v%d, %s, v%d" % (k + 2, f32bits(0.044715), k + 2))
    VA = 9
    a("v_lshlrev_b32 v%d, 4, v0" % VA)
    a("s_lshl_b32 s61, s%d, 2" % S_MT)
    a("s_add_u32 s61, s61, s60")
    a("s_mul_i32 s61, s61, %d" % (54 * 4096))
    a("s_mul_i32 s62, s%d, %d" % (S_GRP, 3 * 4096))
    a("s_add_u32 s61, s61, s62")
    a("s_add_u32 s62, s61, 8192")
    a("s_add_u32 s63, s61, 4096")
    T = T0 + 24
    for rb in range(4):
        k = K + rb * 6
        out = T0 + 40 + 8 * (rb & 1)
        for i in range(3):
            G, Uu = acc(2 * i, rb), acc(2 * i + 1, rb)
            t = T + 8 * (i & 1)
            for p in range(2):
                a("v_pk_mul_f32 %s, %s, %s" % (vr(t + 2 * p, 2), vr(G + 2 * p, 2), vr(G + 2 * p, 2)))
            for p in range(2):
                a("v_pk_fma_f32 %s, %s, %s, %s op_sel_hi:[1,0,0]" % (vr(t + 2 * p, 2), vr(t + 2 * p, 2), vr(k + 2, 2), vr(k, 2)))
            for p in range(2):
                a("v_pk_mul_f32 %s, %s, %s" % (vr(t + 2 * p, 2), vr(t + 2 * p, 2), vr(G + 2 * p, 2)))
            for j in range(4):
                a("v_exp_f32 v%d, v%d" % (t + j, t + j))
            for p in range(2):
                a("v_pk_mul_f32 %s, %s, %s" % (vr(t + 4 + 2 * p, 2), vr(G + 2 * p, 2), vr(Uu + 2 * p, 2)))
            for p in range(2):
                a("v_pk_fma_f32 %s, %s, %s, %s op_sel_hi:[1,0,0]" % (vr(t + 2 * p, 2), vr(t + 2 * p, 2), vr(k + 4, 2), vr(k + 4, 2)))
            for j in range(4):
                a("v_rcp_f32 v%d, v%d" % (t + j, t + j))
            for p in range(2):
                a("v_pk_mul_f32 %s, %s, %s" % (vr(t + 4 + 2 * p, 2), vr(t + 4 + 2 * p, 2), vr(t + 2 * p, 2)))
            for p in range(2):
                a("v_cvt_pk_bf16_f32 v%d, v%d, v%d" % (out + 2 * i + p, t + 4 + 2 * p, t + 5 + 2 * p))
        l1, l2 = a.newlabel("K1_FS"), a.newlabel("K1_FS")
        a("s_cmp_lg_u32 s67, 0")
        a("s_cbranch_scc1 %s" % l1)
        a("buffer_store_dwordx4 %s, v%d, s[%d:%d], s61 offen offset:%d %s" % (vr(out, 4), VA, SRD_WS, SRD_WS + 3, rb * 1024, stflag()))
        a("buffer_store_dwordx2 %s, v%d, s[%d:%d], s63 offen offset:%d %s" % (vr(out + 4, 2), VA, SRD_WS, SRD_WS + 3, rb * 1024, stflag()))
        a("s_branch %s" % l2)
        a.label(l1)
        a("buffer_store_dwordx4 %s, v%d, s[%d:%d], s62 offen offset:%d %s" % (vr(out + 2, 4), VA, SRD_WS, SRD_WS + 3, rb * 1024, stflag()))
        a("buffer_store_dwordx2 %s, v%d, s[%d:%d], s63 offen offset:%d %s" % (vr(out, 2), VA, SRD_WS, SRD_WS + 3, rb * 1024 + 8, stflag()))
        a.label(l2)
    stamp_flush(a, 0, S_WAVE, 4)
    a("s_endpgm")

def epi_q(a, acc, RS):
    K = T0
    for rb in range(4):
        a("v_mov_b32 v%d, v%d" % (K + 4 * rb, RS + rb))
        a("v_mul_f32 v%d, %s, v%d" % (K + 4 * rb + 2, f32bits(LOG2E), RS + rb))
    VA = 9
    a("v_lshlrev_b32 v%d, 4, v14" % VA)
    a("v_bfe_u32 v10, v0, 4, 1")
    a("v_lshl_add_u32 v%d, v10, 9, v%d" % (VA, VA))
    a("v_lshrrev_b32 v10, 5, v0")
    a("v_lshl_add_u32 v%d, v10, 3, v%d" % (VA, VA))
    a("s_lshl_b32 s61, s%d, 2" % S_MT)
    a("s_add_u32 s61, s61, s60")
    a("s_mul_i32 s61, s61, %d" % (40 * 2048))
    a("s_mul_i32 s62, s%d, %d" % (S_GRP, 10 * 2048))
    a("s_add_u32 s61, s61, s62")
    a("s_mul_i32 s62, s67, %d" % (5 * 2048))
    a("s_add_u32 s61, s61, s62")
    a("s_add_u32 s61, s61, %d" % WS_PQ)
    a("s_mov_b32 s64, %s" % f32bits(1e-6))
    a("s_mov_b32 s65, %s" % f32bits(1e-6))
    T = T0 + 16
    n = 0
    for t in range(5):
        a("s_add_u32 s62, s61, %d" % (t * 2048))
        for rb in range(4):
            D = acc(t, rb); k = K + 4 * rb
            out = T0 + 32 + 2 * (n & 7); n += 1
            for p in range(2):
                a("v_pk_mul_f32 %s, %s, %s op_sel_hi:[1,0]" % (vr(T + 2 * p, 2), vr(D + 2 * p, 2), vr(k + 2, 2)))
            for p in range(2):
                a("v_pk_fma_f32 %s, %s, %s, s[64:65] op_sel_hi:[1,0,1]" % (vr(T + 4 + 2 * p, 2), vr(D + 2 * p, 2), vr(k, 2)))
            for j in range(4):
                a("v_exp_f32 v%d, v%d clamp" % (T + j, T + j))
            for j in range(4):
                a("v_max_f32 v%d, s64, v%d" % (T + 4 + j, T + 4 + j))
            for p in range(2):
                a("v_pk_add_f32 %s, %s, %s" % (vr(T + 2 * p, 2), vr(T + 2 * p, 2), vr(T + 4 + 2 * p, 2)))
            for p in range(2):
                a("v_cvt_pk_bf16_f32 v%d, v%d, v%d" % (out + p, T + 2 * p, T + 2 * p + 1))
            a("buffer_store_dwordx2 %s, v%d, s[%d:%d], s62 offen offset:%d %s" % (vr(out, 2), VA, SRD_WS, SRD_WS + 3, (rb >> 1) * 1024 + (rb & 1) * 256, stflag()))
    stamp_flush(a, 0, S_WAVE, 4)
    a("s_endpgm")

FRL = 0
def epi_kv(a, acc):
    RR = T0 + 40
    a("v_lshl_add_u32 v9, v15, 4, s61")
    for rb in range(4):
        a("ds_read_b128 %s, v9 offset:%d" % (vr(RR + 4 * rb, 4), 1024 + rb * 64))
    VA = 9
    a("s_lshl_b32 s61, s60, 11")
    a("s_mul_i32 s62, s67, %d" % (3 * 8192))
    a("s_add_u32 s61, s61, s62")
    a("v_lshl_add_u32 v10, v0, 4, s61")
    a("s_lshl_b32 s62, s67, 14")
    a("v_add_u32 v11, s62, v10")
    a("s_mov_b32 s64, %s" % f32bits(1e-6))
    a("s_mov_b32 s65, %s" % f32bits(1e-6))
    a("s_mov_b32 s62, %s" % f32bits(LOG2E))
    a("s_mov_b32 s63, %s" % f32bits(LOG2E))
    a("s_cmp_eq_u32 s67, 0")
    a("s_cselect_b64 s[68:69], -1, 0")
    a("s_waitcnt lgkmcnt(0)")
    T = T0 + 16
    po = [0, 1, 2, 5, 6]
    n = 0
    def tile(t, isv):
        nonlocal n
        for R in range(2):
            out = T0 + 4 * (n & 3); n += 1
            for h in range(2):
                rb = 2 * R + h
                D = acc(t, rb); rr = RR + 4 * rb
                if isv:
                    for p in range(2):
                        a("v_pk_mul_f32 %s, %s, %s" % (vr(T + 2 * p, 2), vr(D + 2 * p, 2), vr(rr + 2 * p, 2)))
                else:
                    for p in range(2):
                        a("v_pk_mul_f32 %s, %s, %s" % (vr(T + 8 + 2 * p, 2), vr(D + 2 * p, 2), vr(rr + 2 * p, 2)))
                    for p in range(2):
                        a("v_pk_mul_f32 %s, %s, s[62:63]" % (vr(T + 2 * p, 2), vr(T + 8 + 2 * p, 2)))
                    for p in range(2):
                        a("v_pk_add_f32 %s, %s, s[64:65]" % (vr(T + 4 + 2 * p, 2), vr(T + 8 + 2 * p, 2)))
                    for j in range(4):
                        a("v_exp_f32 v%d, v%d clamp" % (T + j, T + j))
                    for j in range(4):
                        a("v_max_f32 v%d, s64, v%d" % (T + 4 + j, T + 4 + j))
                    for p in range(2):
                        a("v_pk_add_f32 %s, %s, %s" % (vr(T + 2 * p, 2), vr(T + 2 * p, 2), vr(T + 4 + 2 * p, 2)))
                for p in range(2):
                    a("v_cvt_pk_bf16_f32 v%d, v%d, v%d" % (out + 2 * h + p, T + 2 * p, T + 2 * p + 1))
            a("ds_write_b128 v%d, %s offset:%d" % (11 if t == 2 else 10, vr(out, 4), FRL + po[t] * 8192 + R * 1024))
    tile(3, True); tile(4, True); tile(0, False); tile(1, False)
    a("s_cmp_lg_u32 s67, 0")
    a("s_cbranch_scc1 K1_KV_T2V")
    tile(2, False)
    a("s_branch K1_KV_T2E")
    a.label("K1_KV_T2V"); a.flush()
    tile(2, True)
    a.label("K1_KV_T2E"); a.flush()
    a("s_waitcnt lgkmcnt(0)")
    a("s_barrier")
    gen_kvjob(a)

def gen_kvjob(a):
    w = S_WAVE
    a("v_lshlrev_b32 v2, 4, v0")
    a("s_sub_u32 s61, s%d, 5" % w)
    a("s_add_u32 s62, s61, 1")
    a("s_cmp_lt_u32 s%d, 5" % w)
    a("s_cselect_b32 s63, s%d, s61" % w)
    a("s_cselect_b32 s64, s%d, s62" % w)
    a("s_cselect_b32 s65, s%d, s62" % w)
    a("s_cselect_b32 s66, s%d, s61" % w)
    a("s_cselect_b32 s70, 1, 0")
    a("s_add_u32 s71, s%d, 3" % w)
    a("s_sub_u32 s72, 4, s%d" % w)
    a("s_lshl_b32 s74, s%d, 6" % S_MT)
    a("s_lshl_b32 s75, s%d, 3" % S_GRP)
    a("s_add_u32 s74, s74, s75")
    a("s_lshl_b32 s74, s74, 11")
    a("s_add_u32 s74, s74, %d" % WS_KVP)
    a("v_mov_b32 v13, %d" % OOB)
    A0, B0, D = 16, 48, 80
    def job(sa, sb, zflag, tag):
        a("s_lshl_b32 s76, s%d, 13" % sa)
        a("v_add_u32 v3, s76, v2")
        a("s_lshl_b32 s77, s%d, 13" % sb)
        a("s_add_u32 s77, s77, %d" % (5 * 8192))
        a("v_add_u32 v4, s77, v2")
        for k in range(8):
            a("ds_read_b128 %s, v3 offset:%d" % (vr(A0 + 4 * k, 4), FRL + k * 1024))
        for k in range(8):
            a("ds_read_b128 %s, v4 offset:%d" % (vr(B0 + 4 * k, 4), FRL + k * 1024))
        a("s_lshl_b32 s77, s%d, 4" % sb)
        a("v_add_u32 v6, s77, v14")
        divmod_const(a, 7, 8, 6, 20, 128)
        a("v_cmp_le_u32 vcc, 10, v8")
        a("v_cndmask_b32 v9, 0, 1, vcc")
        a("v_mul_u32_u24 v10, 10, v9")
        a("v_sub_u32 v10, v8, v10")
        a("v_lshrrev_b32 v11, 2, v10")
        a("v_lshlrev_b32 v11, 3, v11")
        a("v_lshl_add_u32 v11, v9, 2, v11")
        a("v_and_b32 v12, 3, v10")
        a("v_add_u32 v11, v11, v12")
        if zflag:
            lab = "K1_KVJ_NZ" + tag
            a("s_cmp_eq_u32 s%d, 0" % zflag)
            a("s_cbranch_scc1 %s" % lab)
            a("s_waitcnt lgkmcnt(0)")
            for r in range(32):
                a("v_mov_b32 v%d, 0x3f803f80" % (B0 + r))
            a("v_lshrrev_b32 v7, 1, v14")
            a("v_and_b32 v11, 1, v14")
            a("v_lshlrev_b32 v11, 2, v11")
            a("v_add_u32 v11, 18, v11")
            a("v_cmp_gt_u32 vcc, 8, v14")
            a("v_cndmask_b32 v7, 64, v7, vcc")
            a.label(lab)
        a("v_sub_u32 v12, s%d, v7" % sa)
        a("v_cmp_gt_u32 vcc, 2, v12")
        a("v_lshl_add_u32 v12, v7, 1, v12")
        a("v_lshl_add_u32 v11, v12, 6, v11")
        a("v_and_b32 v12, 1, v15")
        a("v_lshl_add_u32 v11, v12, 5, v11")
        a("v_lshlrev_b32 v11, 5, v11")
        a("v_lshrrev_b32 v12, 1, v15")
        a("v_lshl_add_u32 v11, v12, 4, v11")
        a("v_cndmask_b32 v11, v13, v11, vcc")
        a("s_waitcnt lgkmcnt(0)")
        for k in range(8):
            a("v_mfma_f32_16x16x32_bf16 %s, %s, %s, %s" % (vr(D, 4), vr(A0 + 4 * k, 4), vr(B0 + 4 * k, 4), vr(D, 4) if k else "0"))
        a("buffer_store_dwordx4 %s, v11, s[%d:%d], s74 offen %s" % (vr(D, 4), SRD_WS, SRD_WS + 3, stflag()))
        a.nops(2)
    job(63, 64, 0, "0")
    job(65, 66, 70, "1")
    a("s_cmp_ge_u32 s%d, 2" % w)
    a("s_cbranch_scc1 K1_KVJ_DONE")
    job(71, 72, 0, "2")
    a.label("K1_KVJ_DONE")
    stamp_flush(a, 0, S_WAVE, 4)
    a("s_endpgm")

def gen_packer(a):
    pst = CFG.get("pk_st", "sc1")
    a("s_sub_u32 s60, s29, 4")
    a("s_lshl_b32 s60, s60, 2")
    a("s_add_u32 s60, s60, s52")
    a("s_mul_i32 s60, s60, 12")
    a("s_add_u32 s60, s60, s%d" % S_WAVE)
    a("s_cmp_lg_u32 s60, 0")
    a("s_cbranch_scc1 K1_PK_NOTAG")
    srd(a, SRD_DBG, S_DBG, 256)
    a("s_memrealtime s[72:73]")
    a("s_waitcnt lgkmcnt(0)")
    a("s_or_b32 s72, s72, 1")
    a("v_mov_b32 v2, s72")
    a("s_mov_b64 exec, 1")
    a("buffer_store_dword v2, off, s[%d:%d], 0 sc0 sc1" % (SRD_DBG, SRD_DBG + 3))
    a("s_mov_b64 exec, -1")
    a.label("K1_PK_NOTAG")
    srd(a, SRD_W0, S_WD, 1728 * 1280)
    srd(a, SRD_W1, S_WO, 640 * 1280)
    a("s_mul_i32 s61, s%d, 10240" % S_WAVE)
    for i in range(10):
        a("v_add_u32 v2, %d, v0" % (64 * i))
        divmod_const(a, 20 + i, 3, 2, 20, 640)
        a("v_lshlrev_b32 v%d, 4, v3" % (30 + i))
    a("v_lshrrev_b32 v2, 4, v0")
    a("v_bfe_u32 v3, v0, 2, 2")
    a("v_lshl_add_u32 v2, v2, 3, v3")
    a("v_mul_u32_u24 v2, 320, v2")
    a("v_and_b32 v3, 3, v0")
    a("v_lshl_add_u32 v2, v3, 3, v2")
    a("v_add_u32 v10, s61, v2")
    a("v_lshlrev_b32 v11, 4, v0")
    a("s_cmp_ge_u32 s60, 64")
    a("s_cbranch_scc1 K1_PK_NOPOI")
    for r in range(4):
        a("v_mov_b32 v%d, -1" % (12 + r))
    a("s_lshl_b32 s62, s60, 10")
    a("s_add_u32 s62, s62, %d" % WS_KVF)
    a("buffer_store_dwordx4 v[12:15], v11, s[%d:%d], s62 offen sc0 sc1" % (SRD_WS, SRD_WS + 3))
    a.label("K1_PK_NOPOI")
    a("s_mov_b32 s70, 0")
    a.label("K1_PK_LOOP")
    a("s_lshr_b32 s62, s60, 2")
    a("s_and_b32 s63, s60, 3")
    a("s_mul_i32 s64, s63, 320")
    a("s_cmp_ge_u32 s62, 54")
    a("s_cbranch_scc1 K1_PK_O")
    a("s_mul_i32 s65, s62, %d" % (32 * 1280))
    a("s_add_u32 s64, s64, s65")
    for i in range(10):
        r = 20 + i
        a("v_and_b32 v2, 3, v%d" % r)
        a("v_lshrrev_b32 v3, 3, v%d" % r)
        a("v_lshl_add_u32 v2, v3, 2, v2")
        a("v_bfe_u32 v3, v%d, 2, 1" % r)
        a("v_lshl_add_u32 v2, v3, 4, v2")
        a("v_mul_u32_u24 v2, 1280, v2")
        a("v_add_u32 v2, v2, v%d" % (30 + i))
        a("s_add_u32 m0, s61, %d" % (i * 1024))
        a("buffer_load_dwordx4 v2, s[%d:%d], s64 offen lds" % (SRD_W0, SRD_W0 + 3))
    a("s_branch K1_PK_GO")
    a.label("K1_PK_O"); a.flush()
    a("s_sub_u32 s65, s62, 54")
    a("s_mul_i32 s66, s65, 52")
    a("s_lshr_b32 s66, s66, 8")
    a("s_mul_i32 s67, s66, 5")
    a("s_sub_u32 s67, s65, s67")
    a("s_lshl_b32 s67, s67, 4")
    a("s_mul_i32 s66, s66, %d" % (160 * 1280))
    a("s_add_u32 s64, s64, s66")
    for i in range(10):
        r = 20 + i
        a("v_and_b32 v2, 15, v%d" % r)
        a("v_add_u32 v2, s67, v2")
        divmod_const(a, 3, 4, 2, 10, 80)
        a("v_mul_u32_u24 v3, 20, v3")
        a("v_add_u32 v3, v3, v4")
        a("v_lshrrev_b32 v4, 4, v%d" % r)
        a("v_mul_u32_u24 v4, 10, v4")
        a("v_add_u32 v3, v3, v4")
        a("v_mul_u32_u24 v2, 1280, v3")
        a("v_add_u32 v2, v2, v%d" % (30 + i))
        a("s_add_u32 m0, s61, %d" % (i * 1024))
        a("buffer_load_dwordx4 v2, s[%d:%d], s64 offen lds" % (SRD_W1, SRD_W1 + 3))
    a.label("K1_PK_GO"); a.flush()
    def stores(base, sreg):
        for c in range(10):
            off = (c // 5) * 74 * 5120 + (c % 5) * 1024
            a("s_add_u32 s66, s%d, %d" % (sreg, off))
            a("buffer_store_dwordx4 %s, v11, s[%d:%d], s66 offen %s" % (vr(base + 4 * c, 4), SRD_WS, SRD_WS + 3, pst))
    def trreads(base):
        for c in range(10):
            a("ds_read_b64_tr_b16 %s, v10 offset:%d" % (vr(base + 4 * c, 2), c * 32))
            a("ds_read_b64_tr_b16 %s, v10 offset:%d" % (vr(base + 2 + 4 * c, 2), c * 32 + 4 * 320))
    a("s_lshl_b32 s65, s63, 1")
    a("s_mul_i32 s65, s65, 74")
    a("s_add_u32 s65, s65, s62")
    a("s_mul_i32 s65, s65, 5120")
    a("s_add_u32 s65, s65, %d" % WS_W2P)
    a("s_cmp_eq_u32 s70, 1")
    a("s_cbranch_scc1 K1_PK_SECOND")
    a("s_waitcnt vmcnt(0)")
    trreads(40)
    a("s_mov_b32 s71, s65")
    a("s_mov_b32 s70, 1")
    a("s_add_u32 s60, s60, 192")
    a("s_waitcnt lgkmcnt(0)")
    a("s_cmp_lt_u32 s60, 296")
    a("s_cbranch_scc1 K1_PK_LOOP")
    stores(40, 71)
    a("s_branch K1_PK_FIN")
    a.label("K1_PK_SECOND"); a.flush()
    stores(40, 71)
    a("s_waitcnt vmcnt(10)")
    trreads(80)
    a("s_waitcnt lgkmcnt(0)")
    stores(80, 65)
    a.label("K1_PK_FIN"); a.flush()
    stamp_flush(a, 0, S_WAVE, 1)
    a("s_endpgm")
```

```python
from asmlib import *
import k1
from k1 import stamp, stamp_flush
from k1 import WS_H, WS_PQ, WS_W2P, WS_KVP, WS_KVF, WS_END, OOB, srd, f32bits

K2_LDS = 4 * 3 * 5120

S_X, S_OUT, S_DBG, S_WS = 4, 18, 20, 22
SRD_X, SRD_OUT, SRD_DBG, SRD_WS = 32, 36, 40, 48
S_W, S_MT, S_NT = 24, 25, 26
S_HB, S_WB, S_PB, S_KB, S_WO = 52, 53, 54, 55, 56
ACC = 16
DT = [96, 112]
V_A = 2
V_B = 6
V_P = 7
V_POLL = 9
V_XO = 10
V_T = 11

class Sched:
    def __init__(self, a, slots):
        self.a = a
        self.free = list(slots)
        self.issued = 0
        self.pos = {}
        self.reg = {}
    def alloc(self, name):
        r = self.free.pop(0)
        self.reg[name] = r
        return r
    def release(self, name):
        self.free.append(self.reg.pop(name))
    def wait(self, names):
        last = max(self.pos[n] for n in names)
        n = self.issued - 1 - last
        self.a("s_waitcnt vmcnt(%d)" % min(n, 63))

def gen_k2(a0, name, cfg):
    class Flt:
        active = False
        def __call__(self, t):
            if self.active:
                if cfg.get("k2_nomfma") and t.startswith("v_mfma"): return
                if cfg.get("k2_noload") and t.startswith("buffer_load_dwordx4"): return
                if cfg.get("k2_novalu") and t.startswith("v_") and not t.startswith(("v_mfma", "v_readfirst")): return
            a0(t)
        def __getattr__(self, n): return getattr(a0, n)
    a = Flt()
    a.raw(".globl %s\n.p2align 8\n.type %s,@function\n%s:" % (name, name, name))
    a.flush()
    a("s_cmp_ge_u32 s2, 256")
    a("s_cbranch_scc1 K2_END")
    a("s_load_dwordx2 s[4:5], s[0:1], 0")
    a("s_load_dwordx2 s[18:19], s[0:1], 56")
    a("s_load_dwordx4 s[20:23], s[0:1], 64")
    a("v_lshrrev_b32 v1, 6, v0")
    a("v_and_b32 v0, 63, v0")
    a("v_readfirstlane_b32 s%d, v1" % S_W)
    a("s_and_b32 s29, s2, 7")
    a("s_lshr_b32 s30, s2, 3")
    if cfg.get("k2_xm", 8) == 8:
        a("s_lshl_b32 s31, s29, 2")
        a("s_and_b32 s27, s30, 3")
        a("s_add_u32 s%d, s31, s27" % S_MT)
        a("s_lshr_b32 s%d, s30, 2" % S_NT)
    else:
        a("s_and_b32 s31, s29, 3")
        a("s_lshl_b32 s31, s31, 3")
        a("s_and_b32 s27, s30, 7")
        a("s_add_u32 s%d, s31, s27" % S_MT)
        a("s_lshr_b32 s31, s29, 2")
        a("s_lshl_b32 s31, s31, 2")
        a("s_lshr_b32 s27, s30, 3")
        a("s_add_u32 s%d, s31, s27" % S_NT)
    a("v_lshlrev_b32 v%d, 4, v0" % V_B)
    for rb in range(4):
        a("s_xor_b32 s27, s%d, %d" % (S_W, rb))
        a("s_lshl_b32 s27, s27, 10")
        a("v_add_u32 v%d, s27, v%d" % (V_A + rb, V_B))
    a("s_and_b32 s27, s%d, 1" % S_W)
    a("s_lshl_b32 s27, s27, 8")
    a("v_xor_b32 v%d, s27, v%d" % (V_T, V_B))
    a("s_lshr_b32 s27, s%d, 1" % S_W)
    a("s_lshl_b32 s28, s27, 10")
    a("v_add_u32 v%d, s28, v%d" % (V_P, V_T))
    a("s_xor_b32 s28, s28, 1024")
    a("v_add_u32 v%d, s28, v%d" % (V_P + 1, V_T))
    a("s_mul_i32 s%d, s%d, %d" % (S_HB, S_MT, 54 * 4096))
    a("s_mul_i32 s%d, s%d, %d" % (S_WB, S_NT, 74 * 5120))
    a("s_add_u32 s%d, s%d, %d" % (S_WB, S_WB, WS_W2P))
    a("s_mul_i32 s27, s%d, %d" % (S_W, 5 * 5120))
    a("s_add_u32 s%d, s%d, s27" % (S_WO, S_WB))
    a("s_add_u32 s%d, s%d, %d" % (S_WO, S_WO, 54 * 5120))
    a("s_and_b32 s27, s%d, 1" % S_W)
    a("s_add_u32 s27, s27, 52")
    a("s_lshl_b32 s28, s27, 12")
    a("s_add_u32 s57, s%d, s28" % S_HB)
    a("s_mul_i32 s28, s27, 5120")
    a("s_add_u32 s58, s%d, s28" % S_WB)
    a("s_mul_i32 s27, s%d, %d" % (S_W, 13 * 4096))
    a("s_add_u32 s%d, s%d, s27" % (S_HB, S_HB))
    a("s_mul_i32 s27, s%d, %d" % (S_W, 13 * 5120))
    a("s_add_u32 s%d, s%d, s27" % (S_WB, S_WB))
    a("s_mul_i32 s%d, s%d, %d" % (S_PB, S_MT, 40 * 2048))
    a("s_mul_i32 s27, s%d, %d" % (S_W, 10 * 2048))
    a("s_add_u32 s%d, s%d, s27" % (S_PB, S_PB))
    a("s_add_u32 s%d, s%d, %d" % (S_PB, S_PB, WS_PQ))
    a("s_lshl_b32 s%d, s%d, 14" % (S_KB, S_W))
    a("s_add_u32 s%d, s%d, %d" % (S_KB, S_KB, WS_KVF))
    a("s_lshl_b32 s59, s%d, 6" % S_W)
    a("v_and_b32 v%d, 15, v0" % V_T)
    a("v_mul_u32_u24 v%d, 1280, v%d" % (V_XO, V_T))
    a("v_lshrrev_b32 v%d, 4, v0" % V_T)
    a("v_lshl_add_u32 v%d, v%d, 3, v%d" % (V_XO, V_T, V_XO))
    a("s_lshl_b32 s27, s%d, 2" % S_MT)
    a("s_add_u32 s27, s27, s%d" % S_W)
    a("s_mul_i32 s27, s27, %d" % (16 * 1280))
    a("s_mul_i32 s28, s%d, 160" % S_NT)
    a("s_add_u32 s60, s27, s28")
    a("s_waitcnt lgkmcnt(0)")
    stamp(a, 0)
    srd(a, SRD_WS, S_WS, WS_END)
    srd(a, SRD_X, S_X, 2048 * 1280)
    srd(a, SRD_OUT, S_OUT, 2048 * 1280)
    a("s_cmp_lt_u32 s2, 64")
    a("s_cselect_b32 s61, 1, 0")
    a("s_cmp_eq_u32 s%d, 0" % S_W)
    a("s_cselect_b32 s61, s61, 0")
    a("s_cmp_eq_u32 s61, 0")
    a("s_cbranch_scc1 K2_NORED1")
    a("s_lshr_b32 s62, s2, 1")
    a("s_and_b32 s62, s62, 3")
    a("s_and_b32 s63, s2, 1")
    a("s_add_u32 s63, s63, s62")
    a("s_lshl_b32 s63, s63, 4")
    a("s_mul_i32 s62, s62, 20")
    a("s_sub_i32 s63, s63, s62")
    a("v_lshrrev_b32 v%d, 5, v0" % V_T)
    a("v_lshlrev_b32 v%d, 2, v%d" % (V_T, V_T))
    a("v_add_u32 v%d, s63, v%d" % (V_T, V_T))
    a("v_bfe_u32 v%d, v0, 3, 2" % (V_T + 1))
    a("v_and_b32 v%d, 3, v0" % (V_T + 2))
    a("v_lshl_add_u32 v%d, v%d, 2, v%d" % (V_T + 1, V_T + 1, V_T + 2))
    a("v_cmp_ge_u32 s[64:65], 10, v%d" % (V_T + 1))
    a("v_lshlrev_b32 v%d, 5, v0" % (V_T + 1))
    a("v_mov_b32 v%d, %d" % (V_T + 2, OOB))
    a("v_cmp_gt_u32 vcc, 20, v%d" % V_T)
    a("s_and_b64 vcc, vcc, s[64:65]")
    a("v_cndmask_b32 v%d, v%d, v%d, vcc" % (V_T + 3, V_T + 2, V_T + 1))
    a("v_add_u32 v%d, 8, v%d" % (V_T, V_T))
    a("v_cmp_gt_u32 vcc, 20, v%d" % V_T)
    a("s_and_b64 vcc, vcc, s[64:65]")
    a("v_cndmask_b32 v%d, v%d, v%d, vcc" % (V_T + 4, V_T + 2, V_T + 1))
    a("s_lshl_b32 s62, s2, 11")
    a("s_add_u32 s62, s62, %d" % WS_KVP)
    for mt in range(8):
        a("s_add_u32 s63, s62, %d" % (mt * 64 * 2048))
        a("buffer_load_dwordx4 %s, v%d, s[%d:%d], s63 offen" % (vr(ACC + 8 * mt, 4), V_T + 3, SRD_WS, SRD_WS + 3))
        a("buffer_load_dwordx4 %s, v%d, s[%d:%d], s63 offen offset:16" % (vr(ACC + 8 * mt + 4, 4), V_T + 4, SRD_WS, SRD_WS + 3))
    a.label("K2_NORED1")
    if cfg.get("k2_pf", 0):
        a("v_lshlrev_b32 v%d, 7, v0" % V_T)
        a("v_mov_b32 v%d, %d" % (V_T + 1, OOB))
        a("v_cmp_gt_u32 vcc, 54, v0")
        a("v_cndmask_b32 v%d, v%d, v%d, vcc" % (V_T + 2, V_T + 1, V_T))
        a("v_cmp_gt_u32 vcc, 20, v0")
        a("v_cndmask_b32 v%d, v%d, v%d, vcc" % (V_T + 1, V_T + 1, V_T))
        a("s_lshl_b32 s62, s%d, 2" % S_NT)
        a("s_add_u32 s62, s62, s%d" % S_W)
        a("s_mul_i32 s63, s62, %d" % (54 * 128))
        a("s_mul_i32 s64, s%d, %d" % (S_MT, 54 * 4096))
        a("s_add_u32 s63, s63, s64")
        a("buffer_load_dword v%d, v%d, s[%d:%d], s63 offen" % (V_POLL, V_T + 2, SRD_WS, SRD_WS + 3))
        a("s_mul_i32 s63, s62, %d" % (20 * 128))
        a("s_mul_i32 s64, s%d, %d" % (S_MT, 40 * 2048))
        a("s_add_u32 s63, s63, s64")
        a("s_add_u32 s63, s63, %d" % WS_PQ)
        a("buffer_load_dword v%d, v%d, s[%d:%d], s63 offen" % (V_POLL, V_T + 1, SRD_WS, SRD_WS + 3))
    slots = list(range(128, 256, 4)) + list(range(96, 128, 4))
    S = Sched(a, slots)
    loads = []
    def L(name, fn): loads.append((name, fn))
    def hstep_loads(i):
        half = (i == 13)
        nrb = 2 if half else 4
        def pre():
            if half:
                a("s_mov_b32 s62, s57"); a("s_mov_b32 s63, s58")
            else:
                a("s_add_u32 s62, s%d, %d" % (S_HB, i * 4096)); a("s_add_u32 s63, s%d, %d" % (S_WB, i * 5120))
            a("s_add_u32 s64, s63, 4096")
        first = True
        order = [("B", 0), ("A", 0), ("A", 1), ("B", 1), ("A", 2), ("B", 2), ("A", 3), ("B", 3), ("B", 4)]
        for kind, j in order:
            if kind == "A" and j >= nrb:
                continue
            nm = "H%d%s%d" % (i, kind, j)
            def fn(r, kind=kind, j=j, first=first):
                if first: pre()
                if kind == "A":
                    a("buffer_load_dwordx4 %s, v%d, s[%d:%d], s62 offen" % (vr(r, 4), V_A + j, SRD_WS, SRD_WS + 3))
                elif j < 4:
                    a("buffer_load_dwordx4 %s, v%d, s[%d:%d], s63 offen offset:%d" % (vr(r, 4), V_B, SRD_WS, SRD_WS + 3, j * 1024))
                else:
                    a("buffer_load_dwordx4 %s, v%d, s[%d:%d], s64 offen" % (vr(r, 4), V_B, SRD_WS, SRD_WS + 3))
            L(nm, fn)
            first = False
    def pq_load(b, R):
        def fn(r):
            a("s_add_u32 s62, s%d, %d" % (S_PB, b * 2048))
            a("buffer_load_dwordx4 %s, v%d, s[%d:%d], s62 offen" % (vr(r, 4), V_P + R, SRD_WS, SRD_WS + 3))
        L("P%d_%d" % (b, R), fn)
    def kv_load(f):
        def fn(r):
            a("s_add_u32 s62, s%d, %d" % (S_KB, f * 1024))
            a("buffer_load_dwordx4 %s, v%d, s[%d:%d], s62 offen %s" % (vr(r, 4), V_B, SRD_WS, SRD_WS + 3, cfg.get("k2_kvflag", "sc1")))
        L("K%d" % f, fn)
    def wo_load(phi, cb):
        def fn(r):
            a("s_add_u32 s62, s%d, %d" % (S_WO, phi * 5120 + cb * 1024))
            a("buffer_load_dwordx4 %s, v%d, s[%d:%d], s62 offen" % (vr(r, 4), V_B, SRD_WS, SRD_WS + 3))
        L("W%d_%d" % (phi, cb), fn)
    def x_load(cb):
        def fn(r):
            a("buffer_load_dwordx2 %s, v%d, s[%d:%d], s60 offen offset:%d" % (vr(r, 2), V_XO, SRD_X, SRD_X + 3, cb * 32))
        L("X%d" % cb, fn)

    NH1 = cfg.get("k2_nh1", 8)
    POLL_AT = cfg.get("k2_poll", 7)
    blocks = []
    for i in range(NH1):
        hstep_loads(i); blocks.append(("H", i))
    L("CHECK", None)
    seen = set()
    gdone = 0
    hnext = NH1
    for hh in range(8):
        b0 = 5 * (hh >> 2) + (hh & 3)
        for b in (b0, b0 + 1):
            if b not in seen:
                seen.add(b)
                pq_load(b, 0); pq_load(b, 1)
        kv_load(2 * hh); kv_load(2 * hh + 1)
        blocks.append(("OA", hh))
        if gdone < 5 and (16 * gdone + 15) // 10 <= hh - 1:
            for cb in range(5):
                wo_load(gdone, cb)
            blocks.append(("G", gdone))
            gdone += 1
        elif hnext < 14:
            hstep_loads(hnext); blocks.append(("H", hnext)); hnext += 1
        blocks.append(("OB", hh))
    while gdone < 5 or hnext < 14:
        if hnext < 14:
            hstep_loads(hnext); blocks.append(("H", hnext)); hnext += 1
        if gdone < 5:
            for cb in range(5):
                wo_load(gdone, cb)
            blocks.append(("G", gdone))
            gdone += 1
    for cb in range(5):
        x_load(cb)
    lp = [0]
    reserve = [0]
    dt_reserved = [False]
    def try_issue(maxn):
        n = 0
        while lp[0] < len(loads) and n < maxn:
            nm, fn = loads[lp[0]]
            if nm == "CHECK":
                stamp(a, 2)
                lp[0] += 1
                dt_reserved[0] = True
                reserve[0] = cfg.get("k2_resv", 8)
                continue
            avail = [r for r in S.free if not (dt_reserved[0] and 96 <= r < 128)]
            if len(avail) <= reserve[0]:
                break
            r = avail[0]
            S.free.remove(r); S.reg[nm] = r
            fn(r)
            S.pos[nm] = S.issued; S.issued += 1; lp[0] += 1
            n += 1
        return n
    a.active = True
    try_issue(cfg.get("k2_pro", 27))
    n0 = S.issued
    a.active = False
    a("s_cmp_eq_u32 s61, 0")
    a("s_cbranch_scc1 K2_NORED2")
    a("s_waitcnt vmcnt(%d)" % n0)
    for mt in range(1, 8):
        for j in range(0, 8, 2):
            a("v_pk_add_f32 %s, %s, %s" % (vr(ACC + j, 2), vr(ACC + j, 2), vr(ACC + 8 * mt + j, 2)))
    for j in range(4):
        a("v_cvt_pk_bf16_f32 v%d, v%d, v%d" % (ACC + 8 + j, ACC + 2 * j, ACC + 2 * j + 1))
    a("s_lshl_b32 s70, s2, 10")
    a("s_add_u32 s70, s70, %d" % WS_KVF)
    a("buffer_store_dwordx4 %s, v%d, s[%d:%d], s70 offen sc0 sc1" % (vr(ACC + 8, 4), V_B, SRD_WS, SRD_WS + 3))
    a.label("K2_NORED2")
    a.nops(2)
    a.active = True
    if k1.STAMP: a("s_memtime s[96:97]")
    def acc(rb, cb): return ACC + (rb * 5 + cb) * 4
    started = set()
    def mf(rb, cb, A, B):
        c = vr(acc(rb, cb), 4) if (rb, cb) in started else "0"
        started.add((rb, cb))
        return "v_mfma_f32_16x16x32_bf16 %s, %s, %s, %s" % (vr(acc(rb, cb), 4), vr(A, 4), vr(B, 4), c)
    opiece = {}
    dsel = [0]
    for kind, arg in blocks:
        if kind == "H":
            i = arg
            nrb = 2 if i == 13 else 4
            names = ["H%dA%d" % (i, j) for j in range(nrb)] + ["H%dB%d" % (i, j) for j in range(5)]
            while any(n not in S.pos for n in names):
                assert try_issue(1) or all(n in S.pos for n in names), "deadlock in schedule H%d" % i
            S.wait(names)
            if i == 0: stamp(a, 1)
            k = 0
            for cb in range(5):
                for rb in range(nrb):
                    a(mf(rb, cb, S.reg["H%dB%d" % (i, cb)], S.reg["H%dA%d" % (i, rb)]))
                    k += 1
                    if k % 2 == 0:
                        try_issue(1)
                S.release("H%dB%d" % (i, cb))
            for j in range(nrb):
                S.release("H%dA%d" % (i, j))
        elif kind == "OA":
            hh = arg
            b0 = 5 * (hh >> 2) + (hh & 3)
            names = ["P%d_%d" % (b, R) for b in (b0, b0 + 1) for R in range(2)] + ["K%d" % (2 * hh), "K%d" % (2 * hh + 1)]
            while any(n not in S.pos for n in names):
                assert try_issue(1) or all(n in S.pos for n in names), "deadlock in schedule O%d" % hh
            S.wait(names)
            k0, k1r = S.reg["K%d" % (2 * hh)], S.reg["K%d" % (2 * hh + 1)]
            lchk, lok = a.newlabel("K2_KC"), a.newlabel("K2_KO")
            a("s_mov_b32 s66, 0")
            a.label(lchk)
            a("v_cmp_eq_u32 vcc, -1, v%d" % k0)
            a("v_cmp_eq_u32 s[68:69], -1, v%d" % k1r)
            a("s_or_b64 vcc, vcc, s[68:69]")
            a("s_cbranch_vccz %s" % lok)
            a("s_add_u32 s66, s66, 1")
            a("s_cmp_gt_u32 s66, 100000")
            a("s_cbranch_scc1 %s" % lok)
            a("s_sleep 4")
            a("s_add_u32 s70, s%d, %d" % (S_KB, 2 * hh * 1024))
            a("buffer_load_dwordx4 %s, v%d, s[%d:%d], s70 offen sc1" % (vr(k0, 4), V_B, SRD_WS, SRD_WS + 3))
            a("buffer_load_dwordx4 %s, v%d, s[%d:%d], s70 offen offset:1024 sc1" % (vr(k1r, 4), V_B, SRD_WS, SRD_WS + 3))
            a("s_waitcnt vmcnt(0)")
            a("s_branch %s" % lchk)
            a.label(lok)
            for R in range(2):
                assert all(r in S.free for r in range(DT[R], DT[R] + 16, 4)), "D temp busy"
                for i in range(2):
                    a("v_mfma_f32_32x32x16_bf16 %s, %s, %s, %s" % (vr(DT[R], 16), vr(S.reg["K%d" % (2 * hh + i)], 4), vr(S.reg["P%d_%d" % (b0 + i, R)], 4), vr(DT[R], 16) if i else "0"))
            S.release("K%d" % (2 * hh)); S.release("K%d" % (2 * hh + 1))
            S.release("P%d_0" % b0); S.release("P%d_1" % b0)
            if (hh & 3) == 3:
                S.release("P%d_0" % (b0 + 1)); S.release("P%d_1" % (b0 + 1))
            try_issue(4)
        elif kind == "OB":
            hh = arg
            for R in range(2):
                D = DT[R]
                a("v_add_f32 v%d, %s, v%d" % (D + 10, f32bits(1e-6), D + 10))
                a("v_rcp_f32 v%d, v%d" % (D + 10, D + 10))
                for j in range(0, 10, 2):
                    a("v_pk_mul_f32 %s, %s, %s op_sel_hi:[1,0]" % (vr(D + j, 2), vr(D + j, 2), vr(D + 10, 2)))
                for j in range(5):
                    d = 5 * hh + j
                    key = (R, d // 4)
                    if key not in opiece:
                        avail = [r for r in S.free if not (96 <= r < 128)]
                        assert avail, "no slot for o piece"
                        S.free.remove(avail[0]); opiece[key] = avail[0]
                    a("v_cvt_pk_bf16_f32 v%d, v%d, v%d" % (opiece[key] + d % 4, D + 2 * j, D + 2 * j + 1))
                try_issue(2)
            if hh == 7:
                dt_reserved[0] = False
                reserve[0] = 0
        elif kind == "G":
            phi = arg
            names = ["W%d_%d" % (phi, cb) for cb in range(5)]
            while any(n not in S.pos for n in names):
                assert try_issue(1) or all(n in S.pos for n in names), "deadlock in schedule G%d" % phi
            for R in range(2):
                for j in range(4):
                    a("v_permlane16_swap_b32 v%d, v%d" % (opiece[(R, 2 * phi)] + j, opiece[(R, 2 * phi + 1)] + j))
            S.wait(names)
            k = 0
            for cb in range(5):
                for rb in range(4):
                    a(mf(rb, cb, S.reg["W%d_%d" % (phi, cb)], opiece[(rb >> 1, 2 * phi + (rb & 1))]))
                    k += 1
                    if k % 2 == 0:
                        try_issue(1)
                S.release("W%d_%d" % (phi, cb))
            for R in range(2):
                for i in range(2):
                    S.free.append(opiece.pop((R, 2 * phi + i)))
    while lp[0] < len(loads):
        assert try_issue(1)
    a.active = False
    stamp(a, 3)
    if k1.STAMP: a("s_memtime s[98:99]")
    for rb in range(1, 4):
        a("s_xor_b32 s62, s%d, %d" % (S_W, rb))
        a("s_mul_i32 s62, s62, %d" % (3 * 5120))
        a("v_add_u32 v%d, s62, v%d" % (V_T + rb - 1, V_B))
    for rb in range(1, 4):
        for cb in range(5):
            a("ds_write_b128 v%d, %s offset:%d" % (V_T + rb - 1, vr(acc(rb, cb), 4), (rb - 1) * 5120 + cb * 1024))
    a("s_mul_i32 s62, s%d, %d" % (S_W, 3 * 5120))
    a("v_add_u32 v%d, s62, v%d" % (V_T + 3, V_B))
    a("s_waitcnt lgkmcnt(0)")
    a("s_barrier")
    for j in range(3):
        for cb in range(5):
            a("ds_read_b128 %s, v%d offset:%d" % (vr(acc(1 + j, cb), 4), V_T + 3, j * 5120 + cb * 1024))
    S.wait(["X%d" % cb for cb in range(5)])
    a("s_waitcnt lgkmcnt(0)")
    for cb in range(5):
        c = acc(0, cb)
        xr = S.reg["X%d" % cb]
        for j in range(1, 4):
            for p in (0, 2):
                a("v_pk_add_f32 %s, %s, %s" % (vr(c + p, 2), vr(c + p, 2), vr(acc(j, cb) + p, 2)))
        t = acc(1, cb)
        a("v_lshlrev_b32 v%d, 16, v%d" % (t, xr))
        a("v_and_b32 v%d, 0xffff0000, v%d" % (t + 1, xr))
        a("v_lshlrev_b32 v%d, 16, v%d" % (t + 2, xr + 1))
        a("v_and_b32 v%d, 0xffff0000, v%d" % (t + 3, xr + 1))
        for p in (0, 2):
            a("v_pk_add_f32 %s, %s, %s" % (vr(c + p, 2), vr(c + p, 2), vr(t + p, 2)))
        a("v_cvt_pk_bf16_f32 v%d, v%d, v%d" % (xr, c, c + 1))
        a("v_cvt_pk_bf16_f32 v%d, v%d, v%d" % (xr + 1, c + 2, c + 3))
        a("buffer_store_dwordx2 %s, v%d, s[%d:%d], s60 offen offset:%d" % (vr(xr, 2), V_XO, SRD_OUT, SRD_OUT + 3, cb * 32))
    stamp_flush(a, 1, S_W, 4)
    a.label("K2_END"); a.flush()
    a("s_endpgm")
```

```python
from asmlib import *
import math, struct

WS_H = 0
WS_PQ = WS_H + 32 * 54 * 4096
WS_W2P = WS_PQ + 32 * 40 * 2048
WS_KVP = WS_W2P + 8 * 74 * 5120
WS_KVF = WS_KVP + 8 * 64 * 2048
WS_RST = WS_KVF + 65536
WS_CSP = WS_RST + 2048 * 8
CSP_STRIDE = 5376 * 8
WS_FLG = WS_CSP + 8 * CSP_STRIDE
WS_PKF = WS_FLG + 8 * 32 * 128
WS_END = WS_PKF + 16 * 128
OOB = 0x40000000

XSLOT = 32768
XRING = 3
WSLOT = 12288
WRING = 5
WBASE = XSLOT * XRING
UPOFF = 6144
ST_BASE = WBASE + WRING * WSLOT
ST_MEAN = ST_BASE
ST_RSTD = ST_BASE + 1024
ST_COL = ST_BASE + 2048
ST_FLAG = ST_COL + 768
K1_LDS = ST_FLAG + 64

LOG2E = 1.4426950408889634
def f32bits(x):
    return "0x%08x" % struct.unpack("<I", struct.pack("<f", x))[0]

S_X, S_WQKV, S_WO, S_WG, S_WU, S_WD, S_OUT, S_DBG, S_WS = 4, 6, 8, 12, 14, 16, 18, 20, 22
S_WAVE, S_MT, S_GRP, S_LIN = 24, 25, 26, 27
S_XCD, S_IDX, S_I3, S_GI, S_NQ = 29, 30, 52, 53, 54
SRD_X, SRD_W0, SRD_W1, SRD_W2, SRD_WS = 32, 36, 40, 44, 48
SRD_DBG = 56
SRD_ST = 8

STAMP = False
CFG = {}
WS_ST = 16 << 20

def stflag():
    return CFG.get("k1_st", "sc1")

def srd(a, base, ptr, nbytes):
    a("s_mov_b32 s%d, s%d" % (base, ptr))
    a("s_and_b32 s%d, s%d, 0xffff" % (base + 1, ptr + 1))
    a("s_mov_b32 s%d, %d" % (base + 2, nbytes))
    a("s_mov_b32 s%d, 0x20000" % (base + 3))

def divmod_const(a, q, r, x, d, maxx):
    sh = 16
    m = (1 << sh) // d + 1
    assert all((v * m) >> sh == v // d for v in range(maxx)), (d, maxx)
    assert m * maxx < (1 << 32) and m < (1 << 24)
    a("v_mul_u32_u24 v%d, %d, v%d" % (q, m, x))
    a("v_lshrrev_b32 v%d, %d, v%d" % (q, sh, q))
    a("v_mul_u32_u24 v%d, %d, v%d" % (r, d, q))
    a("v_sub_u32 v%d, v%d, v%d" % (r, x, r))

def stamp(a, idx):
    if STAMP:
        a("s_memrealtime s[%d:%d]" % (84 + 2 * idx, 85 + 2 * idx))
def stamp_flush(a, kernel_no, wave_sgpr, n):
    if not STAMP:
        return
    a("s_memrealtime s[100:101]")
    a("s_waitcnt lgkmcnt(0) vmcnt(0)")
    a("s_memrealtime s[%d:%d]" % (84 + 2 * n, 85 + 2 * n))
    a("s_mov_b32 s50, 0x7fffffff")
    a("s_lshl_b32 s82, s2, 4")
    a("s_add_u32 s82, s82, s%d" % wave_sgpr)
    a("s_lshl_b32 s82, s82, 6")
    a("s_add_u32 s82, s82, %d" % (WS_ST + kernel_no * (1 << 20)))
    a("s_waitcnt lgkmcnt(0)")
    a("s_mov_b64 exec, 1")
    for i in range(n + 1):
        a("v_mov_b32 v2, s%d" % (84 + 2 * i))
        a("v_mov_b32 v3, s%d" % (85 + 2 * i))
        a("buffer_store_dwordx2 v[2:3], off, s[48:51], s82 offset:%d" % (8 * i))
        a("s_nop 1")
    if n == 4:
        a("s_sub_u32 s96, s98, s96")
        a("v_mov_b32 v2, s96")
        a("v_mov_b32 v3, 0")
        a("buffer_store_dwordx2 v[2:3], off, s[48:51], s82 offset:56")
        a("s_nop 1")
        a("v_mov_b32 v2, s100")
        a("v_mov_b32 v3, s101")
        a("buffer_store_dwordx2 v[2:3], off, s[48:51], s82 offset:40")

def tl(a):
    if STAMP and CFG.get("tl"):
        a("s_memrealtime s[90:91]")
        a("s_waitcnt lgkmcnt(0)")
        a("s_mov_b32 m0, s94")
        a("s_nop 0")
        a("v_writelane_b32 v167, s90, m0")
        a("s_add_u32 s94, s94, 1")

def red8(a, r):
    a("v_add_f32_dpp v%d, v%d, v%d quad_perm:[1,0,3,2] row_mask:0xf bank_mask:0xf" % (r, r, r))
    a("v_add_f32_dpp v%d, v%d, v%d quad_perm:[2,3,0,1] row_mask:0xf bank_mask:0xf" % (r, r, r))
    a("v_add_f32_dpp v%d, v%d, v%d row_half_mirror row_mask:0xf bank_mask:0xf" % (r, r, r))

def rbf(a, r):
    a("v_cvt_pk_bf16_f32 v%d, v%d, v%d" % (r, r, r))
    a("v_and_b32 v%d, 0xffff0000, v%d" % (r, r))

def gen_k1(a, name):
    a.raw(".globl %s\n.p2align 8\n.type %s,@function\n%s:" % (name, name, name))
    a.flush()
    a("s_cmp_ge_u32 s2, 256")
    a("s_cbranch_scc1 K1_END")
    a("s_load_dwordx16 s[4:19], s[0:1], 0")
    a("s_load_dwordx4 s[20:23], s[0:1], 64")
    a("v_lshrrev_b32 v1, 6, v0")
    a("v_and_b32 v0, 63, v0")
    a("v_readfirstlane_b32 s%d, v1" % S_WAVE)
    a("s_and_b32 s29, s2, 7")
    a("s_lshr_b32 s30, s2, 3")
    a("s_and_b32 s31, s29, 1")
    a("s_lshl_b32 s31, s31, 2")
    a("s_and_b32 s52, s30, 3")
    a("s_add_u32 s%d, s31, s52" % S_MT)
    a("s_lshr_b32 s53, s30, 2")
    a("s_lshr_b32 s54, s29, 1")
    a("s_lshl_b32 s55, s54, 3")
    a("s_cmp_eq_u32 s54, 3")
    a("s_cselect_b32 s60, 1, 0")
    a("s_sub_u32 s55, s55, s60")
    a("s_add_u32 s%d, s55, s53" % S_LIN)
    a("s_mul_i32 s61, s54, 5")
    a("s_sub_u32 s61, s61, s60")
    a("s_add_u32 s%d, s61, s53" % S_GRP)
    a("s_cmp_ge_u32 s54, 2")
    a("s_cselect_b32 s61, 4, 5")
    a("s_add_u32 s62, s54, 18")
    a("s_cmp_eq_u32 s53, s61")
    a("s_cselect_b32 s%d, s62, s%d" % (S_GRP, S_GRP))
    a("s_lshl_b32 s62, s54, 1")
    a("s_add_u32 s62, s62, s53")
    a("s_sub_u32 s62, s62, s61")
    a("s_add_u32 s62, s62, 21")
    a("s_cmp_gt_u32 s53, s61")
    a("s_cselect_b32 s%d, s62, s%d" % (S_GRP, S_GRP))
    a("s_cmp_ge_u32 s54, 2")
    a("s_cselect_b32 s60, 7, 8")
    a("s_waitcnt lgkmcnt(0)")
    stamp(a, 0)
    srd(a, SRD_X, S_X, 2048 * 1280)
    srd(a, SRD_WS, S_WS, WS_END)
    if CFG.get("dbgspan"):
        a("s_memrealtime s[84:85]")
        a("s_or_b32 s86, s2, s%d" % S_WAVE)
        a("s_cmp_lg_u32 s86, 0")
        a("s_cbranch_scc1 K1_NOSPAN")
        a("s_waitcnt lgkmcnt(0)")
        a("v_mov_b32 v2, s84")
        a("s_mov_b32 s50, 0x7fffffff")
        a("s_mov_b32 s86, %d" % WS_ST)
        a("buffer_store_dword v2, off, s[48:51], s86")
        a("s_mov_b32 s50, %d" % WS_END)
        a.label("K1_NOSPAN")
    a("s_cmp_ge_u32 s53, s60")
    a("s_cbranch_scc1 K1_PACK")
    a("s_cmp_lt_u32 s%d, 8" % S_WAVE)
    a("s_cbranch_scc1 K1_COMP")
    gen_loader(a)
    a.label("K1_COMP"); a.flush()
    if CFG.get("k1_pf", 0):
        gen_prefetch(a)
    a("s_and_b32 s60, s%d, 3" % S_WAVE)
    a("s_lshr_b32 s67, s%d, 2" % S_WAVE)
    a("s_cmp_ge_u32 s%d, 22" % S_GRP)
    a("s_cbranch_scc1 K1_KV")
    a("s_cmp_ge_u32 s%d, 18" % S_GRP)
    a("s_cbranch_scc1 K1_Q")
    gen_compute(a, "F")
    a.label("K1_Q"); a.flush()
    a("s_sub_u32 s%d, s%d, 18" % (S_GRP, S_GRP))
    gen_compute(a, "Q")
    a.label("K1_KV"); a.flush()
    a("s_sub_u32 s%d, s%d, 22" % (S_GRP, S_GRP))
    gen_compute(a, "K")
    a.label("K1_PACK"); a.flush()
    gen_packer(a)
    a.label("K1_END"); a.flush()
    a("s_endpgm")

def gen_prefetch(a):
    nst = CFG.get("pf_n", 1)
    a("s_and_b32 s60, s%d, 3" % S_WAVE)
    a("s_cmp_ge_u32 s%d, 4" % S_WAVE)
    a("s_cbranch_scc1 K1_PF_CHK")
    a("s_cmp_ge_u32 s%d, 18" % S_GRP)
    a("s_cbranch_scc1 K1_PF_CHK")
    a("s_and_b32 s60, s%d, 1" % S_WAVE)
    a("s_lshl_b32 s60, s60, 1")
    a.label("K1_PF_CHK")
    a("s_cmp_ge_u32 s60, %d" % nst)
    a("s_cbranch_scc1 K1_PF_DONE")
    a("s_cmp_ge_u32 s%d, 4" % S_WAVE)
    a("s_cbranch_scc1 K1_PF_X")
    a("s_cmp_ge_u32 s%d, 18" % S_GRP)
    a("s_cbranch_scc1 K1_PF_QKV")
    a("s_cmp_ge_u32 s%d, 2" % S_WAVE)
    a("s_cselect_b32 s%d, s%d, s%d" % (SRD_W0, S_WU, S_WG))
    a("s_cselect_b32 s%d, s%d, s%d" % (SRD_W0 + 1, S_WU + 1, S_WG + 1))
    a("s_and_b32 s%d, s%d, 0xffff" % (SRD_W0 + 1, SRD_W0 + 1))
    a("s_mov_b32 s%d, %d" % (SRD_W0 + 2, 640 * 3456))
    a("s_mov_b32 s%d, 0x20000" % (SRD_W0 + 3))
    a("v_lshrrev_b32 v2, 5, v0")
    a("v_bfe_u32 v3, v0, 1, 4")
    a("v_lshl_add_u32 v2, v2, 6, v3")
    a("v_mul_u32_u24 v2, 3456, v2")
    a("v_and_b32 v3, 1, v0")
    a("v_lshl_add_u32 v2, v3, 7, v2")
    a("s_and_b32 s60, s%d, 1" % S_WAVE)
    a("s_lshl_b32 s60, s60, 7")
    a("s_lshl_b32 s61, s%d, 4" % S_I3)
    a("s_add_u32 s60, s60, s61")
    a("s_add_u32 s60, s60, 64")
    a("s_mul_i32 s60, s60, 3456")
    a("s_mul_i32 s61, s%d, 192" % S_GRP)
    a("s_add_u32 s60, s60, s61")
    a("buffer_load_dword v1, v2, s[%d:%d], s60 offen" % (SRD_W0, SRD_W0 + 3))
    a("s_branch K1_PF_DONE")
    a.label("K1_PF_QKV"); a.flush()
    srd(a, SRD_W0, S_WQKV, 640 * 3840)
    a("v_lshrrev_b32 v2, 2, v0")
    a("v_mul_u32_u24 v2, 3840, v2")
    a("v_and_b32 v3, 1, v0")
    a("v_bfe_u32 v4, v0, 1, 1")
    a("s_cmp_ge_u32 s%d, 22" % S_GRP)
    a("s_movk_i32 s61, 192")
    a("s_cselect_b32 s61, 1280, s61")
    a("s_movk_i32 s60, 124")
    a("s_cselect_b32 s60, 156, s60")
    a("v_mul_lo_u32 v3, v3, s60")
    a("v_mul_lo_u32 v4, v4, s61")
    a("v_add3_u32 v2, v2, v3, v4")
    a("s_sub_u32 s62, s%d, 18" % S_GRP)
    a("s_mul_i32 s62, s62, 320")
    a("s_sub_u32 s63, s%d, 22" % S_GRP)
    a("s_mul_i32 s63, s63, 160")
    a("s_add_u32 s63, s63, 1280")
    a("s_cmp_ge_u32 s%d, 22" % S_GRP)
    a("s_cselect_b32 s62, s63, s62")
    a("s_add_u32 s60, s%d, 1" % S_WAVE)
    a("s_lshl_b32 s60, s60, 6")
    a("s_lshl_b32 s61, s%d, 4" % S_I3)
    a("s_add_u32 s60, s60, s61")
    a("s_mul_i32 s60, s60, 3840")
    a("s_add_u32 s60, s60, s62")
    a("buffer_load_dword v1, v2, s[%d:%d], s60 offen" % (SRD_W0, SRD_W0 + 3))
    a("s_branch K1_PF_DONE")
    a.label("K1_PF_X"); a.flush()
    a("s_mul_i32 s60, s%d, 37" % S_GI)
    a("v_add_u32 v2, s60, v0")
    a("v_mul_u32_u24 v3, 1280, v2")
    a("v_mov_b32 v4, %d" % OOB)
    a("v_cmp_gt_u32 vcc, 256, v2")
    a("v_cndmask_b32 v3, v4, v3, vcc")
    a("v_cmp_gt_u32 vcc, 37, v0")
    a("v_cndmask_b32 v2, v4, v3, vcc")
    a("s_mul_i32 s60, s%d, %d" % (S_MT, 256 * 1280))
    a("s_sub_u32 s61, s%d, 3" % S_WAVE)
    a("s_lshl_b32 s61, s61, 7")
    a("s_add_u32 s60, s60, s61")
    a("buffer_load_dword v1, v2, s[%d:%d], s60 offen" % (SRD_X, SRD_X + 3))
    a.label("K1_PF_DONE"); a.flush()

def gen_loader(a):
    noload = CFG.get("no_load")
    a("s_sub_u32 s60, s%d, 8" % S_WAVE)
    if CFG.get("ld_prio", 3): a("s_setprio %d" % CFG.get("ld_prio", 3))
    if STAMP:
        a("s_mov_b32 s94, 0")
        a("v_mov_b32 v167, 0")
    a("v_lshrrev_b32 v4, 3, v0")
    a("v_mul_u32_u24 v12, 1280, v4")
    a("v_lshrrev_b32 v5, 4, v0")
    a("v_and_b32 v6, 7, v0")
    a("v_xor_b32 v7, v6, v5")
    a("v_lshl_add_u32 v2, v7, 4, v12")
    a("v_xor_b32 v7, 4, v7")
    a("v_lshl_add_u32 v3, v7, 4, v12")
    a("s_mov_b32 s74, %d" % WBASE)
    a("s_mul_i32 s76, s%d, %d" % (S_MT, 256 * 1280))
    a("s_mul_i32 s77, s60, %d" % (4 * 10240))
    a("s_add_u32 s76, s76, s77")
    a("s_lshl_b32 s75, s60, 12")
    a("s_add_u32 s77, s75, %d" % (XRING * XSLOT))
    def xhalf(hf):
        for i in range(4):
            a("s_add_u32 m0, s75, %d" % (i * 1024 + hf * 16384))
            a("s_add_u32 s81, s76, %d" % (i * 10240 + hf * 16 * 10240))
            if not noload: a("buffer_load_dwordx4 v%d, s[%d:%d], s81 offen lds" % (2 + (i & 1), SRD_X, SRD_X + 3))
        if hf:
            a("s_add_u32 s75, s75, %d" % XSLOT)
            a("s_sub_u32 s79, s75, %d" % (XRING * XSLOT))
            a("s_cmp_ge_u32 s75, s77")
            a("s_cselect_b32 s75, s79, s75")
            a("s_add_u32 s76, s76, 128")
    def wsub():
        for i, (srdw, dst) in enumerate(((SRD_W0, 64), (SRD_W1, 65), (SRD_W2, 66))):
            a("s_add_u32 m0, s74, s%d" % dst)
            if i == 0: a("s_add_u32 s74, s74, %d" % WSLOT) if False else None
            if not noload: a("buffer_load_dwordx4 v%d, s[%d:%d], s69 offen lds" % (8 + i, srdw, srdw + 3))
        a("s_add_u32 s74, s74, %d" % WSLOT)
        a("s_cmp_ge_u32 s74, %d" % (WBASE + WRING * WSLOT))
        a("s_cselect_b32 s74, %d, s74" % WBASE)
        a("s_add_u32 s69, s69, s68")
    xhalf(0); xhalf(1)
    a("s_lshl_b32 s67, s60, 6")
    a("v_add_u32 v17, s67, v0")
    a("s_cmp_ge_u32 s%d, 18" % S_GRP)
    a("s_cbranch_scc1 K1_LD_QKV")
    srd(a, SRD_W0, S_WG, 640 * 3456)
    srd(a, SRD_W2, S_WU, 640 * 3456)
    a("s_cmp_ge_u32 s60, 2")
    a("s_cselect_b32 s%d, s%d, s%d" % (SRD_W1, S_WU, S_WG))
    a("s_cselect_b32 s%d, s%d, s%d" % (SRD_W1 + 1, SRD_W2 + 1, SRD_W0 + 1))
    a("s_mov_b32 s%d, %d" % (SRD_W1 + 2, 640 * 3456))
    a("s_mov_b32 s%d, 0x20000" % (SRD_W1 + 3))
    a("s_add_u32 s70, s60, 4")
    a("s_sub_u32 s62, s60, 2")
    a("s_cmp_ge_u32 s60, 2")
    a("s_cselect_b32 s70, s62, s70")
    a("s_add_u32 s62, s60, 2")
    for i, sl in enumerate((60, 70, 62)):
        a("s_lshl_b32 s67, s%d, 6" % sl)
        a("v_add_u32 v11, s67, v0")
        divmod_const(a, 12, 13, 11, 12, 384)
        a("v_bfe_u32 v14, v12, 3, 1")
        a("v_lshlrev_b32 v14, 1, v14")
        a("v_xor_b32 v13, v13, v14")
        a("v_mul_u32_u24 v12, 3456, v12")
        a("v_lshl_add_u32 v%d, v13, 4, v12" % (8 + i))
    a("s_mov_b32 s68, %d" % (32 * 3456))
    a("s_mul_i32 s69, s%d, 192" % S_GRP)
    a("v_lshrrev_b32 v11, 5, v17")
    a("v_and_b32 v12, 15, v17")
    a("v_lshl_add_u32 v11, v11, 4, v12")
    a("v_bfe_u32 v12, v17, 4, 1")
    a("v_mul_u32_u24 v12, 1728, v12")
    a("s_mul_i32 s67, s%d, 96" % S_GRP)
    a("s_add_u32 s67, s67, 1920")
    a("v_add3_u32 v16, v11, v12, s67")
    a("s_branch K1_LD_GO")
    a.label("K1_LD_QKV"); a.flush()
    srd(a, SRD_W0, S_WQKV, 640 * 3840)
    srd(a, SRD_W1, S_WQKV, 640 * 3840)
    srd(a, SRD_W2, S_WQKV, 640 * 3840)
    a("s_cmp_ge_u32 s%d, 22" % S_GRP)
    a("s_cselect_b32 s70, %d, 0" % (1280 - 160))
    for i in range(3):
        a("s_lshl_b32 s67, s60, 6")
        a("s_add_u32 s67, s67, %d" % (256 * i))
        a("v_add_u32 v11, s67, v0")
        if i == 2:
            a("v_subrev_u32 v14, 128, v11")
            a("v_cmp_le_u32 vcc, 640, v11")
            a("v_cndmask_b32 v11, v11, v14, vcc")
        divmod_const(a, 12, 13, 11, 20, 640)
        a("v_bfe_u32 v14, v12, 3, 1")
        a("v_lshlrev_b32 v14, 1, v14")
        a("v_xor_b32 v13, v13, v14")
        a("v_mul_u32_u24 v12, 3840, v12")
        a("v_lshl_add_u32 v%d, v13, 4, v12" % (8 + i))
        a("v_mov_b32 v14, s70")
        a("v_cmp_le_u32 vcc, 10, v13")
        a("v_cndmask_b32 v14, 0, v14, vcc")
        a("v_add_u32 v%d, v%d, v14" % (8 + i, 8 + i))
    a("s_mov_b32 s68, %d" % (32 * 3840))
    a("s_sub_u32 s69, s%d, 18" % S_GRP)
    a("s_mul_i32 s69, s69, 320")
    a("s_sub_u32 s71, s%d, 22" % S_GRP)
    a("s_mul_i32 s71, s71, 160")
    a("s_add_u32 s71, s71, 1280")
    a("s_cmp_ge_u32 s%d, 22" % S_GRP)
    a("s_cselect_b32 s69, s71, s69")
    a("s_lshr_b32 s67, s69, 1")
    a("s_lshr_b32 s71, s70, 1")
    a("v_mov_b32 v14, s71")
    a("v_cmp_le_u32 vcc, 80, v17")
    a("v_cndmask_b32 v14, 0, v14, vcc")
    a("v_add3_u32 v16, v17, v14, s67")
    a.label("K1_LD_GO"); a.flush()
    a("s_lshl_b32 s64, s60, 10")
    a("s_add_u32 s65, s64, 4096")
    a("s_add_u32 s66, s64, 8192")
    ops = ["x0"] * 4 + ["x1"] * 4
    def W(n): wsub(); ops.extend(["w%d" % n] * 3)
    def X(n): xhalf(n & 1); ops.extend(["x%d" % n] * 4)
    lastdone = [-1]
    def wait(tags):
        last = max(i for i, t in enumerate(ops) if t in tags)
        lastdone[0] = max(lastdone[0], last)
        a("s_waitcnt vmcnt(%d)" % min(63, len(ops) - 1 - last))
    def bar(u):
        tags = ["w%d" % (u + 1)]
        if (u + 1) % 2 == 0:
            tags += ["x%d" % (u + 1), "x%d" % (u + 2)]
        tags = [t for t in tags if t in ops]
        if tags: wait(tags)
        tl(a); a("s_barrier"); tl(a)
    W(0); W(1)
    a("s_mov_b32 s61, 2")
    a("s_mov_b32 s62, s%d" % S_LIN)
    a("s_cmp_eq_u32 s60, 3")
    a("s_cbranch_scc1 K1_ST_DEC")
    a("s_mul_i32 s63, s%d, 3" % S_GI)
    a("s_add_u32 s63, s63, s60")
    a("s_mov_b32 s61, 1")
    a("s_lshl_b32 s67, s%d, 3" % S_NQ)
    a("s_lshr_b32 s70, 0x150f0800, s67")
    a("s_and_b32 s70, s70, 255")
    a("s_lshr_b32 s71, 0x06060708, s67")
    a("s_and_b32 s71, s71, 255")
    a("s_lshr_b32 s72, 0x170f0800, s67")
    a("s_and_b32 s72, s72, 255")
    a("s_lshr_b32 s73, 0x07080708, s67")
    a("s_and_b32 s73, s73, 255")
    a("s_add_u32 s62, s70, s63")
    a("s_add_u32 s62, s62, 30")
    a("s_sub_u32 s67, s62, s71")
    a("s_add_u32 s67, s67, 27")
    a("s_cmp_ge_u32 s63, s71")
    a("s_cselect_b32 s62, s67, s62")
    a("s_lshl_b32 s71, s71, 1")
    a("s_sub_u32 s67, s63, s71")
    a("s_add_u32 s72, s72, s67")
    a("s_cmp_ge_u32 s63, s71")
    a("s_cselect_b32 s62, s72, s62")
    a("s_add_u32 s71, s71, s73")
    a("s_cmp_ge_u32 s63, s71")
    a("s_cselect_b32 s61, 0, s61")
    a("s_cselect_b32 s67, 1, 0")
    a("s_cmp_eq_u32 s%d, 3" % S_NQ)
    a("s_cselect_b32 s67, s67, 0")
    a("s_cmp_eq_u32 s67, 1")
    a("s_cselect_b32 s61, 2, s61")
    a.label("K1_ST_DEC"); a.flush()
    a("s_movk_i32 s63, 3840")
    a("s_cmp_ge_u32 s62, 30")
    a("s_cselect_b32 s%d, s%d, s%d" % (SRD_ST, S_WG, S_WQKV))
    a("s_cselect_b32 s%d, s%d, s%d" % (SRD_ST + 1, S_WG + 1, S_WQKV + 1))
    a("s_cselect_b32 s63, 3456, s63")
    a("s_cselect_b32 s67, 30, 0")
    a("s_cmp_ge_u32 s62, 57")
    a("s_cselect_b32 s%d, s%d, s%d" % (SRD_ST, S_WU, SRD_ST))
    a("s_cselect_b32 s%d, s%d, s%d" % (SRD_ST + 1, S_WU + 1, SRD_ST + 1))
    a("s_cselect_b32 s67, 57, s67")
    a("s_sub_u32 s70, s62, s67")
    a("s_lshl_b32 s70, s70, 7")
    a("s_lshl_b32 s71, s%d, 3" % S_MT)
    a("s_mul_i32 s71, s71, s63")
    a("s_add_u32 s70, s70, s71")
    a("s_lshl_b32 s71, s63, 6")
    a("s_mul_i32 s%d, s63, 640" % (SRD_ST + 2))
    a("s_lshl_b32 s72, s%d, 8" % S_MT)
    a("s_lshl_b32 s73, s62, 3")
    a("s_add_u32 s72, s72, s73")
    a("s_mul_i32 s73, s72, 1280")
    a("s_cmp_eq_u32 s61, 2")
    a("s_cselect_b32 s%d, s%d, s%d" % (SRD_ST, S_X, SRD_ST))
    a("s_cselect_b32 s%d, s%d, s%d" % (SRD_ST + 1, S_X + 1, SRD_ST + 1))
    a("s_cselect_b32 s63, 1280, s63")
    a("s_cselect_b32 s70, s73, s70")
    a("s_cselect_b32 s71, 128, s71")
    a("s_cselect_b32 s%d, %d, s%d" % (SRD_ST + 2, 2048 * 1280, SRD_ST + 2))
    a("s_cmp_eq_u32 s61, 0")
    a("s_cselect_b32 s%d, 0, s%d" % (SRD_ST + 2, SRD_ST + 2))
    a("s_and_b32 s%d, s%d, 0xffff" % (SRD_ST + 1, SRD_ST + 1))
    a("s_mov_b32 s%d, 0x20000" % (SRD_ST + 3))
    a("v_mov_b32 v19, 0")
    a("v_mul_lo_u32 v18, v4, s63")
    a("v_lshl_add_u32 v18, v6, 4, v18")
    srd(a, SRD_DBG, S_DBG, 256)
    LD, U, A = 32, 72, 20
    order = CFG.get("st_order", [1, 2, 3, 4, 5, 6, 7, 8, 9, 0])
    nld = [0]
    def S(cnt):
        for _ in range(cnt):
            i = order[nld[0]]
            a("s_mul_i32 s73, s71, %d" % i)
            a("s_add_u32 s73, s73, s70")
            a("buffer_load_dwordx4 %s, v18, s[%d:%d], s73 offen" % (vr(LD + 4 * nld[0], 4), SRD_ST, SRD_ST + 3))
            ops.append("s%d" % nld[0]); nld[0] += 1
    class L:
        def __init__(self): self.l = []
        def __call__(self, t): self.l.append(t)
    def acc_items(i):
        o = []
        for d in range(4):
            o.append("v_lshlrev_b32 v%d, 16, v%d" % (U + 8 * i + 2 * d, LD + 4 * i + d))
            o.append("v_and_b32 v%d, 0xffff0000, v%d" % (U + 8 * i + 2 * d + 1, LD + 4 * i + d))
        for d in range(4):
            if i == 1: o.append("v_pk_add_f32 %s, %s, %s" % (vr(A + 2 * d, 2), vr(U + 2 * d, 2), vr(U + 8 + 2 * d, 2)))
            elif i > 1: o.append("v_pk_add_f32 %s, %s, %s" % (vr(A + 2 * d, 2), vr(A + 2 * d, 2), vr(U + 8 * i + 2 * d, 2)))
        return o
    col = L()
    col("v_lshl_add_u32 v19, v6, 3, v4")
    col("v_lshlrev_b32 v19, 3, v19")
    col("s_lshl_b32 s70, s62, 9")
    col("s_mul_i32 s71, s%d, %d" % (S_MT, CSP_STRIDE))
    col("s_add_u32 s70, s70, s71")
    col("s_add_u32 s70, s70, %d" % WS_CSP)
    col("s_cmp_eq_u32 s61, 0")
    col("s_cselect_b32 s70, %d, s70" % OOB)
    col("v_and_b32 v7, 8, v0")
    col("v_cmp_eq_u32 s[82:83], 0, v7")
    for j in range(4): col("v_permlane32_swap_b32 v%d, v%d" % (A + j, A + 4 + j))
    for j in range(4): col("v_add_f32 v%d, v%d, v%d" % (A + j, A + j, A + 4 + j))
    for j in range(2): col("v_permlane16_swap_b32 v%d, v%d" % (A + j, A + 2 + j))
    for j in range(2): col("v_add_f32 v%d, v%d, v%d" % (A + j, A + j, A + 2 + j))
    col("v_cndmask_b32 v%d, v%d, v%d, s[82:83]" % (A + 2, A + 1, A))
    col("v_cndmask_b32 v%d, v%d, v%d, s[82:83]" % (A + 3, A, A + 1))
    col("v_add_f32_dpp v%d, v%d, v%d row_ror:8 row_mask:0xf bank_mask:0xf" % (A, A + 3, A + 2))
    row = L()
    row("v_pk_add_f32 %s, %s, %s" % (vr(A, 2), vr(A, 2), vr(A + 2, 2)))
    row("v_pk_add_f32 %s, %s, %s" % (vr(A + 4, 2), vr(A + 4, 2), vr(A + 6, 2)))
    row("v_pk_add_f32 %s, %s, %s" % (vr(A, 2), vr(A, 2), vr(A + 4, 2)))
    row("v_add_f32 v%d, v%d, v%d" % (A, A, A + 1))
    red8(row, A)
    row("v_mul_f32 v%d, %s, v%d" % (A, f32bits(-1.0 / 640), A))
    for d in range(40):
        row("v_pk_add_f32 %s, %s, %s op_sel_hi:[1,0]" % (vr(U + 2 * d, 2), vr(U + 2 * d, 2), vr(A, 2)))
        c = A + 2 + 2 * (d & 1)
        if d < 2: row("v_pk_mul_f32 %s, %s, %s" % (vr(c, 2), vr(U + 2 * d, 2), vr(U + 2 * d, 2)))
        else: row("v_pk_fma_f32 %s, %s, %s, %s" % (vr(c, 2), vr(U + 2 * d, 2), vr(U + 2 * d, 2), vr(c, 2)))
    row("v_pk_add_f32 %s, %s, %s" % (vr(A + 2, 2), vr(A + 2, 2), vr(A + 4, 2)))
    row("v_add_f32 v%d, v%d, v%d" % (A + 2, A + 2, A + 3))
    red8(row, A + 2)
    row("v_mul_f32 v%d, %s, v%d" % (A + 2, f32bits(1.0 / 640), A + 2))
    rbf(row, A + 2)
    row("v_add_f32 v%d, %s, v%d" % (A + 2, f32bits(1e-5), A + 2))
    rbf(row, A + 2)
    row("v_sqrt_f32 v%d, v%d" % (A + 2, A + 2))
    row("v_cvt_pk_bf16_f32 v%d, v%d, v%d" % (A, A, A + 2))
    row("v_lshlrev_b32 v19, 3, v4")
    row("v_mov_b32 v7, %d" % OOB)
    row("v_cmp_eq_u32 vcc, 0, v6")
    row("v_cndmask_b32 v19, v7, v19, vcc")
    row("s_lshl_b32 s70, s72, 3")
    row("s_add_u32 s70, s70, %d" % WS_RST)
    CH = CFG.get("st_ch", 28)
    nw, nx = [2], [2]
    def ring(u, cap):
        n = 0
        while n < cap:
            wok = nw[0] < 20 and nw[0] - 5 <= u - 1
            xok = nx[0] < 20 and 2 * (nx[0] // 2) - 5 <= u - 1
            if xok and (not wok or nx[0] <= nw[0]):
                X(nx[0]); nx[0] += 1; n += 4
            elif wok:
                W(nw[0]); nw[0] += 1; n += 3
            else:
                break
    def landed():
        return sum(1 for t in ops[:lastdone[0] + 1] if t[0] == "s" and t[1:].isdigit())
    caps = CFG.get("ld_caps", [4, 10, 14, 10])
    pace = CFG.get("st_pace", [0, 0, 2, 2, 2, 2, 2])
    done = 0; rpos = 0; coldone = False; u_store = None; issued_at = {}
    for u in range(-1, 16):
        ring(u, caps[u + 1] if u + 1 < len(caps) else 7)
        if u + 1 < len(pace): S(pace[u + 1])
        if u == 2:
            a("buffer_load_dword v13, off, s[%d:%d], 0 sc1" % (SRD_DBG, SRD_DBG + 3)); ops.append("tag")
        issued_at[u] = nld[0]
        budget = CH
        avail = issued_at.get(u - CFG.get("st_lag", 2), 0)
        tgt = min(avail, done + budget // 12)
        if tgt > done and tgt > landed():
            wait(["s%d" % (tgt - 1)])
        while done < 10 and done < landed() and budget >= 12:
            for t in acc_items(done): a(t)
            done += 1; budget -= 12
        if done == 10 and u_store is None and budget >= 12:
            l1, l2 = a.newlabel("K1_STR"), a.newlabel("K1_STE")
            a("s_cmp_eq_u32 s61, 2")
            a("s_cbranch_scc1 %s" % l1)
            if not coldone:
                for t in col.l: a(t)
                coldone = True
            a("s_branch %s" % l2)
            a.label(l1); a.flush(); a.nops(2)
            n = budget
            while rpos + n < len(row.l) and row.l[rpos + n - 1].startswith(("v_cmp", "s_")): n += 1
            for t in row.l[rpos:rpos + n]: a(t)
            rpos += n
            a.label(l2); a.flush(); a.nops(2)
            if rpos >= len(row.l):
                a("s_mov_b32 s73, 0")
                a.label("K1_TAG_CHK")
                a("v_readfirstlane_b32 s78, v13")
                a("s_cmp_lg_u32 s78, 0")
                a("s_cbranch_scc1 K1_TAG_OK")
                a("s_add_u32 s73, s73, 1")
                a("s_cmp_gt_u32 s73, 200000")
                a("s_cbranch_scc1 K1_TAG_OK")
                a("s_sleep 8")
                a("buffer_load_dword v13, off, s[%d:%d], 0 sc1" % (SRD_DBG, SRD_DBG + 3))
                a("s_waitcnt vmcnt(0)")
                a("s_branch K1_TAG_CHK")
                a.label("K1_TAG_OK"); a.flush()
                a("v_mov_b32 v%d, v13" % (A + 1))
                a("buffer_store_dwordx2 %s, v19, s[%d:%d], s70 offen sc0 sc1" % (vr(A, 2), SRD_WS, SRD_WS + 3))
                ops.append("st"); u_store = u
        bar(u)
    assert u_store is not None
    print("loader: stat store at u=%d" % u_store)
    a("v_lshlrev_b32 v16, 3, v16")
    a("v_lshlrev_b32 v15, 5, v0")
    a("s_mov_b32 s63, 0")
    a("s_cmp_eq_u32 s60, 3")
    a("s_cbranch_scc1 K1_LD_ROWS")
    def colloads():
        for c in range(8):
            a("s_mov_b32 s62, %d" % (WS_CSP + c * CSP_STRIDE))
            a("buffer_load_dwordx2 %s, v16, s[%d:%d], s62 offen sc1" % (vr(20 + 2 * c, 2), SRD_WS, SRD_WS + 3))
    assert nw[0] == 20 and nx[0] == 20
    def tailwait(tags, extra):
        last = max(i for i, t in enumerate(ops) if t in tags)
        a("s_waitcnt vmcnt(%d)" % (len(ops) - 1 - last + extra))
    colloads()
    tailwait(["w17"], 8)
    tl(a); a("s_barrier"); tl(a)
    a("s_waitcnt vmcnt(8)")
    tl(a); a("s_barrier"); tl(a)
    a.label("K1_LD_CCHK")
    a("s_waitcnt vmcnt(0)")
    a("v_xor_b32 v14, v13, v21")
    for c in range(1, 8):
        a("v_xor_b32 v12, v13, v%d" % (21 + 2 * c))
        a("v_or_b32 v14, v14, v12")
    a("v_cmp_ne_u32 vcc, 0, v14")
    a("s_cmp_eq_u64 vcc, 0")
    a("s_cbranch_scc1 K1_LD_COK")
    a("s_add_u32 s63, s63, 1")
    a("s_cmp_gt_u32 s63, 200000")
    a("s_cbranch_scc1 K1_LD_COK")
    a("s_sleep 8")
    colloads()
    a("s_branch K1_LD_CCHK")
    a.label("K1_LD_COK"); a.flush()
    for (d, x, y) in ((20, 20, 22), (24, 24, 26), (28, 28, 30), (32, 32, 34), (20, 20, 24), (28, 28, 32), (20, 20, 28)):
        a("v_add_f32 v%d, v%d, v%d" % (d, x, y))
    a("v_cvt_pk_bf16_f32 v21, v20, v20")
    a("v_and_b32 v21, 0xffff0000, v21")
    a("v_sub_f32 v22, v20, v21")
    a("v_cvt_pk_bf16_f32 v20, v21, v22")
    a("v_lshlrev_b32 v17, 2, v17")
    a("v_add_u32 v17, %d, v17" % ST_COL)
    a("ds_write_b32 v17, v20")
    a("s_branch K1_LD_FIN")
    a.label("K1_LD_ROWS"); a.flush()
    a("s_lshl_b32 s62, s%d, 11" % S_MT)
    a("s_add_u32 s62, s62, %d" % WS_RST)
    def rowloads():
        for i in range(4):
            a("buffer_load_dwordx2 %s, v15, s[%d:%d], s62 offen offset:%d sc1" % (vr(20 + 2 * i, 2), SRD_WS, SRD_WS + 3, 8 * i))
    rowloads()
    tailwait(["w17"], 4)
    tl(a); a("s_barrier"); tl(a)
    a("s_waitcnt vmcnt(4)")
    tl(a); a("s_barrier"); tl(a)
    a.label("K1_LD_RCHK")
    a("s_waitcnt vmcnt(0)")
    a("v_xor_b32 v14, v13, v21")
    for c in range(1, 4):
        a("v_xor_b32 v12, v13, v%d" % (21 + 2 * c))
        a("v_or_b32 v14, v14, v12")
    a("v_cmp_ne_u32 vcc, 0, v14")
    a("s_cmp_eq_u64 vcc, 0")
    a("s_cbranch_scc1 K1_LD_ROK")
    a("s_add_u32 s63, s63, 1")
    a("s_cmp_gt_u32 s63, 200000")
    a("s_cbranch_scc1 K1_LD_ROK")
    a("s_sleep 8")
    rowloads()
    a("s_branch K1_LD_RCHK")
    a.label("K1_LD_ROK"); a.flush()
    a("v_lshrrev_b32 v15, 1, v15")
    a("v_add_u32 v15, %d, v15" % ST_MEAN)
    for i in range(4):
        a("v_and_b32 v%d, 0xffff, v%d" % (28 + i, 20 + 2 * i))
        a("v_lshl_or_b32 v%d, v%d, 16, v%d" % (28 + i, 28 + i, 28 + i))
        a("v_and_b32 v%d, 0xffff0000, v%d" % (32 + i, 20 + 2 * i))
        a("v_rcp_f32 v%d, v%d" % (32 + i, 32 + i))
    a("s_nop 0")
    a("ds_write_b128 v15, v[28:31]")
    a("ds_write_b128 v15, v[32:35] offset:1024")
    a.label("K1_LD_FIN")
    a("s_waitcnt lgkmcnt(0)")
    tl(a); a("s_barrier"); tl(a)
    if CFG.get("merged"):
        gen_phase2(a)
        return
    if CFG.get("flagtest"):
        a("s_barrier")
        a("s_cmp_lt_u32 s%d, 22" % S_GRP)
        a("s_cbranch_scc1 K1_FT_NOKV")
        a("s_barrier")
        a.label("K1_FT_NOKV")
        a("s_barrier")
        a("s_cmp_lg_u32 s60, 0")
        a("s_cbranch_scc1 K1_FT_END")
        a("s_lshl_b32 s62, s%d, 5" % S_MT)
        a("s_add_u32 s63, s62, s%d" % S_GRP)
        a("s_lshl_b32 s63, s63, 7")
        a("s_add_u32 s63, s63, %d" % WS_FLG)
        a("s_mov_b64 exec, 1")
        a("buffer_store_dword v13, off, s[%d:%d], s63 sc0 sc1" % (SRD_WS, SRD_WS + 3))
        a("s_mov_b64 exec, -1")
        a("s_lshl_b32 s62, s%d, 12" % S_XCD)
        a("s_add_u32 s62, s62, %d" % WS_FLG)
        a("v_lshlrev_b32 v14, 7, v0")
        a("s_mov_b32 s66, 0x3fffff")
        a("s_mov_b32 s67, 0")
        a("s_mov_b32 s63, 0")
        a("s_mov_b64 exec, s[66:67]")
        a.label("K1_FT_POLL")
        a("buffer_load_dword v12, v14, s[%d:%d], s62 offen sc1" % (SRD_WS, SRD_WS + 3))
        a("s_waitcnt vmcnt(0)")
        a("v_cmp_ne_u32 vcc, v12, v13")
        a("s_cbranch_vccz K1_FT_OK")
        a("s_add_u32 s63, s63, 1")
        a("s_cmp_gt_u32 s63, 100000")
        a("s_cbranch_scc1 K1_FT_OK")
        a("s_sleep %d" % CFG.get("ft_sleep", 4))
        a("s_branch K1_FT_POLL")
        a.label("K1_FT_OK")
        a("s_mov_b64 exec, -1")
        a.label("K1_FT_END")
    if STAMP:
        a("s_mov_b32 s50, 0x7fffffff")
        a("s_lshl_b32 s82, s2, 2")
        a("s_add_u32 s82, s82, s60")
        a("s_lshl_b32 s82, s82, 8")
        a("s_add_u32 s82, s82, %d" % (WS_ST + (1 << 19)))
        a("v_lshlrev_b32 v2, 2, v0")
        a("buffer_store_dword v167, v2, s[48:51], s82 offen")
    stamp_flush(a, 0, S_WAVE, 1)
    a("s_endpgm")

def gen_phase2(a):
    import p2
    p2.setup(a, CFG)
    P, blocks = p2.build(a, CFG)
    class Rec:
        def __init__(self): self.l = []
        def __call__(self, t): self.l.append(t)
    rec = Rec(); P.a = rec
    p2.gen_preload(rec, CFG, P, blocks)
    P.a = a
    a("s_barrier")
    a("s_mov_b32 s79, 1")
    a("s_cmp_ge_u32 s%d, 22" % S_GRP)
    a("s_cbranch_scc1 P2_KVWG")
    a("s_mov_b32 s73, %d" % WS_PKF)
    p2.poll(a, "PK1", 16, 73, 7)
    for t in rec.l: a(t)
    a("s_mov_b32 s79, 0")
    a("s_branch P2_B20")
    a.label("P2_KVWG"); a.flush()
    a("s_barrier")
    a.label("P2_B20"); a.flush()
    a("s_barrier")
    a("s_cmp_lg_u32 s60, 0")
    a("s_cbranch_scc1 P2_ENTRY")
    a("s_lshl_b32 s72, s%d, 5" % S_MT)
    a("s_add_u32 s72, s72, s%d" % S_GRP)
    a("s_lshl_b32 s72, s72, 7")
    a("s_add_u32 s72, s72, %d" % WS_FLG)
    a("s_mov_b64 exec, 1")
    a("buffer_store_dword v13, off, s[%d:%d], s72 sc0 sc1" % (SRD_WS, SRD_WS + 3))
    a("s_mov_b64 exec, -1")
    a.label("P2_ENTRY"); a.flush()
    stamp(a, 1)
    a("s_cmp_eq_u32 s79, 0")
    a("s_cbranch_scc1 P2_PRE_DONE")
    a("s_mov_b32 s73, %d" % WS_PKF)
    p2.poll(a, "PK2", 16, 73, 7)
    for t in rec.l: a(t)
    a.label("P2_PRE_DONE"); a.flush()
    p2.gen_reducer(a)
    a("s_cmp_lg_u32 s60, 0")
    a("s_cbranch_scc1 P2_B21")
    a("s_lshr_b32 s73, s%d, 2" % p2.S_MT)
    a("s_lshl_b32 s73, s73, 12")
    a("s_add_u32 s73, s73, %d" % WS_FLG)
    p2.poll(a, "MAIN", 22, 73, 7, CFG.get("ft_sleep", 2))
    a.label("P2_B21"); a.flush()
    a("s_barrier")
    if STAMP: a("s_memtime s[96:97]")
    p2.gen_main(a, CFG, P, blocks)
    if STAMP: a("s_memtime s[98:99]")
    stamp_flush(a, 1, 60, 4)
    a("s_endpgm")

ACC = 16
XS = [112, 128]
WA, WB = 144, 156
V_XB = 2
V_WE, V_WO = 4, 5
V_XA, V_WAE, V_WAO = 6, 7, 8
T0 = 112

def gen_compute(a, typ):
    nt = 6 if typ == "F" else 5
    orient = "N" if typ == "K" else "T"
    rowb = 192 if typ == "F" else 320
    def acc(t, rb): return ACC + (t * 4 + rb) * 4
    def wf(t): return (WA + 4 * t) if t < 3 else (WB + 4 * (t - 3))
    a("v_and_b32 v14, 15, v0")
    a("v_lshrrev_b32 v15, 4, v0")
    a("v_bfe_u32 v9, v0, 1, 3")
    a("v_xor_b32 v9, v9, v15")
    a("s_lshl_b32 s61, s60, 13")
    a("v_lshl_add_u32 v10, v14, 7, s61")
    a("v_lshl_add_u32 v%d, v9, 4, v10" % V_XB)
    a("v_xor_b32 v9, 4, v9")
    a("v_lshl_add_u32 v%d, v9, 4, v10" % (V_XB + 1))
    a("v_bfe_u32 v9, v0, 2, 2")
    a("v_lshl_add_u32 v9, v15, 3, v9")
    a("v_mul_u32_u24 v9, %d, v9" % rowb)
    a("v_and_b32 v10, 3, v0")
    a("v_lshl_add_u32 v9, v10, 3, v9")
    a("v_bfe_u32 v10, v0, 4, 1")
    a("v_lshlrev_b32 v10, 5, v10")
    if typ in "FQ":
        P = 3 if typ == "F" else 5
        a("s_mul_i32 s62, s67, %d" % (32 * P))
        a("v_add_u32 v9, s62, v9")
        a("v_add_u32 v11, v9, v10")
        a("v_sub_u32 v12, v9, v10")
        a("s_cmp_eq_u32 s67, 0")
        a("s_cselect_b64 s[68:69], -1, 0")
        a("v_cndmask_b32 v%d, v12, v11, s[68:69]" % V_WE)
        a("v_cndmask_b32 v%d, v11, v12, s[68:69]" % V_WO)
        if typ == "F":
            tl = [((t & 1) * UPOFF + (t >> 1) * 32, (t >> 1) & 1) for t in range(6)]
        else:
            tl = [(t * 32, t & 1) for t in range(5)]
    else:
        a("s_mul_i32 s62, s67, 96")
        a("v_add_u32 v9, s62, v9")
        a("v_add_u32 v11, v9, v10")
        a("v_sub_u32 v12, v9, v10")
        a("s_cmp_eq_u32 s67, 0")
        a("s_cselect_b64 s[68:69], -1, 0")
        a("v_cndmask_b32 v%d, v12, v11, s[68:69]" % V_WE)
        a("v_cndmask_b32 v%d, v11, v12, s[68:69]" % V_WO)
        a("s_lshl_b32 s70, s67, 6")
        tl = [(0, 0), (32, 1), (64, 2), (160, 1), (192, 0)]
    for r in range(nt * 16):
        a("v_mov_b32 v%d, 0" % (ACC + r))
    a("s_mov_b32 s63, 0")
    a("s_mov_b32 s64, %d" % XSLOT)
    a("s_mov_b32 s65, %d" % WBASE)
    a("s_mov_b32 s66, 0")
    def waddr():
        out = ["v_add_u32 v%d, s65, v%d" % (V_WAE, V_WE), "v_add_u32 v%d, s65, v%d" % (V_WAO, V_WO)]
        if typ == "K":
            out.append("v_add_u32 v13, s70, v%d" % V_WAE)
        return out
    def wreads(ts):
        out = []
        for t in ts:
            off, par = tl[t]
            reg = (V_WAE, V_WAO, 13)[par]
            out.append("ds_read_b64_tr_b16 %s, v%d offset:%d" % (vr(wf(t), 2), reg, off))
            out.append("ds_read_b64_tr_b16 %s, v%d offset:%d" % (vr(wf(t) + 2, 2), reg, off + 4 * rowb))
        return out
    def xreads(st, hf, xs):
        out = ["v_add_u32 v%d, s%d, v%d" % (V_XA, xs, V_XB + hf)]
        for rb in range(4):
            out.append("ds_read_b128 %s, v%d offset:%d" % (vr(XS[st] + 4 * rb, 4), V_XA, rb * 2048))
        return out
    def mfma(t, rb, W, X):
        A, B = (W, X) if orient == "T" else (X, W)
        return "v_mfma_f32_16x16x32_bf16 %s, %s, %s, %s" % (vr(acc(t, rb), 4), vr(A, 4), vr(B, 4), vr(acc(t, rb), 4))
    def wadv():
        return ["s_add_u32 s65, s65, %d" % WSLOT,
                "s_cmp_ge_u32 s65, %d" % (WBASE + WRING * WSLOT),
                "s_cselect_b32 s65, %d, s65" % WBASE] + waddr()
    for t in waddr(): a(t)
    a("s_barrier")
    stamp(a, 1)
    if STAMP: a("s_memtime s[96:97]")
    xr = xreads(0, 0, 63); wr = wreads([0, 1, 2])
    for t in xr[:1] + wr[:2] + xr[1:] + wr[2:]:
        a(t)
    a.label("K1_LOOP_" + typ)
    def phase(ms, fill, barrier):
        if CFG.get("no_ds"): fill = [f for f in fill if not f.startswith("ds_")]
        if CFG.get("no_mfma"): ms = ["s_nop 0"] * len(ms)
        a("s_waitcnt lgkmcnt(0)")
        nb = CFG.get("k1_prebar", 2)
        for m in ms[:nb]: a(m)
        if barrier: a("s_barrier")
        rest = ms[nb:]
        k = 0
        for i, m in enumerate(rest):
            per = 2 if len(fill) - k > len(rest) - i else 1
            for f in fill[k:k + per]: a(f)
            k += per
            a(m)
        for f in fill[k:]: a(f)
    for hf in range(2):
        cur = hf
        msA = [mfma(t, rb, wf(t), XS[cur] + 4 * rb) for t in range(3) for rb in range(4)]
        msB = [mfma(t, rb, wf(t), XS[cur] + 4 * rb) for t in range(3, nt) for rb in range(4)]
        phase(msA, wreads(range(3, nt)), False)
        xr = xreads(cur ^ 1, hf ^ 1, 63 if hf == 0 else 64); wr = wreads([0, 1, 2])
        phase(msB, wadv() + xr[:1] + wr[:2] + xr[1:] + wr[2:], True)
    a("s_mov_b32 s63, s64")
    a("s_add_u32 s64, s64, %d" % XSLOT)
    a("s_cmp_ge_u32 s64, %d" % (XRING * XSLOT))
    a("s_cselect_b32 s64, 0, s64")
    a("s_add_u32 s66, s66, 1")
    a("s_cmp_lt_u32 s66, 10")
    a("s_cbranch_scc1 K1_LOOP_" + typ)
    stamp(a, 2)
    if STAMP: a("s_memtime s[98:99]")
    a("s_waitcnt lgkmcnt(0)")
    XC = T0
    WC = T0 + 16
    M = T0 + 40
    a("s_lshl_b32 s61, s60, 8")
    a("s_add_u32 s61, s61, %d" % ST_MEAN)
    a("v_lshl_add_u32 v9, v0, 2, s61")
    a("ds_read_b32 v%d, v9" % M)
    a("v_lshlrev_b32 v10, 2, v14")
    if typ == "F":
        a("s_mul_i32 s62, s67, %d" % (3 * 128))
        co = [(t >> 1) * 128 + (t & 1) * 64 for t in range(6)]
    elif typ == "Q":
        a("s_mul_i32 s62, s67, %d" % (5 * 64))
        co = [t * 64 for t in range(5)]
    else:
        a("s_mul_i32 s62, s67, %d" % (3 * 64))
        co = [0, 64, 128, 320, 384]
    a("s_add_u32 s62, s62, %d" % ST_COL)
    a("v_add_u32 v10, s62, v10")
    if typ == "K":
        a("s_lshl_b32 s70, s67, 7")
        a("v_add_u32 v11, s70, v10")
    for t in range(nt):
        a("ds_read_b32 v%d, v%d offset:%d" % (WC + 4 * t, 11 if (typ == "K" and t == 2) else 10, co[t]))
    RS = T0 + 44
    if orient == "T":
        a("v_lshl_add_u32 v9, v14, 2, s61")
        for rb in range(4):
            a("ds_read_b32 v%d, v9 offset:%d" % (RS + rb, 1024 + rb * 64))
    for r in range(1, 4):
        for k in range(4): a("v_mov_b32 v%d, 0" % (XC + 4 * k + r))
        for t in range(nt): a("v_mov_b32 v%d, 0" % (WC + 4 * t + r))
    for rb in range(4):
        a("v_cmp_eq_u32 s[%d:%d], %d, v15" % (72 + 2 * rb, 73 + 2 * rb, rb))
    a("s_waitcnt lgkmcnt(0)")
    for rb in range(4):
        a("v_cndmask_b32 v%d, 0, v%d, s[%d:%d]" % (XC + 4 * rb, M, 72 + 2 * rb, 73 + 2 * rb))
    for t in range(nt):
        for rb in range(4):
            a(mfma(t, rb, WC + 4 * t, XC + 4 * rb))
    stamp(a, 3)
    if typ == "F":
        epi_ffn(a, acc, RS)
    elif typ == "Q":
        epi_q(a, acc, RS)
    else:
        epi_kv(a, acc)

def fin_compute(a):
    if CFG.get("flagtest") or CFG.get("merged"):
        a("s_waitcnt vmcnt(0)")
        a("s_barrier")
    stamp_flush(a, 0, S_WAVE, 4)
    a("s_endpgm")

def epi_ffn(a, acc, RS):
    c0 = -2.0 * math.sqrt(2.0 / math.pi) * LOG2E
    K = T0
    for rb in range(4):
        k = K + rb * 6; R = RS + rb
        a("v_mul_f32 v%d, v%d, v%d" % (k + 4, R, R))
        a("v_mul_f32 v%d, %s, v%d" % (k, f32bits(c0), R))
        a("v_mul_f32 v%d, v%d, v%d" % (k + 2, k, k + 4))
        a("v_rcp_f32 v%d, v%d" % (k + 4, k + 4))
        a("v_mul_f32 v%d, %s, v%d" % (k + 2, f32bits(0.044715), k + 2))
    VA = 9
    a("v_lshlrev_b32 v%d, 4, v0" % VA)
    a("s_lshl_b32 s61, s%d, 2" % S_MT)
    a("s_add_u32 s61, s61, s60")
    a("s_mul_i32 s61, s61, %d" % (54 * 4096))
    a("s_mul_i32 s62, s%d, %d" % (S_GRP, 3 * 4096))
    a("s_add_u32 s61, s61, s62")
    a("s_add_u32 s62, s61, 8192")
    a("s_add_u32 s63, s61, 4096")
    T = T0 + 24
    for rb in range(4):
        k = K + rb * 6
        out = T0 + 40 + 8 * (rb & 1)
        for i in range(3):
            G, Uu = acc(2 * i, rb), acc(2 * i + 1, rb)
            t = T + 8 * (i & 1)
            for p in range(2):
                a("v_pk_mul_f32 %s, %s, %s" % (vr(t + 2 * p, 2), vr(G + 2 * p, 2), vr(G + 2 * p, 2)))
            for p in range(2):
                a("v_pk_fma_f32 %s, %s, %s, %s op_sel_hi:[1,0,0]" % (vr(t + 2 * p, 2), vr(t + 2 * p, 2), vr(k + 2, 2), vr(k, 2)))
            for p in range(2):
                a("v_pk_mul_f32 %s, %s, %s" % (vr(t + 2 * p, 2), vr(t + 2 * p, 2), vr(G + 2 * p, 2)))
            for j in range(4):
                a("v_exp_f32 v%d, v%d" % (t + j, t + j))
            for p in range(2):
                a("v_pk_mul_f32 %s, %s, %s" % (vr(t + 4 + 2 * p, 2), vr(G + 2 * p, 2), vr(Uu + 2 * p, 2)))
            for p in range(2):
                a("v_pk_fma_f32 %s, %s, %s, %s op_sel_hi:[1,0,0]" % (vr(t + 2 * p, 2), vr(t + 2 * p, 2), vr(k + 4, 2), vr(k + 4, 2)))
            for j in range(4):
                a("v_rcp_f32 v%d, v%d" % (t + j, t + j))
            for p in range(2):
                a("v_pk_mul_f32 %s, %s, %s" % (vr(t + 4 + 2 * p, 2), vr(t + 4 + 2 * p, 2), vr(t + 2 * p, 2)))
            for p in range(2):
                a("v_cvt_pk_bf16_f32 v%d, v%d, v%d" % (out + 2 * i + p, t + 4 + 2 * p, t + 5 + 2 * p))
        l1, l2 = a.newlabel("K1_FS"), a.newlabel("K1_FS")
        a("s_cmp_lg_u32 s67, 0")
        a("s_cbranch_scc1 %s" % l1)
        a("buffer_store_dwordx4 %s, v%d, s[%d:%d], s61 offen offset:%d %s" % (vr(out, 4), VA, SRD_WS, SRD_WS + 3, rb * 1024, stflag()))
        a("buffer_store_dwordx2 %s, v%d, s[%d:%d], s63 offen offset:%d %s" % (vr(out + 4, 2), VA, SRD_WS, SRD_WS + 3, rb * 1024, stflag()))
        a("s_branch %s" % l2)
        a.label(l1)
        a("buffer_store_dwordx4 %s, v%d, s[%d:%d], s62 offen offset:%d %s" % (vr(out + 2, 4), VA, SRD_WS, SRD_WS + 3, rb * 1024, stflag()))
        a("buffer_store_dwordx2 %s, v%d, s[%d:%d], s63 offen offset:%d %s" % (vr(out, 2), VA, SRD_WS, SRD_WS + 3, rb * 1024 + 8, stflag()))
        a.label(l2)
    fin_compute(a)

def epi_q(a, acc, RS):
    K = T0
    for rb in range(4):
        a("v_mov_b32 v%d, v%d" % (K + 4 * rb, RS + rb))
        a("v_mul_f32 v%d, %s, v%d" % (K + 4 * rb + 2, f32bits(LOG2E), RS + rb))
    VA = 9
    a("v_lshlrev_b32 v%d, 4, v14" % VA)
    a("v_bfe_u32 v10, v0, 4, 1")
    a("v_lshl_add_u32 v%d, v10, 9, v%d" % (VA, VA))
    a("v_lshrrev_b32 v10, 5, v0")
    a("v_lshl_add_u32 v%d, v10, 3, v%d" % (VA, VA))
    a("s_lshl_b32 s61, s%d, 2" % S_MT)
    a("s_add_u32 s61, s61, s60")
    a("s_mul_i32 s61, s61, %d" % (40 * 2048))
    a("s_mul_i32 s62, s%d, %d" % (S_GRP, 10 * 2048))
    a("s_add_u32 s61, s61, s62")
    a("s_mul_i32 s62, s67, %d" % (5 * 2048))
    a("s_add_u32 s61, s61, s62")
    a("s_add_u32 s61, s61, %d" % WS_PQ)
    a("s_mov_b32 s64, %s" % f32bits(1e-6))
    a("s_mov_b32 s65, %s" % f32bits(1e-6))
    T = T0 + 16
    n = 0
    for t in range(5):
        a("s_add_u32 s62, s61, %d" % (t * 2048))
        for rb in range(4):
            D = acc(t, rb); k = K + 4 * rb
            out = T0 + 32 + 2 * (n & 7); n += 1
            for p in range(2):
                a("v_pk_mul_f32 %s, %s, %s op_sel_hi:[1,0]" % (vr(T + 2 * p, 2), vr(D + 2 * p, 2), vr(k + 2, 2)))
            for p in range(2):
                a("v_pk_fma_f32 %s, %s, %s, s[64:65] op_sel_hi:[1,0,1]" % (vr(T + 4 + 2 * p, 2), vr(D + 2 * p, 2), vr(k, 2)))
            for j in range(4):
                a("v_exp_f32 v%d, v%d clamp" % (T + j, T + j))
            for j in range(4):
                a("v_max_f32 v%d, s64, v%d" % (T + 4 + j, T + 4 + j))
            for p in range(2):
                a("v_pk_add_f32 %s, %s, %s" % (vr(T + 2 * p, 2), vr(T + 2 * p, 2), vr(T + 4 + 2 * p, 2)))
            for p in range(2):
                a("v_cvt_pk_bf16_f32 v%d, v%d, v%d" % (out + p, T + 2 * p, T + 2 * p + 1))
            a("buffer_store_dwordx2 %s, v%d, s[%d:%d], s62 offen offset:%d %s" % (vr(out, 2), VA, SRD_WS, SRD_WS + 3, (rb >> 1) * 1024 + (rb & 1) * 256, stflag()))
    fin_compute(a)

FRL = 0
def epi_kv(a, acc):
    RR = T0 + 40
    a("v_lshl_add_u32 v9, v15, 4, s61")
    for rb in range(4):
        a("ds_read_b128 %s, v9 offset:%d" % (vr(RR + 4 * rb, 4), 1024 + rb * 64))
    VA = 9
    a("s_lshl_b32 s61, s60, 11")
    a("s_mul_i32 s62, s67, %d" % (3 * 8192))
    a("s_add_u32 s61, s61, s62")
    a("v_lshl_add_u32 v10, v0, 4, s61")
    a("s_lshl_b32 s62, s67, 14")
    a("v_add_u32 v11, s62, v10")
    a("s_mov_b32 s64, %s" % f32bits(1e-6))
    a("s_mov_b32 s65, %s" % f32bits(1e-6))
    a("s_mov_b32 s62, %s" % f32bits(LOG2E))
    a("s_mov_b32 s63, %s" % f32bits(LOG2E))
    a("s_cmp_eq_u32 s67, 0")
    a("s_cselect_b64 s[68:69], -1, 0")
    a("s_waitcnt lgkmcnt(0)")
    T = T0 + 16
    po = [0, 1, 2, 5, 6]
    n = 0
    def tile(t, isv):
        nonlocal n
        for R in range(2):
            out = T0 + 4 * (n & 3); n += 1
            for h in range(2):
                rb = 2 * R + h
                D = acc(t, rb); rr = RR + 4 * rb
                if isv:
                    for p in range(2):
                        a("v_pk_mul_f32 %s, %s, %s" % (vr(T + 2 * p, 2), vr(D + 2 * p, 2), vr(rr + 2 * p, 2)))
                else:
                    for p in range(2):
                        a("v_pk_mul_f32 %s, %s, %s" % (vr(T + 8 + 2 * p, 2), vr(D + 2 * p, 2), vr(rr + 2 * p, 2)))
                    for p in range(2):
                        a("v_pk_mul_f32 %s, %s, s[62:63]" % (vr(T + 2 * p, 2), vr(T + 8 + 2 * p, 2)))
                    for p in range(2):
                        a("v_pk_add_f32 %s, %s, s[64:65]" % (vr(T + 4 + 2 * p, 2), vr(T + 8 + 2 * p, 2)))
                    for j in range(4):
                        a("v_exp_f32 v%d, v%d clamp" % (T + j, T + j))
                    for j in range(4):
                        a("v_max_f32 v%d, s64, v%d" % (T + 4 + j, T + 4 + j))
                    for p in range(2):
                        a("v_pk_add_f32 %s, %s, %s" % (vr(T + 2 * p, 2), vr(T + 2 * p, 2), vr(T + 4 + 2 * p, 2)))
                for p in range(2):
                    a("v_cvt_pk_bf16_f32 v%d, v%d, v%d" % (out + 2 * h + p, T + 2 * p, T + 2 * p + 1))
            a("ds_write_b128 v%d, %s offset:%d" % (11 if t == 2 else 10, vr(out, 4), FRL + po[t] * 8192 + R * 1024))
    tile(3, True); tile(4, True); tile(0, False); tile(1, False)
    a("s_cmp_lg_u32 s67, 0")
    a("s_cbranch_scc1 K1_KV_T2V")
    tile(2, False)
    a("s_branch K1_KV_T2E")
    a.label("K1_KV_T2V"); a.flush()
    tile(2, True)
    a.label("K1_KV_T2E"); a.flush()
    a("s_waitcnt lgkmcnt(0)")
    a("s_barrier")
    gen_kvjob(a)

def gen_kvjob(a):
    w = S_WAVE
    a("v_lshlrev_b32 v2, 4, v0")
    a("s_sub_u32 s61, s%d, 5" % w)
    a("s_add_u32 s62, s61, 1")
    a("s_cmp_lt_u32 s%d, 5" % w)
    a("s_cselect_b32 s63, s%d, s61" % w)
    a("s_cselect_b32 s64, s%d, s62" % w)
    a("s_cselect_b32 s65, s%d, s62" % w)
    a("s_cselect_b32 s66, s%d, s61" % w)
    a("s_cselect_b32 s70, 1, 0")
    a("s_add_u32 s71, s%d, 3" % w)
    a("s_sub_u32 s72, 4, s%d" % w)
    a("s_lshl_b32 s74, s%d, 6" % S_MT)
    a("s_lshl_b32 s75, s%d, 3" % S_GRP)
    a("s_add_u32 s74, s74, s75")
    a("s_lshl_b32 s74, s74, 11")
    a("s_add_u32 s74, s74, %d" % WS_KVP)
    a("v_mov_b32 v13, %d" % OOB)
    A0, B0, D = 16, 48, 80
    def job(sa, sb, zflag, tag):
        a("s_lshl_b32 s76, s%d, 13" % sa)
        a("v_add_u32 v3, s76, v2")
        a("s_lshl_b32 s77, s%d, 13" % sb)
        a("s_add_u32 s77, s77, %d" % (5 * 8192))
        a("v_add_u32 v4, s77, v2")
        for k in range(8):
            a("ds_read_b128 %s, v3 offset:%d" % (vr(A0 + 4 * k, 4), FRL + k * 1024))
        for k in range(8):
            a("ds_read_b128 %s, v4 offset:%d" % (vr(B0 + 4 * k, 4), FRL + k * 1024))
        a("s_lshl_b32 s77, s%d, 4" % sb)
        a("v_add_u32 v6, s77, v14")
        divmod_const(a, 7, 8, 6, 20, 128)
        a("v_cmp_le_u32 vcc, 10, v8")
        a("v_cndmask_b32 v9, 0, 1, vcc")
        a("v_mul_u32_u24 v10, 10, v9")
        a("v_sub_u32 v10, v8, v10")
        a("v_lshrrev_b32 v11, 2, v10")
        a("v_lshlrev_b32 v11, 3, v11")
        a("v_lshl_add_u32 v11, v9, 2, v11")
        a("v_and_b32 v12, 3, v10")
        a("v_add_u32 v11, v11, v12")
        if zflag:
            lab = "K1_KVJ_NZ" + tag
            a("s_cmp_eq_u32 s%d, 0" % zflag)
            a("s_cbranch_scc1 %s" % lab)
            a("s_waitcnt lgkmcnt(0)")
            for r in range(32):
                a("v_mov_b32 v%d, 0x3f803f80" % (B0 + r))
            a("v_lshrrev_b32 v7, 1, v14")
            a("v_and_b32 v11, 1, v14")
            a("v_lshlrev_b32 v11, 2, v11")
            a("v_add_u32 v11, 18, v11")
            a("v_cmp_gt_u32 vcc, 8, v14")
            a("v_cndmask_b32 v7, 64, v7, vcc")
            a.label(lab)
        a("v_sub_u32 v12, s%d, v7" % sa)
        a("v_cmp_gt_u32 vcc, 2, v12")
        a("v_lshl_add_u32 v12, v7, 1, v12")
        a("v_lshl_add_u32 v11, v12, 6, v11")
        a("v_and_b32 v12, 1, v15")
        a("v_lshl_add_u32 v11, v12, 5, v11")
        a("v_lshlrev_b32 v11, 5, v11")
        a("v_lshrrev_b32 v12, 1, v15")
        a("v_lshl_add_u32 v11, v12, 4, v11")
        a("v_cndmask_b32 v11, v13, v11, vcc")
        a("s_waitcnt lgkmcnt(0)")
        for k in range(8):
            a("v_mfma_f32_16x16x32_bf16 %s, %s, %s, %s" % (vr(D, 4), vr(A0 + 4 * k, 4), vr(B0 + 4 * k, 4), vr(D, 4) if k else "0"))
        a("buffer_store_dwordx4 %s, v11, s[%d:%d], s74 offen %s" % (vr(D, 4), SRD_WS, SRD_WS + 3, stflag()))
        a.nops(2)
    job(63, 64, 0, "0")
    job(65, 66, 70, "1")
    a("s_cmp_ge_u32 s%d, 2" % w)
    a("s_cbranch_scc1 K1_KVJ_DONE")
    job(71, 72, 0, "2")
    a.label("K1_KVJ_DONE")
    fin_compute(a)

def gen_packer(a):
    pst = CFG.get("pk_st", "sc1")
    a("s_sub_u32 s60, s29, 4")
    a("s_lshl_b32 s60, s60, 2")
    a("s_add_u32 s60, s60, s52")
    a("s_mul_i32 s60, s60, 12")
    a("s_add_u32 s60, s60, s%d" % S_WAVE)
    a("s_cmp_lg_u32 s60, 0")
    a("s_cbranch_scc1 K1_PK_NOTAG")
    srd(a, SRD_DBG, S_DBG, 256)
    a("s_memrealtime s[72:73]")
    a("s_waitcnt lgkmcnt(0)")
    a("s_or_b32 s72, s72, 1")
    a("v_mov_b32 v2, s72")
    a("s_mov_b64 exec, 1")
    a("buffer_store_dword v2, off, s[%d:%d], 0 sc0 sc1" % (SRD_DBG, SRD_DBG + 3))
    a("s_mov_b64 exec, -1")
    a.label("K1_PK_NOTAG")
    srd(a, SRD_W0, S_WD, 1728 * 1280)
    srd(a, SRD_W1, S_WO, 640 * 1280)
    a("s_mul_i32 s61, s%d, 10240" % S_WAVE)
    for i in range(10):
        a("v_add_u32 v2, %d, v0" % (64 * i))
        divmod_const(a, 20 + i, 3, 2, 20, 640)
        a("v_lshlrev_b32 v%d, 4, v3" % (30 + i))
    a("v_lshrrev_b32 v2, 4, v0")
    a("v_bfe_u32 v3, v0, 2, 2")
    a("v_lshl_add_u32 v2, v2, 3, v3")
    a("v_mul_u32_u24 v2, 320, v2")
    a("v_and_b32 v3, 3, v0")
    a("v_lshl_add_u32 v2, v3, 3, v2")
    a("v_add_u32 v10, s61, v2")
    a("v_lshlrev_b32 v11, 4, v0")
    a("s_cmp_ge_u32 s60, 64")
    a("s_cbranch_scc1 K1_PK_NOPOI")
    for r in range(4):
        a("v_mov_b32 v%d, -1" % (12 + r))
    a("s_lshl_b32 s62, s60, 10")
    a("s_add_u32 s62, s62, %d" % WS_KVF)
    a("buffer_store_dwordx4 v[12:15], v11, s[%d:%d], s62 offen sc0 sc1" % (SRD_WS, SRD_WS + 3))
    a.label("K1_PK_NOPOI")
    a("s_mov_b32 s70, 0")
    a.label("K1_PK_LOOP")
    a("s_lshr_b32 s62, s60, 2")
    a("s_and_b32 s63, s60, 3")
    a("s_mul_i32 s64, s63, 320")
    a("s_cmp_ge_u32 s62, 54")
    a("s_cbranch_scc1 K1_PK_O")
    a("s_mul_i32 s65, s62, %d" % (32 * 1280))
    a("s_add_u32 s64, s64, s65")
    for i in range(10):
        r = 20 + i
        a("v_and_b32 v2, 3, v%d" % r)
        a("v_lshrrev_b32 v3, 3, v%d" % r)
        a("v_lshl_add_u32 v2, v3, 2, v2")
        a("v_bfe_u32 v3, v%d, 2, 1" % r)
        a("v_lshl_add_u32 v2, v3, 4, v2")
        a("v_mul_u32_u24 v2, 1280, v2")
        a("v_add_u32 v2, v2, v%d" % (30 + i))
        a("s_add_u32 m0, s61, %d" % (i * 1024))
        a("buffer_load_dwordx4 v2, s[%d:%d], s64 offen lds" % (SRD_W0, SRD_W0 + 3))
    a("s_branch K1_PK_GO")
    a.label("K1_PK_O"); a.flush()
    a("s_sub_u32 s65, s62, 54")
    a("s_mul_i32 s66, s65, 52")
    a("s_lshr_b32 s66, s66, 8")
    a("s_mul_i32 s67, s66, 5")
    a("s_sub_u32 s67, s65, s67")
    a("s_lshl_b32 s67, s67, 4")
    a("s_mul_i32 s66, s66, %d" % (160 * 1280))
    a("s_add_u32 s64, s64, s66")
    for i in range(10):
        r = 20 + i
        a("v_and_b32 v2, 15, v%d" % r)
        a("v_add_u32 v2, s67, v2")
        divmod_const(a, 3, 4, 2, 10, 80)
        a("v_mul_u32_u24 v3, 20, v3")
        a("v_add_u32 v3, v3, v4")
        a("v_lshrrev_b32 v4, 4, v%d" % r)
        a("v_mul_u32_u24 v4, 10, v4")
        a("v_add_u32 v3, v3, v4")
        a("v_mul_u32_u24 v2, 1280, v3")
        a("v_add_u32 v2, v2, v%d" % (30 + i))
        a("s_add_u32 m0, s61, %d" % (i * 1024))
        a("buffer_load_dwordx4 v2, s[%d:%d], s64 offen lds" % (SRD_W1, SRD_W1 + 3))
    a.label("K1_PK_GO"); a.flush()
    def stores(base, sreg):
        for c in range(10):
            off = (c // 5) * 74 * 5120 + (c % 5) * 1024
            a("s_add_u32 s66, s%d, %d" % (sreg, off))
            a("buffer_store_dwordx4 %s, v11, s[%d:%d], s66 offen %s" % (vr(base + 4 * c, 4), SRD_WS, SRD_WS + 3, pst))
    def trreads(base):
        for c in range(10):
            a("ds_read_b64_tr_b16 %s, v10 offset:%d" % (vr(base + 4 * c, 2), c * 32))
            a("ds_read_b64_tr_b16 %s, v10 offset:%d" % (vr(base + 2 + 4 * c, 2), c * 32 + 4 * 320))
    a("s_lshl_b32 s65, s63, 1")
    a("s_mul_i32 s65, s65, 74")
    a("s_add_u32 s65, s65, s62")
    a("s_mul_i32 s65, s65, 5120")
    a("s_add_u32 s65, s65, %d" % WS_W2P)
    a("s_cmp_eq_u32 s70, 1")
    a("s_cbranch_scc1 K1_PK_SECOND")
    a("s_waitcnt vmcnt(0)")
    trreads(40)
    a("s_mov_b32 s71, s65")
    a("s_mov_b32 s70, 1")
    a("s_add_u32 s60, s60, 192")
    a("s_waitcnt lgkmcnt(0)")
    a("s_cmp_lt_u32 s60, 296")
    a("s_cbranch_scc1 K1_PK_LOOP")
    stores(40, 71)
    a("s_branch K1_PK_FIN")
    a.label("K1_PK_SECOND"); a.flush()
    stores(40, 71)
    a("s_waitcnt vmcnt(10)")
    trreads(80)
    a("s_waitcnt lgkmcnt(0)")
    stores(80, 65)
    a.label("K1_PK_FIN"); a.flush()
    if CFG.get("merged"):
        import p2
        srd(a, SRD_DBG, S_DBG, 256)
        a("s_waitcnt vmcnt(0)")
        a("s_barrier")
        a("s_cmp_lt_u32 s%d, 8" % S_WAVE)
        a("s_cbranch_scc1 K1_END")
        a("s_mov_b32 s73, 0")
        a.label("K1_PK_TAG")
        a("buffer_load_dword v13, off, s[%d:%d], 0 sc1" % (SRD_DBG, SRD_DBG + 3))
        a("s_waitcnt vmcnt(0)")
        a("v_readfirstlane_b32 s78, v13")
        a("s_add_u32 s73, s73, 1")
        a("s_cmp_gt_u32 s73, 200000")
        a("s_cbranch_scc1 K1_PK_TAGOK")
        a("s_cmp_eq_u32 s78, 0")
        a("s_cbranch_scc1 K1_PK_TAG")
        a.label("K1_PK_TAGOK")
        a("s_sub_u32 s60, s%d, 8" % S_WAVE)
        a("s_cmp_lg_u32 s60, 0")
        a("s_cbranch_scc1 K1_PK_NOFLAG")
        a("s_sub_u32 s72, s29, 4")
        a("s_lshl_b32 s72, s72, 2")
        a("s_add_u32 s72, s72, s52")
        a("s_lshl_b32 s72, s72, 7")
        a("s_add_u32 s72, s72, %d" % WS_PKF)
        a("s_mov_b64 exec, 1")
        a("buffer_store_dword v13, off, s[%d:%d], s72 sc0 sc1" % (SRD_WS, SRD_WS + 3))
        a("s_mov_b64 exec, -1")
        a.label("K1_PK_NOFLAG")
        p2.setup(a, CFG)
        a("s_mov_b32 s79, 1")
        a("s_branch P2_ENTRY")
        return
    stamp_flush(a, 0, S_WAVE, 1)
    a("s_endpgm")
```

```python
from asmlib import *
import k1
from k1 import stamp, stamp_flush
from k1 import WS_H, WS_PQ, WS_W2P, WS_KVP, WS_KVF, WS_END, OOB, srd, f32bits

K2_LDS = 4 * 3 * 5120

S_X, S_OUT, S_DBG, S_WS = 4, 18, 20, 22
SRD_X, SRD_OUT, SRD_DBG, SRD_WS = 32, 36, 40, 48
S_W, S_MT, S_NT = 24, 25, 26
S_HB, S_WB, S_PB, S_KB, S_WO = 52, 53, 54, 55, 56
ACC = 16
DT = [96, 112]
V_A = 2
V_B = 6
V_P = 7
V_POLL = 9
V_XO = 10
V_T = 11

class Sched:
    def __init__(self, a, slots):
        self.a = a
        self.free = list(slots)
        self.issued = 0
        self.pos = {}
        self.reg = {}
    def alloc(self, name):
        r = self.free.pop(0)
        self.reg[name] = r
        return r
    def release(self, name):
        self.free.append(self.reg.pop(name))
    def wait(self, names):
        last = max(self.pos[n] for n in names)
        n = self.issued - 1 - last
        self.a("s_waitcnt vmcnt(%d)" % min(n, 63))

def gen_k2(a0, name, cfg):
    class Flt:
        active = False
        def __call__(self, t):
            if self.active:
                if cfg.get("k2_nomfma") and t.startswith("v_mfma"): return
                if cfg.get("k2_noload") and t.startswith("buffer_load_dwordx4"): return
                if cfg.get("k2_novalu") and t.startswith("v_") and not t.startswith(("v_mfma", "v_readfirst")): return
            a0(t)
        def __getattr__(self, n): return getattr(a0, n)
    a = Flt()
    a.raw(".globl %s\n.p2align 8\n.type %s,@function\n%s:" % (name, name, name))
    a.flush()
    a("s_cmp_ge_u32 s2, 256")
    a("s_cbranch_scc1 K2_END")
    a("s_load_dwordx2 s[4:5], s[0:1], 0")
    a("s_load_dwordx2 s[18:19], s[0:1], 56")
    a("s_load_dwordx4 s[20:23], s[0:1], 64")
    a("v_lshrrev_b32 v1, 6, v0")
    a("v_and_b32 v0, 63, v0")
    a("v_readfirstlane_b32 s%d, v1" % S_W)
    a("s_and_b32 s29, s2, 7")
    a("s_lshr_b32 s30, s2, 3")
    if cfg.get("k2_xm", 8) == 8:
        a("s_lshl_b32 s31, s29, 2")
        a("s_and_b32 s27, s30, 3")
        a("s_add_u32 s%d, s31, s27" % S_MT)
        a("s_lshr_b32 s%d, s30, 2" % S_NT)
    else:
        a("s_and_b32 s31, s29, 3")
        a("s_lshl_b32 s31, s31, 3")
        a("s_and_b32 s27, s30, 7")
        a("s_add_u32 s%d, s31, s27" % S_MT)
        a("s_lshr_b32 s31, s29, 2")
        a("s_lshl_b32 s31, s31, 2")
        a("s_lshr_b32 s27, s30, 3")
        a("s_add_u32 s%d, s31, s27" % S_NT)
    a("v_lshlrev_b32 v%d, 4, v0" % V_B)
    for rb in range(4):
        a("s_xor_b32 s27, s%d, %d" % (S_W, rb))
        a("s_lshl_b32 s27, s27, 10")
        a("v_add_u32 v%d, s27, v%d" % (V_A + rb, V_B))
    a("s_and_b32 s27, s%d, 1" % S_W)
    a("s_lshl_b32 s27, s27, 8")
    a("v_xor_b32 v%d, s27, v%d" % (V_T, V_B))
    a("s_lshr_b32 s27, s%d, 1" % S_W)
    a("s_lshl_b32 s28, s27, 10")
    a("v_add_u32 v%d, s28, v%d" % (V_P, V_T))
    a("s_xor_b32 s28, s28, 1024")
    a("v_add_u32 v%d, s28, v%d" % (V_P + 1, V_T))
    a("s_mul_i32 s%d, s%d, %d" % (S_HB, S_MT, 54 * 4096))
    a("s_mul_i32 s%d, s%d, %d" % (S_WB, S_NT, 74 * 5120))
    a("s_add_u32 s%d, s%d, %d" % (S_WB, S_WB, WS_W2P))
    a("s_mul_i32 s27, s%d, %d" % (S_W, 5 * 5120))
    a("s_add_u32 s%d, s%d, s27" % (S_WO, S_WB))
    a("s_add_u32 s%d, s%d, %d" % (S_WO, S_WO, 54 * 5120))
    a("s_and_b32 s27, s%d, 1" % S_W)
    a("s_add_u32 s27, s27, 52")
    a("s_lshl_b32 s28, s27, 12")
    a("s_add_u32 s57, s%d, s28" % S_HB)
    a("s_mul_i32 s28, s27, 5120")
    a("s_add_u32 s58, s%d, s28" % S_WB)
    a("s_mul_i32 s27, s%d, %d" % (S_W, 13 * 4096))
    a("s_add_u32 s%d, s%d, s27" % (S_HB, S_HB))
    a("s_mul_i32 s27, s%d, %d" % (S_W, 13 * 5120))
    a("s_add_u32 s%d, s%d, s27" % (S_WB, S_WB))
    a("s_mul_i32 s%d, s%d, %d" % (S_PB, S_MT, 40 * 2048))
    a("s_mul_i32 s27, s%d, %d" % (S_W, 10 * 2048))
    a("s_add_u32 s%d, s%d, s27" % (S_PB, S_PB))
    a("s_add_u32 s%d, s%d, %d" % (S_PB, S_PB, WS_PQ))
    a("s_lshl_b32 s%d, s%d, 14" % (S_KB, S_W))
    a("s_add_u32 s%d, s%d, %d" % (S_KB, S_KB, WS_KVF))
    a("s_lshl_b32 s59, s%d, 6" % S_W)
    a("v_and_b32 v%d, 15, v0" % V_T)
    a("v_mul_u32_u24 v%d, 1280, v%d" % (V_XO, V_T))
    a("v_lshrrev_b32 v%d, 4, v0" % V_T)
    a("v_lshl_add_u32 v%d, v%d, 3, v%d" % (V_XO, V_T, V_XO))
    a("s_lshl_b32 s27, s%d, 2" % S_MT)
    a("s_add_u32 s27, s27, s%d" % S_W)
    a("s_mul_i32 s27, s27, %d" % (16 * 1280))
    a("s_mul_i32 s28, s%d, 160" % S_NT)
    a("s_add_u32 s60, s27, s28")
    a("s_waitcnt lgkmcnt(0)")
    stamp(a, 0)
    if cfg.get("dbgspan"): a("s_memrealtime s[84:85]")
    srd(a, SRD_WS, S_WS, WS_END)
    srd(a, SRD_X, S_X, 2048 * 1280)
    srd(a, SRD_OUT, S_OUT, 2048 * 1280)
    a("s_cmp_lt_u32 s2, 64")
    a("s_cselect_b32 s61, 1, 0")
    a("s_cmp_eq_u32 s%d, 0" % S_W)
    a("s_cselect_b32 s61, s61, 0")
    a("s_cmp_eq_u32 s61, 0")
    a("s_cbranch_scc1 K2_NORED1")
    a("s_lshr_b32 s62, s2, 1")
    a("s_and_b32 s62, s62, 3")
    a("s_and_b32 s63, s2, 1")
    a("s_add_u32 s63, s63, s62")
    a("s_lshl_b32 s63, s63, 4")
    a("s_mul_i32 s62, s62, 20")
    a("s_sub_i32 s63, s63, s62")
    a("v_lshrrev_b32 v%d, 5, v0" % V_T)
    a("v_lshlrev_b32 v%d, 2, v%d" % (V_T, V_T))
    a("v_add_u32 v%d, s63, v%d" % (V_T, V_T))
    a("v_bfe_u32 v%d, v0, 3, 2" % (V_T + 1))
    a("v_and_b32 v%d, 3, v0" % (V_T + 2))
    a("v_lshl_add_u32 v%d, v%d, 2, v%d" % (V_T + 1, V_T + 1, V_T + 2))
    a("v_cmp_ge_u32 s[64:65], 10, v%d" % (V_T + 1))
    a("v_lshlrev_b32 v%d, 5, v0" % (V_T + 1))
    a("v_mov_b32 v%d, %d" % (V_T + 2, OOB))
    a("v_cmp_gt_u32 vcc, 20, v%d" % V_T)
    a("s_and_b64 vcc, vcc, s[64:65]")
    a("v_cndmask_b32 v%d, v%d, v%d, vcc" % (V_T + 3, V_T + 2, V_T + 1))
    a("v_add_u32 v%d, 8, v%d" % (V_T, V_T))
    a("v_cmp_gt_u32 vcc, 20, v%d" % V_T)
    a("s_and_b64 vcc, vcc, s[64:65]")
    a("v_cndmask_b32 v%d, v%d, v%d, vcc" % (V_T + 4, V_T + 2, V_T + 1))
    a("s_lshl_b32 s62, s2, 11")
    a("s_add_u32 s62, s62, %d" % WS_KVP)
    for mt in range(8):
        a("s_add_u32 s63, s62, %d" % (mt * 64 * 2048))
        a("buffer_load_dwordx4 %s, v%d, s[%d:%d], s63 offen" % (vr(ACC + 8 * mt, 4), V_T + 3, SRD_WS, SRD_WS + 3))
        a("buffer_load_dwordx4 %s, v%d, s[%d:%d], s63 offen offset:16" % (vr(ACC + 8 * mt + 4, 4), V_T + 4, SRD_WS, SRD_WS + 3))
    a.label("K2_NORED1")
    if cfg.get("k2_pf", 0):
        a("v_lshlrev_b32 v%d, 7, v0" % V_T)
        a("v_mov_b32 v%d, %d" % (V_T + 1, OOB))
        a("v_cmp_gt_u32 vcc, 54, v0")
        a("v_cndmask_b32 v%d, v%d, v%d, vcc" % (V_T + 2, V_T + 1, V_T))
        a("v_cmp_gt_u32 vcc, 20, v0")
        a("v_cndmask_b32 v%d, v%d, v%d, vcc" % (V_T + 1, V_T + 1, V_T))
        a("s_lshl_b32 s62, s%d, 2" % S_NT)
        a("s_add_u32 s62, s62, s%d" % S_W)
        a("s_mul_i32 s63, s62, %d" % (54 * 128))
        a("s_mul_i32 s64, s%d, %d" % (S_MT, 54 * 4096))
        a("s_add_u32 s63, s63, s64")
        a("buffer_load_dword v%d, v%d, s[%d:%d], s63 offen" % (V_POLL, V_T + 2, SRD_WS, SRD_WS + 3))
        a("s_mul_i32 s63, s62, %d" % (20 * 128))
        a("s_mul_i32 s64, s%d, %d" % (S_MT, 40 * 2048))
        a("s_add_u32 s63, s63, s64")
        a("s_add_u32 s63, s63, %d" % WS_PQ)
        a("buffer_load_dword v%d, v%d, s[%d:%d], s63 offen" % (V_POLL, V_T + 1, SRD_WS, SRD_WS + 3))
    slots = list(range(128, 256, 4)) + list(range(96, 128, 4))
    S = Sched(a, slots)
    loads = []
    def L(name, fn): loads.append((name, fn))
    def hstep_loads(i):
        half = (i == 13)
        nrb = 2 if half else 4
        def pre():
            if half:
                a("s_mov_b32 s62, s57"); a("s_mov_b32 s63, s58")
            else:
                a("s_add_u32 s62, s%d, %d" % (S_HB, i * 4096)); a("s_add_u32 s63, s%d, %d" % (S_WB, i * 5120))
            a("s_add_u32 s64, s63, 4096")
        first = True
        order = [("B", 0), ("A", 0), ("A", 1), ("B", 1), ("A", 2), ("B", 2), ("A", 3), ("B", 3), ("B", 4)]
        for kind, j in order:
            if kind == "A" and j >= nrb:
                continue
            nm = "H%d%s%d" % (i, kind, j)
            def fn(r, kind=kind, j=j, first=first):
                if first: pre()
                if kind == "A":
                    a("buffer_load_dwordx4 %s, v%d, s[%d:%d], s62 offen" % (vr(r, 4), V_A + j, SRD_WS, SRD_WS + 3))
                elif j < 4:
                    a("buffer_load_dwordx4 %s, v%d, s[%d:%d], s63 offen offset:%d" % (vr(r, 4), V_B, SRD_WS, SRD_WS + 3, j * 1024))
                else:
                    a("buffer_load_dwordx4 %s, v%d, s[%d:%d], s64 offen" % (vr(r, 4), V_B, SRD_WS, SRD_WS + 3))
            L(nm, fn)
            first = False
    def pq_load(b, R):
        def fn(r):
            a("s_add_u32 s62, s%d, %d" % (S_PB, b * 2048))
            a("buffer_load_dwordx4 %s, v%d, s[%d:%d], s62 offen" % (vr(r, 4), V_P + R, SRD_WS, SRD_WS + 3))
        L("P%d_%d" % (b, R), fn)
    def kv_load(f):
        def fn(r):
            a("s_add_u32 s62, s%d, %d" % (S_KB, f * 1024))
            a("buffer_load_dwordx4 %s, v%d, s[%d:%d], s62 offen %s" % (vr(r, 4), V_B, SRD_WS, SRD_WS + 3, cfg.get("k2_kvflag", "sc1")))
        L("K%d" % f, fn)
    def wo_load(phi, cb):
        def fn(r):
            a("s_add_u32 s62, s%d, %d" % (S_WO, phi * 5120 + cb * 1024))
            a("buffer_load_dwordx4 %s, v%d, s[%d:%d], s62 offen" % (vr(r, 4), V_B, SRD_WS, SRD_WS + 3))
        L("W%d_%d" % (phi, cb), fn)
    def x_load(cb):
        def fn(r):
            a("buffer_load_dwordx2 %s, v%d, s[%d:%d], s60 offen offset:%d" % (vr(r, 2), V_XO, SRD_X, SRD_X + 3, cb * 32))
        L("X%d" % cb, fn)

    NH1 = cfg.get("k2_nh1", 8)
    POLL_AT = cfg.get("k2_poll", 7)
    blocks = []
    for i in range(NH1):
        hstep_loads(i); blocks.append(("H", i))
    L("CHECK", None)
    seen = set()
    gdone = 0
    hnext = NH1
    for hh in range(8):
        b0 = 5 * (hh >> 2) + (hh & 3)
        for b in (b0, b0 + 1):
            if b not in seen:
                seen.add(b)
                pq_load(b, 0); pq_load(b, 1)
        kv_load(2 * hh); kv_load(2 * hh + 1)
        blocks.append(("OA", hh))
        if gdone < 5 and (16 * gdone + 15) // 10 <= hh - 1:
            for cb in range(5):
                wo_load(gdone, cb)
            blocks.append(("G", gdone))
            gdone += 1
        elif hnext < 14:
            hstep_loads(hnext); blocks.append(("H", hnext)); hnext += 1
        blocks.append(("OB", hh))
    while gdone < 5 or hnext < 14:
        if hnext < 14:
            hstep_loads(hnext); blocks.append(("H", hnext)); hnext += 1
        if gdone < 5:
            for cb in range(5):
                wo_load(gdone, cb)
            blocks.append(("G", gdone))
            gdone += 1
    for cb in range(5):
        x_load(cb)
    lp = [0]
    reserve = [0]
    dt_reserved = [False]
    def try_issue(maxn):
        n = 0
        while lp[0] < len(loads) and n < maxn:
            nm, fn = loads[lp[0]]
            if nm == "CHECK":
                stamp(a, 2)
                lp[0] += 1
                dt_reserved[0] = True
                reserve[0] = cfg.get("k2_resv", 8)
                continue
            avail = [r for r in S.free if not (dt_reserved[0] and 96 <= r < 128)]
            if len(avail) <= reserve[0]:
                break
            r = avail[0]
            S.free.remove(r); S.reg[nm] = r
            fn(r)
            S.pos[nm] = S.issued; S.issued += 1; lp[0] += 1
            n += 1
        return n
    a.active = True
    try_issue(cfg.get("k2_pro", 27))
    n0 = S.issued
    a.active = False
    a("s_cmp_eq_u32 s61, 0")
    a("s_cbranch_scc1 K2_NORED2")
    a("s_waitcnt vmcnt(%d)" % n0)
    for mt in range(1, 8):
        for j in range(0, 8, 2):
            a("v_pk_add_f32 %s, %s, %s" % (vr(ACC + j, 2), vr(ACC + j, 2), vr(ACC + 8 * mt + j, 2)))
    for j in range(4):
        a("v_cvt_pk_bf16_f32 v%d, v%d, v%d" % (ACC + 8 + j, ACC + 2 * j, ACC + 2 * j + 1))
    a("s_lshl_b32 s70, s2, 10")
    a("s_add_u32 s70, s70, %d" % WS_KVF)
    a("buffer_store_dwordx4 %s, v%d, s[%d:%d], s70 offen sc0 sc1" % (vr(ACC + 8, 4), V_B, SRD_WS, SRD_WS + 3))
    a.label("K2_NORED2")
    a.nops(2)
    a.active = True
    if k1.STAMP: a("s_memtime s[96:97]")
    def acc(rb, cb): return ACC + (rb * 5 + cb) * 4
    started = set()
    def mf(rb, cb, A, B):
        c = vr(acc(rb, cb), 4) if (rb, cb) in started else "0"
        started.add((rb, cb))
        return "v_mfma_f32_16x16x32_bf16 %s, %s, %s, %s" % (vr(acc(rb, cb), 4), vr(A, 4), vr(B, 4), c)
    opiece = {}
    dsel = [0]
    for kind, arg in blocks:
        if kind == "H":
            i = arg
            nrb = 2 if i == 13 else 4
            names = ["H%dA%d" % (i, j) for j in range(nrb)] + ["H%dB%d" % (i, j) for j in range(5)]
            while any(n not in S.pos for n in names):
                assert try_issue(1) or all(n in S.pos for n in names), "deadlock in schedule H%d" % i
            S.wait(names)
            if i == 0: stamp(a, 1)
            k = 0
            for cb in range(5):
                for rb in range(nrb):
                    a(mf(rb, cb, S.reg["H%dB%d" % (i, cb)], S.reg["H%dA%d" % (i, rb)]))
                    k += 1
                    if k % 2 == 0:
                        try_issue(1)
                S.release("H%dB%d" % (i, cb))
            for j in range(nrb):
                S.release("H%dA%d" % (i, j))
        elif kind == "OA":
            hh = arg
            b0 = 5 * (hh >> 2) + (hh & 3)
            names = ["P%d_%d" % (b, R) for b in (b0, b0 + 1) for R in range(2)] + ["K%d" % (2 * hh), "K%d" % (2 * hh + 1)]
            while any(n not in S.pos for n in names):
                assert try_issue(1) or all(n in S.pos for n in names), "deadlock in schedule O%d" % hh
            S.wait(names)
            k0, k1r = S.reg["K%d" % (2 * hh)], S.reg["K%d" % (2 * hh + 1)]
            lchk, lok = a.newlabel("K2_KC"), a.newlabel("K2_KO")
            a("s_mov_b32 s66, 0")
            a.label(lchk)
            a("v_cmp_eq_u32 vcc, -1, v%d" % k0)
            a("v_cmp_eq_u32 s[68:69], -1, v%d" % k1r)
            a("s_or_b64 vcc, vcc, s[68:69]")
            a("s_cbranch_vccz %s" % lok)
            a("s_add_u32 s66, s66, 1")
            a("s_cmp_gt_u32 s66, 100000")
            a("s_cbranch_scc1 %s" % lok)
            a("s_sleep 4")
            a("s_add_u32 s70, s%d, %d" % (S_KB, 2 * hh * 1024))
            a("buffer_load_dwordx4 %s, v%d, s[%d:%d], s70 offen sc1" % (vr(k0, 4), V_B, SRD_WS, SRD_WS + 3))
            a("buffer_load_dwordx4 %s, v%d, s[%d:%d], s70 offen offset:1024 sc1" % (vr(k1r, 4), V_B, SRD_WS, SRD_WS + 3))
            a("s_waitcnt vmcnt(0)")
            a("s_branch %s" % lchk)
            a.label(lok)
            for R in range(2):
                assert all(r in S.free for r in range(DT[R], DT[R] + 16, 4)), "D temp busy"
                for i in range(2):
                    a("v_mfma_f32_32x32x16_bf16 %s, %s, %s, %s" % (vr(DT[R], 16), vr(S.reg["K%d" % (2 * hh + i)], 4), vr(S.reg["P%d_%d" % (b0 + i, R)], 4), vr(DT[R], 16) if i else "0"))
            S.release("K%d" % (2 * hh)); S.release("K%d" % (2 * hh + 1))
            S.release("P%d_0" % b0); S.release("P%d_1" % b0)
            if (hh & 3) == 3:
                S.release("P%d_0" % (b0 + 1)); S.release("P%d_1" % (b0 + 1))
            try_issue(4)
        elif kind == "OB":
            hh = arg
            for R in range(2):
                D = DT[R]
                a("v_add_f32 v%d, %s, v%d" % (D + 10, f32bits(1e-6), D + 10))
                a("v_rcp_f32 v%d, v%d" % (D + 10, D + 10))
                for j in range(0, 10, 2):
                    a("v_pk_mul_f32 %s, %s, %s op_sel_hi:[1,0]" % (vr(D + j, 2), vr(D + j, 2), vr(D + 10, 2)))
                for j in range(5):
                    d = 5 * hh + j
                    key = (R, d // 4)
                    if key not in opiece:
                        avail = [r for r in S.free if not (96 <= r < 128)]
                        assert avail, "no slot for o piece"
                        S.free.remove(avail[0]); opiece[key] = avail[0]
                    a("v_cvt_pk_bf16_f32 v%d, v%d, v%d" % (opiece[key] + d % 4, D + 2 * j, D + 2 * j + 1))
                try_issue(2)
            if hh == 7:
                dt_reserved[0] = False
                reserve[0] = 0
        elif kind == "G":
            phi = arg
            names = ["W%d_%d" % (phi, cb) for cb in range(5)]
            while any(n not in S.pos for n in names):
                assert try_issue(1) or all(n in S.pos for n in names), "deadlock in schedule G%d" % phi
            for R in range(2):
                for j in range(4):
                    a("v_permlane16_swap_b32 v%d, v%d" % (opiece[(R, 2 * phi)] + j, opiece[(R, 2 * phi + 1)] + j))
            S.wait(names)
            k = 0
            for cb in range(5):
                for rb in range(4):
                    a(mf(rb, cb, S.reg["W%d_%d" % (phi, cb)], opiece[(rb >> 1, 2 * phi + (rb & 1))]))
                    k += 1
                    if k % 2 == 0:
                        try_issue(1)
                S.release("W%d_%d" % (phi, cb))
            for R in range(2):
                for i in range(2):
                    S.free.append(opiece.pop((R, 2 * phi + i)))
    while lp[0] < len(loads):
        assert try_issue(1)
    a.active = False
    stamp(a, 3)
    if k1.STAMP: a("s_memtime s[98:99]")
    for rb in range(1, 4):
        a("s_xor_b32 s62, s%d, %d" % (S_W, rb))
        a("s_mul_i32 s62, s62, %d" % (3 * 5120))
        a("v_add_u32 v%d, s62, v%d" % (V_T + rb - 1, V_B))
    for rb in range(1, 4):
        for cb in range(5):
            a("ds_write_b128 v%d, %s offset:%d" % (V_T + rb - 1, vr(acc(rb, cb), 4), (rb - 1) * 5120 + cb * 1024))
    a("s_mul_i32 s62, s%d, %d" % (S_W, 3 * 5120))
    a("v_add_u32 v%d, s62, v%d" % (V_T + 3, V_B))
    a("s_waitcnt lgkmcnt(0)")
    a("s_barrier")
    for j in range(3):
        for cb in range(5):
            a("ds_read_b128 %s, v%d offset:%d" % (vr(acc(1 + j, cb), 4), V_T + 3, j * 5120 + cb * 1024))
    S.wait(["X%d" % cb for cb in range(5)])
    a("s_waitcnt lgkmcnt(0)")
    for cb in range(5):
        c = acc(0, cb)
        xr = S.reg["X%d" % cb]
        for j in range(1, 4):
            for p in (0, 2):
                a("v_pk_add_f32 %s, %s, %s" % (vr(c + p, 2), vr(c + p, 2), vr(acc(j, cb) + p, 2)))
        t = acc(1, cb)
        a("v_lshlrev_b32 v%d, 16, v%d" % (t, xr))
        a("v_and_b32 v%d, 0xffff0000, v%d" % (t + 1, xr))
        a("v_lshlrev_b32 v%d, 16, v%d" % (t + 2, xr + 1))
        a("v_and_b32 v%d, 0xffff0000, v%d" % (t + 3, xr + 1))
        for p in (0, 2):
            a("v_pk_add_f32 %s, %s, %s" % (vr(c + p, 2), vr(c + p, 2), vr(t + p, 2)))
        a("v_cvt_pk_bf16_f32 v%d, v%d, v%d" % (xr, c, c + 1))
        a("v_cvt_pk_bf16_f32 v%d, v%d, v%d" % (xr + 1, c + 2, c + 3))
        a("buffer_store_dwordx2 %s, v%d, s[%d:%d], s60 offen offset:%d" % (vr(xr, 2), V_XO, SRD_OUT, SRD_OUT + 3, cb * 32))
    stamp_flush(a, 1, S_W, 4)
    if cfg.get("dbgspan"):
        a("s_cmp_lg_u32 s%d, 0" % S_W)
        a("s_cbranch_scc1 K2_END")
        a("s_and_b32 s86, s2, 31")
        a("s_cmp_lg_u32 s86, 31")
        a("s_cbranch_scc1 K2_END")
        a("s_mov_b32 s50, 0x7fffffff")
        a("s_mov_b32 s86, %d" % k1.WS_ST)
        a("buffer_load_dword v2, off, s[48:51], s86")
        a("s_waitcnt vmcnt(0)")
        a("s_memrealtime s[88:89]")
        srd(a, SRD_DBG, S_DBG, 256)
        a("s_waitcnt lgkmcnt(0)")
        a("v_sub_u32 v4, s84, v2")
        a("v_sub_u32 v5, s88, v2")
        a("s_lshr_b32 s86, s2, 5")
        a("s_lshl_b32 s86, s86, 3")
        a("s_mov_b64 exec, 1")
        a("buffer_store_dwordx2 v[4:5], off, s[%d:%d], s86" % (SRD_DBG, SRD_DBG + 3))
    a.label("K2_END"); a.flush()
    a("s_endpgm")
```

```python
from asmlib import *
import k1
from k1 import WS_H, WS_PQ, WS_W2P, WS_KVP, WS_KVF, WS_FLG, WS_END, OOB, srd, f32bits, stamp, SRD_WS, SRD_X

S_OUT = 18
SRD_OUT = 36
S_W = 60
S_MT, S_NT = 61, 62
S_HB, S_WB, S_PB, S_KB, S_WO, S_HH, S_WH, S_XO, S_LB = 63, 64, 65, 66, 67, 68, 69, 70, 71
ACC = 16
V_A, V_B, V_P, V_XO, V_L, V_TAG = 2, 6, 7, 9, 10, 13
NL = 38

def setup(a, cfg):
    a("s_and_b32 s72, s2, 7")
    a("s_lshr_b32 s73, s2, 3")
    a("s_and_b32 s74, s72, 3")
    a("s_lshl_b32 s74, s74, 3")
    a("s_and_b32 s75, s73, 7")
    a("s_add_u32 s%d, s74, s75" % S_MT)
    a("s_lshr_b32 s74, s72, 2")
    a("s_lshl_b32 s74, s74, 2")
    a("s_lshr_b32 s75, s73, 3")
    a("s_add_u32 s%d, s74, s75" % S_NT)
    a("v_lshlrev_b32 v%d, 4, v0" % V_B)
    for rb in range(4):
        a("s_xor_b32 s72, s%d, %d" % (S_W, rb))
        a("s_lshl_b32 s72, s72, 10")
        a("v_add_u32 v%d, s72, v%d" % (V_A + rb, V_B))
    a("s_and_b32 s72, s%d, 1" % S_W)
    a("s_lshl_b32 s72, s72, 8")
    a("v_xor_b32 v11, s72, v%d" % V_B)
    a("s_lshr_b32 s72, s%d, 1" % S_W)
    a("s_lshl_b32 s73, s72, 10")
    a("v_add_u32 v%d, s73, v11" % V_P)
    a("s_xor_b32 s73, s73, 1024")
    a("v_add_u32 v%d, s73, v11" % (V_P + 1))
    a("s_mul_i32 s%d, s%d, %d" % (S_HB, S_MT, 54 * 4096))
    a("s_mul_i32 s%d, s%d, %d" % (S_WB, S_NT, 74 * 5120))
    a("s_add_u32 s%d, s%d, %d" % (S_WB, S_WB, WS_W2P))
    a("s_mul_i32 s72, s%d, %d" % (S_W, 5 * 5120))
    a("s_add_u32 s%d, s%d, s72" % (S_WO, S_WB))
    a("s_add_u32 s%d, s%d, %d" % (S_WO, S_WO, 54 * 5120))
    a("s_and_b32 s72, s%d, 1" % S_W)
    a("s_add_u32 s72, s72, 52")
    a("s_lshl_b32 s73, s72, 12")
    a("s_add_u32 s%d, s%d, s73" % (S_HH, S_HB))
    a("s_mul_i32 s73, s72, 5120")
    a("s_add_u32 s%d, s%d, s73" % (S_WH, S_WB))
    a("s_mul_i32 s72, s%d, %d" % (S_W, 13 * 4096))
    a("s_add_u32 s%d, s%d, s72" % (S_HB, S_HB))
    a("s_mul_i32 s72, s%d, %d" % (S_W, 13 * 5120))
    a("s_add_u32 s%d, s%d, s72" % (S_WB, S_WB))
    a("s_mul_i32 s%d, s%d, %d" % (S_PB, S_MT, 40 * 2048))
    a("s_mul_i32 s72, s%d, %d" % (S_W, 10 * 2048))
    a("s_add_u32 s%d, s%d, s72" % (S_PB, S_PB))
    a("s_add_u32 s%d, s%d, %d" % (S_PB, S_PB, WS_PQ))
    a("s_lshl_b32 s%d, s%d, 14" % (S_KB, S_W))
    a("s_add_u32 s%d, s%d, %d" % (S_KB, S_KB, WS_KVF))
    a("v_and_b32 v11, 15, v0")
    a("v_mul_u32_u24 v%d, 1280, v11" % V_XO)
    a("v_lshrrev_b32 v11, 4, v0")
    a("v_lshl_add_u32 v%d, v11, 3, v%d" % (V_XO, V_XO))
    a("s_lshl_b32 s72, s%d, 2" % S_MT)
    a("s_add_u32 s72, s72, s%d" % S_W)
    a("s_mul_i32 s72, s72, %d" % (16 * 1280))
    a("s_mul_i32 s73, s%d, 160" % S_NT)
    a("s_add_u32 s%d, s72, s73" % S_XO)
    a("s_mul_i32 s%d, s%d, %d" % (S_LB, S_W, NL * 1024))
    a("v_add_u32 v%d, s%d, v%d" % (V_L, S_LB, V_B))
    srd(a, SRD_OUT, S_OUT, 2048 * 1280)

def poll(a, tag, nlanes, soff_sgpr, stride_shift, sleep=4):
    a("v_lshlrev_b32 v14, %d, v0" % stride_shift)
    a("s_mov_b32 s76, 0x%x" % ((1 << nlanes) - 1))
    a("s_mov_b32 s77, 0")
    a("s_mov_b32 s78, 0")
    a("s_mov_b64 exec, s[76:77]")
    a.label("P2_POLL_" + tag)
    a("buffer_load_dword v12, v14, s[%d:%d], s%d offen sc1" % (SRD_WS, SRD_WS + 3, soff_sgpr))
    a("s_waitcnt vmcnt(0)")
    a("v_cmp_ne_u32 vcc, v12, v%d" % V_TAG)
    a("s_cbranch_vccz P2_OK_" + tag)
    a("s_add_u32 s78, s78, 1")
    a("s_cmp_gt_u32 s78, 100000")
    a("s_cbranch_scc1 P2_OK_" + tag)
    a("s_sleep %d" % sleep)
    a("s_branch P2_POLL_" + tag)
    a.label("P2_OK_" + tag)
    a("s_mov_b64 exec, -1")

class Plan:
    def __init__(self, a, cfg):
        self.a, self.cfg = a, cfg
        self.lfree = list(range(NL))
        self.rfree = list(range(112, 168, 4)) + [96, 100, 104, 108]
        self.lslot, self.reg, self.pos, self.dpos = {}, {}, {}, {}
        self.nv = 0
        self.nd = 0
        self.src = {}
        self.stream = []
        self.sp = 0
    def item(self, name, v, sb, off):
        self.src[name] = (v, sb, off)
    def dma(self, name):
        a = self.a
        v, sb, off = self.src[name]
        sl = self.lfree.pop(0)
        self.lslot[name] = sl
        a("s_add_u32 m0, s%d, %d" % (S_LB, sl * 1024))
        a("s_add_u32 s72, s%d, %d" % (sb, off))
        a("buffer_load_dwordx4 v%d, s[%d:%d], s72 offen sc1 lds" % (v, SRD_WS, SRD_WS + 3))
        self.pos[name] = self.nv; self.nv += 1
    def pump(self, n):
        k = 0
        while k < n and self.sp < len(self.stream) and self.lfree:
            nm = self.stream[self.sp]; self.sp += 1
            if nm in self.pos: continue
            self.dma(nm); k += 1
        return k
    def ensure(self, names):
        while any(n not in self.pos for n in names):
            assert self.pump(1), "LDS deadlock %s" % names
    def vwait(self, names):
        last = max(self.pos[n] for n in names)
        self.a("s_waitcnt vmcnt(%d)" % min(63, self.nv - 1 - last))
    def rd(self, name, avoid=()):
        r = [x for x in self.rfree if x not in avoid][0]
        self.rfree.remove(r); self.reg[name] = r
        self.dpos[name] = self.nd; self.nd += 1
        return "ds_read_b128 %s, v%d offset:%d" % (vr(r, 4), V_L, self.lslot[name] * 1024)
    def dwait(self, names):
        last = max(self.dpos[n] for n in names)
        self.a("s_waitcnt lgkmcnt(%d)" % min(15, self.nd - 1 - last))
        for n, p in list(self.dpos.items()):
            if p <= last and n in self.lslot:
                self.lfree.append(self.lslot.pop(n))
    def rel(self, name):
        self.rfree.append(self.reg.pop(name))

def build(a, cfg):
    P = Plan(a, cfg)
    blocks = []
    def H(i):
        half = i == 13
        nm = []
        for j in range(5):
            n = "H%dB%d" % (i, j); P.item(n, V_B, S_WH if half else S_WB, (0 if half else i * 5120) + j * 1024)
        for j in range(2 if half else 4):
            n = "H%dA%d" % (i, j); P.item(n, V_A + j, S_HH if half else S_HB, 0 if half else i * 4096)
        order = ["B0", "A0", "A1", "B1", "A2", "A3", "B2", "B3", "B4"]
        nm = ["H%d%s" % (i, o) for o in order if "H%d%s" % (i, o) in P.src]
        blocks.append(("H", i, nm))
    def G(phi):
        nm = []
        for cb in range(5):
            n = "W%d_%d" % (phi, cb); P.item(n, V_B, S_WO, phi * 5120 + cb * 1024); nm.append(n)
        blocks.append(("G", phi, nm))
    NH1 = cfg.get("p2_nh1", 8)
    for i in range(NH1): H(i)
    gdone, hnext = 0, NH1
    for hh in range(8):
        b0 = 5 * (hh >> 2) + (hh & 3)
        for R in range(2):
            nm = []
            for i in range(2):
                n = "K%d_%d" % (2 * hh + i, R); P.item(n, V_B, S_KB, (2 * hh + i) * 1024); nm.append(n)
            for i in range(2):
                n = "P%d_%d_%d" % (hh, i, R); P.item(n, V_P + R, S_PB, (b0 + i) * 2048); nm.append(n)
            blocks.append(("O", (hh, R), nm))
        if gdone < 5 and (16 * gdone + 15) // 10 <= hh:
            G(gdone); gdone += 1
        elif hnext < 14:
            H(hnext); hnext += 1
    while gdone < 5 or hnext < 14:
        if hnext < 14: H(hnext); hnext += 1
        if gdone < 5: G(gdone); gdone += 1
    return P, blocks

def gen_preload(a, cfg, P, blocks):
    npre = cfg.get("p2_pre", 30)
    pre = [n for k, arg, nm in blocks if k == "H" for n in sorted(nm) if "B" in n][:npre]
    for n in pre: P.dma(n)

def gen_main(a, cfg, P, blocks):
    alias = {}
    stream = []
    for k, arg, nm in blocks:
        for n in nm:
            key = P.src[n]
            if key in alias: continue
            alias[key] = n; stream.append(n)
    uses = {}
    for k, arg, nm in blocks:
        for n in nm: uses[alias[P.src[n]]] = uses.get(alias[P.src[n]], 0) + 1
    P.stream = stream
    DT = 96
    def acc(rb, cb): return ACC + (rb * 5 + cb) * 4
    started = set()
    def mf(rb, cb, A, B):
        c = vr(acc(rb, cb), 4) if (rb, cb) in started else "0"
        started.add((rb, cb))
        return "v_mfma_f32_16x16x32_bf16 %s, %s, %s, %s" % (vr(acc(rb, cb), 4), vr(A, 4), vr(B, 4), c)
    in_o = [False]
    def avoid(): return (96, 100, 104, 108) if in_o[0] else ()
    pend = {}
    def issue_reads(nm, limit):
        out = []
        for n in nm:
            if n in P.reg: continue
            if len([x for x in P.rfree if x not in avoid()]) <= limit: break
            m = alias[P.src[n]]
            r = [x for x in P.rfree if x not in avoid()][0]
            P.rfree.remove(r); P.reg[n] = r
            P.dpos[n] = P.nd; P.nd += 1
            out.append("ds_read_b128 %s, v%d offset:%d" % (vr(r, 4), V_L, P.lslot[m] * 1024))
        return out
    def dwait(nm):
        last = max(P.dpos[n] for n in nm)
        a("s_waitcnt lgkmcnt(%d)" % min(15, P.nd - 1 - last))
        for n, p in list(P.dpos.items()):
            if p <= last:
                del P.dpos[n]
                m = alias[P.src[n]]
                uses[m] -= 1
                if uses[m] == 0: P.lfree.append(P.lslot.pop(m))
    def landed(nm):
        ms = [alias[P.src[n]] for n in nm]
        P.ensure(ms); P.vwait(ms)
    opiece = {}
    P.pump(64)
    first_o = min(i for i, b in enumerate(blocks) if b[0] == "O")
    last_o = max(i for i, b in enumerate(blocks) if b[0] == "O")
    pendingOB = None
    def ob(hh, R):
        o = []
        o.append("v_add_f32 v%d, %s, v%d" % (DT + 10, f32bits(1e-6), DT + 10))
        o.append("v_rcp_f32 v%d, v%d" % (DT + 10, DT + 10))
        for j in range(0, 10, 2):
            o.append("v_pk_mul_f32 %s, %s, %s op_sel_hi:[1,0]" % (vr(DT + j, 2), vr(DT + j, 2), vr(DT + 10, 2)))
        for j in range(5):
            d = 5 * hh + j; key = (R, d // 4)
            if key not in opiece:
                r = [x for x in P.rfree if x not in avoid()][0]
                P.rfree.remove(r); opiece[key] = r
            o.append("v_cvt_pk_bf16_f32 v%d, v%d, v%d" % (opiece[key] + d % 4, DT + 2 * j, DT + 2 * j + 1))
        return o
    for bi, (kind, arg, nm) in enumerate(blocks):
        if bi + 1 >= first_o and bi <= last_o: in_o[0] = True
        if bi > last_o: in_o[0] = False
        lim = 2 if in_o[0] else 0
        if any(n not in P.reg for n in nm):
            landed([n for n in nm if n not in P.reg])
            for t in issue_reads(nm, 0): a(t)
            assert all(n in P.reg for n in nm), ("regs", kind, arg, P.rfree)
        if bi == 0: stamp(a, 2)
        pending = [n for n in nm if n in P.dpos]
        if pending: dwait(pending)
        if kind == "H":
            i = arg; nrb = 2 if i == 13 else 4
            ms = [mf(rb, cb, P.reg["H%dB%d" % (i, cb)], P.reg["H%dA%d" % (i, rb)]) for cb in range(5) for rb in range(nrb)]
        elif kind == "G":
            phi = arg
            for R in range(2):
                for j in range(4):
                    a("v_permlane16_swap_b32 v%d, v%d" % (opiece[(R, 2 * phi)] + j, opiece[(R, 2 * phi + 1)] + j))
            ms = [mf(rb, cb, P.reg["W%d_%d" % (phi, cb)], opiece[(rb >> 1, 2 * phi + (rb & 1))]) for cb in range(5) for rb in range(4)]
        else:
            hh, R = arg
            k0, k1r = P.reg[nm[0]], P.reg[nm[1]]
            lchk, lok = a.newlabel("P2_KC"), a.newlabel("P2_KO")
            a("s_mov_b32 s78, 0")
            a.label(lchk)
            a("v_cmp_eq_u32 vcc, -1, v%d" % k0)
            a("v_cmp_eq_u32 s[76:77], -1, v%d" % k1r)
            a("s_or_b64 vcc, vcc, s[76:77]")
            a("s_cbranch_vccz %s" % lok)
            a("s_add_u32 s78, s78, 1")
            a("s_cmp_gt_u32 s78, 100000")
            a("s_cbranch_scc1 %s" % lok)
            a("s_sleep 4")
            a("s_add_u32 s73, s%d, %d" % (S_KB, 2 * hh * 1024))
            a("buffer_load_dwordx4 %s, v%d, s[%d:%d], s73 offen sc1" % (vr(k0, 4), V_B, SRD_WS, SRD_WS + 3))
            a("buffer_load_dwordx4 %s, v%d, s[%d:%d], s73 offen offset:1024 sc1" % (vr(k1r, 4), V_B, SRD_WS, SRD_WS + 3))
            a("s_waitcnt vmcnt(0)")
            a("s_branch %s" % lchk)
            a.label(lok)
            ms = ["v_mfma_f32_32x32x16_bf16 %s, %s, %s, %s" % (vr(DT, 16), vr(P.reg[nm[i]], 4), vr(P.reg[nm[2 + i]], 4), vr(DT, 16) if i else "0") for i in range(2)]
        mid = int(len(ms) * cfg.get("p2_mid", 0.4))
        fill = []; k = 0
        for i, m in enumerate(ms):
            if i == mid and bi + 1 < len(blocks):
                nn = blocks[bi + 1][2]
                landed(nn)
                fill = issue_reads(nn, lim)
            a(m)
            if k < len(fill): a(fill[k]); k += 1
            if i % 2 == 1 or i < mid: P.pump(1)
        for t in fill[k:]: a(t)
        for n in nm: P.rel(n)
        if kind == "G":
            for R in range(2):
                for i in range(2): P.rfree.append(opiece.pop((R, 2 * arg + i)))
        if kind == "O":
            P.pump(3)
            for t in ob(*arg): a(t)
        if bi == len(blocks) - 3:
            xr = []
            for cb in range(5):
                pass
    assert P.sp == len(P.stream)
    stamp(a, 3)
    XR = 96
    for cb in range(5):
        a("buffer_load_dwordx2 %s, v%d, s[%d:%d], s%d offen offset:%d" % (vr(XR + 2 * cb, 2), V_XO, SRD_X, SRD_X + 3, S_XO, cb * 32))
    a("s_barrier")
    for rb in range(1, 4):
        a("s_xor_b32 s72, s%d, %d" % (S_W, rb))
        a("s_mul_i32 s72, s72, %d" % (3 * 5120))
        a("v_add_u32 v%d, s72, v%d" % (1 + rb, V_B))
    for rb in range(1, 4):
        for cb in range(5):
            a("ds_write_b128 v%d, %s offset:%d" % (1 + rb, vr(acc(rb, cb), 4), (rb - 1) * 5120 + cb * 1024))
    a("s_mul_i32 s72, s%d, %d" % (S_W, 3 * 5120))
    a("v_add_u32 v5, s72, v%d" % V_B)
    a("s_waitcnt lgkmcnt(0)")
    a("s_barrier")
    for j in range(3):
        for cb in range(5):
            a("ds_read_b128 %s, v5 offset:%d" % (vr(acc(1 + j, cb), 4), j * 5120 + cb * 1024))
    a("s_waitcnt vmcnt(0)")
    T = 112
    for cb in range(5):
        t = T + 4 * cb; xr = XR + 2 * cb
        a("v_lshlrev_b32 v%d, 16, v%d" % (t, xr))
        a("v_and_b32 v%d, 0xffff0000, v%d" % (t + 1, xr))
        a("v_lshlrev_b32 v%d, 16, v%d" % (t + 2, xr + 1))
        a("v_and_b32 v%d, 0xffff0000, v%d" % (t + 3, xr + 1))
        for p in (0, 2):
            a("v_pk_add_f32 %s, %s, %s" % (vr(acc(0, cb) + p, 2), vr(acc(0, cb) + p, 2), vr(t + p, 2)))
    a("s_waitcnt lgkmcnt(0)")
    for cb in range(5):
        c = acc(0, cb); xr = XR + 2 * cb
        for j in range(1, 4):
            for p in (0, 2):
                a("v_pk_add_f32 %s, %s, %s" % (vr(c + p, 2), vr(c + p, 2), vr(acc(j, cb) + p, 2)))
        a("v_cvt_pk_bf16_f32 v%d, v%d, v%d" % (xr, c, c + 1))
        a("v_cvt_pk_bf16_f32 v%d, v%d, v%d" % (xr + 1, c + 2, c + 3))
        a("buffer_store_dwordx2 %s, v%d, s[%d:%d], s%d offen offset:%d" % (vr(xr, 2), V_XO, SRD_OUT, SRD_OUT + 3, S_XO, cb * 32))

def gen_reducer(a):
    a("s_cmp_ge_u32 s2, 64")
    a("s_cbranch_scc1 P2_NORED")
    a("s_cmp_lg_u32 s%d, 1" % S_W)
    a("s_cbranch_scc1 P2_NORED")
    a("s_lshr_b32 s72, s2, 3")
    a("s_add_u32 s72, s72, 22")
    a("s_lshl_b32 s72, s72, 7")
    a("s_add_u32 s73, s72, %d" % WS_FLG)
    a("s_lshr_b32 s74, s2, 1")
    a("s_and_b32 s74, s74, 3")
    a("s_and_b32 s75, s2, 1")
    a("s_add_u32 s75, s75, s74")
    a("s_lshl_b32 s75, s75, 4")
    a("s_mul_i32 s74, s74, 20")
    a("s_sub_i32 s75, s75, s74")
    T = 96
    a("v_lshrrev_b32 v%d, 5, v0" % T)
    a("v_lshlrev_b32 v%d, 2, v%d" % (T, T))
    a("v_add_u32 v%d, s75, v%d" % (T, T))
    a("v_bfe_u32 v%d, v0, 3, 2" % (T + 1))
    a("v_and_b32 v%d, 3, v0" % (T + 2))
    a("v_lshl_add_u32 v%d, v%d, 2, v%d" % (T + 1, T + 1, T + 2))
    a("v_cmp_ge_u32 s[80:81], 10, v%d" % (T + 1))
    a("v_lshlrev_b32 v%d, 5, v0" % (T + 1))
    a("v_mov_b32 v%d, %d" % (T + 2, OOB))
    a("v_cmp_gt_u32 vcc, 20, v%d" % T)
    a("s_and_b64 vcc, vcc, s[80:81]")
    a("v_cndmask_b32 v%d, v%d, v%d, vcc" % (T + 3, T + 2, T + 1))
    a("v_add_u32 v%d, 8, v%d" % (T, T))
    a("v_cmp_gt_u32 vcc, 20, v%d" % T)
    a("s_and_b64 vcc, vcc, s[80:81]")
    a("v_cndmask_b32 v%d, v%d, v%d, vcc" % (T + 4, T + 2, T + 1))
    poll(a, "KV", 8, 73, 12)
    a("s_lshl_b32 s72, s2, 11")
    a("s_add_u32 s72, s72, %d" % WS_KVP)
    for mt in range(8):
        a("buffer_load_dwordx4 %s, v%d, s[%d:%d], s72 offen sc1" % (vr(ACC + 8 * mt, 4), T + 3, SRD_WS, SRD_WS + 3))
        a("buffer_load_dwordx4 %s, v%d, s[%d:%d], s72 offen offset:16 sc1" % (vr(ACC + 8 * mt + 4, 4), T + 4, SRD_WS, SRD_WS + 3))
        a("s_add_u32 s72, s72, %d" % (64 * 2048))
    a("s_waitcnt vmcnt(0)")
    for mt in range(1, 8):
        for j in range(0, 8, 2):
            a("v_pk_add_f32 %s, %s, %s" % (vr(ACC + j, 2), vr(ACC + j, 2), vr(ACC + 8 * mt + j, 2)))
    for j in range(4):
        a("v_cvt_pk_bf16_f32 v%d, v%d, v%d" % (ACC + 8 + j, ACC + 2 * j, ACC + 2 * j + 1))
    a("s_lshl_b32 s72, s2, 10")
    a("s_add_u32 s72, s72, %d" % WS_KVF)
    a("buffer_store_dwordx4 %s, v%d, s[%d:%d], s72 offen sc0 sc1" % (vr(ACC + 8, 4), V_B, SRD_WS, SRD_WS + 3))
    a.label("P2_NORED")
    a.nops(2)
```

```python
import sys, json
from asmlib import *
import k1, k2

HEADER = open("parallel_sum__linear_attn_block__geglu_ffn__prompt.s.ref").read().split("; Override launch geometry")[0]

def kd(name, vgpr, sgpr=102):
    return """.amdhsa_kernel %s
  .amdhsa_next_free_vgpr %d
  .amdhsa_next_free_sgpr %d
  .amdhsa_accum_offset %d
  .amdhsa_group_segment_fixed_size 0
  .amdhsa_kernarg_size 80
  .amdhsa_user_sgpr_count 2
  .amdhsa_user_sgpr_kernarg_segment_ptr 1
  .amdhsa_system_sgpr_workgroup_id_x 1
.end_amdhsa_kernel
""" % (name, vgpr, sgpr, (vgpr + 3) // 4 * 4)

def build(cfg):
    k1.STAMP = bool(cfg.get('stamp'))
    k1.CFG = cfg
    a = Asm()
    N1 = "parallel_sum__linear_attn_block__geglu_ffn__prompt_kernel"
    N2 = "psum_stage2_kernel"
    a.raw(HEADER.rstrip("\n"))
    if cfg.get("merged"):
        if cfg.get("aslist"):
            a.raw("; @launch kernel=%s grid=(256,1,1) block=(768,1,1) lds=%d" % (N1, k1.K1_LDS))
        else:
            a.raw("; @launch grid=(256,1,1) block=(768,1,1) lds=%d" % k1.K1_LDS)
        a.raw('.amdgcn_target "amdgcn-amd-amdhsa--gfx950"\n.text')
        k1.gen_k1(a, N1)
        a.raw('.section .rodata,"a"\n.p2align 6')
        a.raw(kd(N1, 168, 102))
        return a.text()
    a.raw("; @launch kernel=%s grid=(256,1,1) block=(768,1,1) lds=%d" % (N1, k1.K1_LDS))
    a.raw("; @launch kernel=%s grid=(256,1,1) block=(256,1,1) lds=%d" % (N2, k2.K2_LDS))
    a.raw('.amdgcn_target "amdgcn-amd-amdhsa--gfx950"\n.text')
    k1.gen_k1(a, N1)
    k2.gen_k2(a, N2, cfg)
    a.raw('.section .rodata,"a"\n.p2align 6')
    a.raw(kd(N1, 168, 102))
    a.raw(".p2align 6")
    a.raw(kd(N2, 256, 102))
    return a.text()

if __name__ == "__main__":
    out = sys.argv[1] if len(sys.argv) > 1 else "parallel_sum__linear_attn_block__geglu_ffn__prompt.s"
    cfg = json.loads(sys.argv[2]) if len(sys.argv) > 2 else {}
    open(out, "w").write(build(cfg))
    print("wrote", out)
```

```python
from asmlib import *
import math, struct

WS_H = 0
WS_PQ = WS_H + 32 * 54 * 4096
WS_W2P = WS_PQ + 32 * 40 * 2048
WS_KVP = WS_W2P + 8 * 74 * 5120
WS_KVF = WS_KVP + 8 * 64 * 2048
WS_RST = WS_KVF + 65536
WS_CSP = WS_RST + 2048 * 8
CSP_STRIDE = 5376 * 8
WS_FLG = WS_CSP + 8 * CSP_STRIDE
WS_PKF = WS_FLG + 8 * 32 * 128
WS_PKA = WS_PKF + 16 * 128
WS_END = WS_PKA + 16 * 128
OOB = 0x40000000

XSLOT = 32768
XRING = 3
WSLOT = 12288
WRING = 5
WBASE = XSLOT * XRING
UPOFF = 6144
ST_BASE = WBASE + WRING * WSLOT
ST_MEAN = ST_BASE
ST_RSTD = ST_BASE + 1024
ST_COL = ST_BASE + 2048
ST_FLAG = ST_COL + 768
K1_LDS = 163840

LOG2E = 1.4426950408889634
def f32bits(x):
    return "0x%08x" % struct.unpack("<I", struct.pack("<f", x))[0]

S_X, S_WQKV, S_WO, S_WG, S_WU, S_WD, S_OUT, S_DBG, S_WS = 4, 6, 8, 12, 14, 16, 18, 20, 22
S_WAVE, S_MT, S_GRP, S_LIN = 24, 25, 26, 27
S_XCD, S_IDX, S_I3, S_GI, S_NQ = 29, 30, 52, 53, 54
SRD_X, SRD_W0, SRD_W1, SRD_W2, SRD_WS = 32, 36, 40, 44, 48
SRD_DBG = 56
SRD_ST = 8

STAMP = False
CFG = {}
WS_ST = 16 << 20

def stflag():
    return CFG.get("k1_st", "sc1")

def srd(a, base, ptr, nbytes):
    a("s_mov_b32 s%d, s%d" % (base, ptr))
    a("s_and_b32 s%d, s%d, 0xffff" % (base + 1, ptr + 1))
    a("s_mov_b32 s%d, %d" % (base + 2, nbytes))
    a("s_mov_b32 s%d, 0x20000" % (base + 3))

def divmod_const(a, q, r, x, d, maxx):
    sh = 16
    m = (1 << sh) // d + 1
    assert all((v * m) >> sh == v // d for v in range(maxx)), (d, maxx)
    assert m * maxx < (1 << 32) and m < (1 << 24)
    a("v_mul_u32_u24 v%d, %d, v%d" % (q, m, x))
    a("v_lshrrev_b32 v%d, %d, v%d" % (q, sh, q))
    a("v_mul_u32_u24 v%d, %d, v%d" % (r, d, q))
    a("v_sub_u32 v%d, v%d, v%d" % (r, x, r))

def stamp(a, idx):
    if STAMP:
        a("s_memrealtime s[%d:%d]" % (84 + 2 * idx, 85 + 2 * idx))
def stamp_flush(a, kernel_no, wave_sgpr, n):
    if not STAMP:
        return
    a("s_memrealtime s[100:101]")
    a("s_waitcnt lgkmcnt(0) vmcnt(0)")
    a("s_memrealtime s[%d:%d]" % (84 + 2 * n, 85 + 2 * n))
    a("s_mov_b32 s50, 0x7fffffff")
    a("s_lshl_b32 s82, s2, 4")
    a("s_add_u32 s82, s82, s%d" % wave_sgpr)
    a("s_lshl_b32 s82, s82, 6")
    a("s_add_u32 s82, s82, %d" % (WS_ST + kernel_no * (1 << 20)))
    a("s_waitcnt lgkmcnt(0)")
    a("s_mov_b64 exec, 1")
    for i in range(n + 1):
        a("v_mov_b32 v2, s%d" % (84 + 2 * i))
        a("v_mov_b32 v3, s%d" % (85 + 2 * i))
        a("buffer_store_dwordx2 v[2:3], off, s[48:51], s82 offset:%d" % (8 * i))
        a("s_nop 1")
    if n == 4:
        a("s_sub_u32 s96, s98, s96")
        a("v_mov_b32 v2, s96")
        a("v_mov_b32 v3, 0")
        a("buffer_store_dwordx2 v[2:3], off, s[48:51], s82 offset:56")
        a("s_nop 1")
        a("v_mov_b32 v2, s100")
        a("v_mov_b32 v3, s101")
        a("buffer_store_dwordx2 v[2:3], off, s[48:51], s82 offset:40")

def tl(a):
    if STAMP and CFG.get("tl"):
        a("s_memrealtime s[90:91]")
        a("s_waitcnt lgkmcnt(0)")
        a("s_mov_b32 m0, s94")
        a("s_nop 0")
        a("v_writelane_b32 v167, s90, m0")
        a("s_add_u32 s94, s94, 1")

def red8(a, r):
    a("v_add_f32_dpp v%d, v%d, v%d quad_perm:[1,0,3,2] row_mask:0xf bank_mask:0xf" % (r, r, r))
    a("v_add_f32_dpp v%d, v%d, v%d quad_perm:[2,3,0,1] row_mask:0xf bank_mask:0xf" % (r, r, r))
    a("v_add_f32_dpp v%d, v%d, v%d row_half_mirror row_mask:0xf bank_mask:0xf" % (r, r, r))

def rbf(a, r):
    a("v_cvt_pk_bf16_f32 v%d, v%d, v%d" % (r, r, r))
    a("v_and_b32 v%d, 0xffff0000, v%d" % (r, r))

def gen_k1(a, name):
    a.raw(".globl %s\n.p2align 8\n.type %s,@function\n%s:" % (name, name, name))
    a.flush()
    a("s_cmp_ge_u32 s2, 256")
    a("s_cbranch_scc1 K1_END")
    a("s_load_dwordx16 s[4:19], s[0:1], 0")
    a("s_load_dwordx4 s[20:23], s[0:1], 64")
    a("v_lshrrev_b32 v1, 6, v0")
    a("v_and_b32 v0, 63, v0")
    a("v_readfirstlane_b32 s%d, v1" % S_WAVE)
    a("s_and_b32 s29, s2, 7")
    a("s_lshr_b32 s30, s2, 3")
    a("s_and_b32 s31, s29, 1")
    a("s_lshl_b32 s31, s31, 2")
    a("s_and_b32 s52, s30, 3")
    a("s_add_u32 s%d, s31, s52" % S_MT)
    a("s_lshr_b32 s53, s30, 2")
    a("s_lshr_b32 s54, s29, 1")
    a("s_lshl_b32 s55, s54, 3")
    a("s_cmp_eq_u32 s54, 3")
    a("s_cselect_b32 s60, 1, 0")
    a("s_sub_u32 s55, s55, s60")
    a("s_add_u32 s%d, s55, s53" % S_LIN)
    a("s_mul_i32 s61, s54, 5")
    a("s_sub_u32 s61, s61, s60")
    a("s_add_u32 s%d, s61, s53" % S_GRP)
    a("s_cmp_ge_u32 s54, 2")
    a("s_cselect_b32 s61, 4, 5")
    a("s_add_u32 s62, s54, 18")
    a("s_cmp_eq_u32 s53, s61")
    a("s_cselect_b32 s%d, s62, s%d" % (S_GRP, S_GRP))
    a("s_lshl_b32 s62, s54, 1")
    a("s_add_u32 s62, s62, s53")
    a("s_sub_u32 s62, s62, s61")
    a("s_add_u32 s62, s62, 21")
    a("s_cmp_gt_u32 s53, s61")
    a("s_cselect_b32 s%d, s62, s%d" % (S_GRP, S_GRP))
    a("s_cmp_ge_u32 s54, 2")
    a("s_cselect_b32 s60, 7, 8")
    a("s_waitcnt lgkmcnt(0)")
    stamp(a, 0)
    srd(a, SRD_X, S_X, 2048 * 1280)
    srd(a, SRD_WS, S_WS, WS_END)
    if CFG.get("dbgspan"):
        a("s_memrealtime s[84:85]")
        a("s_or_b32 s86, s2, s%d" % S_WAVE)
        a("s_cmp_lg_u32 s86, 0")
        a("s_cbranch_scc1 K1_NOSPAN")
        a("s_waitcnt lgkmcnt(0)")
        a("v_mov_b32 v2, s84")
        a("s_mov_b32 s50, 0x7fffffff")
        a("s_mov_b32 s86, %d" % WS_ST)
        a("buffer_store_dword v2, off, s[48:51], s86")
        a("s_mov_b32 s50, %d" % WS_END)
        a.label("K1_NOSPAN")
    a("s_cmp_ge_u32 s53, s60")
    a("s_cbranch_scc1 K1_PACK")
    a("s_cmp_lt_u32 s%d, 8" % S_WAVE)
    a("s_cbranch_scc1 K1_COMP")
    gen_loader(a)
    a.label("K1_COMP"); a.flush()
    if CFG.get("k1_pf", 0):
        gen_prefetch(a)
    a("s_and_b32 s60, s%d, 3" % S_WAVE)
    a("s_mov_b32 s83, s%d" % S_GRP)
    a("s_lshr_b32 s67, s%d, 2" % S_WAVE)
    a("s_cmp_ge_u32 s%d, 22" % S_GRP)
    a("s_cbranch_scc1 K1_KV")
    a("s_cmp_ge_u32 s%d, 18" % S_GRP)
    a("s_cbranch_scc1 K1_Q")
    gen_compute(a, "F")
    a.label("K1_Q"); a.flush()
    a("s_sub_u32 s%d, s%d, 18" % (S_GRP, S_GRP))
    gen_compute(a, "Q")
    a.label("K1_KV"); a.flush()
    a("s_sub_u32 s%d, s%d, 22" % (S_GRP, S_GRP))
    gen_compute(a, "K")
    a.label("K1_PACK"); a.flush()
    gen_packer(a)
    a.label("K1_END"); a.flush()
    a("s_endpgm")

def gen_prefetch(a):
    nst = CFG.get("pf_n", 1)
    a("s_and_b32 s60, s%d, 3" % S_WAVE)
    a("s_cmp_ge_u32 s%d, 4" % S_WAVE)
    a("s_cbranch_scc1 K1_PF_CHK")
    a("s_cmp_ge_u32 s%d, 18" % S_GRP)
    a("s_cbranch_scc1 K1_PF_CHK")
    a("s_and_b32 s60, s%d, 1" % S_WAVE)
    a("s_lshl_b32 s60, s60, 1")
    a.label("K1_PF_CHK")
    a("s_cmp_ge_u32 s60, %d" % nst)
    a("s_cbranch_scc1 K1_PF_DONE")
    a("s_cmp_ge_u32 s%d, 4" % S_WAVE)
    a("s_cbranch_scc1 K1_PF_X")
    a("s_cmp_ge_u32 s%d, 18" % S_GRP)
    a("s_cbranch_scc1 K1_PF_QKV")
    a("s_cmp_ge_u32 s%d, 2" % S_WAVE)
    a("s_cselect_b32 s%d, s%d, s%d" % (SRD_W0, S_WU, S_WG))
    a("s_cselect_b32 s%d, s%d, s%d" % (SRD_W0 + 1, S_WU + 1, S_WG + 1))
    a("s_and_b32 s%d, s%d, 0xffff" % (SRD_W0 + 1, SRD_W0 + 1))
    a("s_mov_b32 s%d, %d" % (SRD_W0 + 2, 640 * 3456))
    a("s_mov_b32 s%d, 0x20000" % (SRD_W0 + 3))
    a("v_lshrrev_b32 v2, 5, v0")
    a("v_bfe_u32 v3, v0, 1, 4")
    a("v_lshl_add_u32 v2, v2, 6, v3")
    a("v_mul_u32_u24 v2, 3456, v2")
    a("v_and_b32 v3, 1, v0")
    a("v_lshl_add_u32 v2, v3, 7, v2")
    a("s_and_b32 s60, s%d, 1" % S_WAVE)
    a("s_lshl_b32 s60, s60, 7")
    a("s_lshl_b32 s61, s%d, 4" % S_I3)
    a("s_add_u32 s60, s60, s61")
    a("s_add_u32 s60, s60, 64")
    a("s_mul_i32 s60, s60, 3456")
    a("s_mul_i32 s61, s%d, 192" % S_GRP)
    a("s_add_u32 s60, s60, s61")
    a("buffer_load_dword v1, v2, s[%d:%d], s60 offen" % (SRD_W0, SRD_W0 + 3))
    a("s_branch K1_PF_DONE")
    a.label("K1_PF_QKV"); a.flush()
    srd(a, SRD_W0, S_WQKV, 640 * 3840)
    a("v_lshrrev_b32 v2, 2, v0")
    a("v_mul_u32_u24 v2, 3840, v2")
    a("v_and_b32 v3, 1, v0")
    a("v_bfe_u32 v4, v0, 1, 1")
    a("s_cmp_ge_u32 s%d, 22" % S_GRP)
    a("s_movk_i32 s61, 192")
    a("s_cselect_b32 s61, 1280, s61")
    a("s_movk_i32 s60, 124")
    a("s_cselect_b32 s60, 156, s60")
    a("v_mul_lo_u32 v3, v3, s60")
    a("v_mul_lo_u32 v4, v4, s61")
    a("v_add3_u32 v2, v2, v3, v4")
    a("s_sub_u32 s62, s%d, 18" % S_GRP)
    a("s_mul_i32 s62, s62, 320")
    a("s_sub_u32 s63, s%d, 22" % S_GRP)
    a("s_mul_i32 s63, s63, 160")
    a("s_add_u32 s63, s63, 1280")
    a("s_cmp_ge_u32 s%d, 22" % S_GRP)
    a("s_cselect_b32 s62, s63, s62")
    a("s_add_u32 s60, s%d, 1" % S_WAVE)
    a("s_lshl_b32 s60, s60, 6")
    a("s_lshl_b32 s61, s%d, 4" % S_I3)
    a("s_add_u32 s60, s60, s61")
    a("s_mul_i32 s60, s60, 3840")
    a("s_add_u32 s60, s60, s62")
    a("buffer_load_dword v1, v2, s[%d:%d], s60 offen" % (SRD_W0, SRD_W0 + 3))
    a("s_branch K1_PF_DONE")
    a.label("K1_PF_X"); a.flush()
    a("s_mul_i32 s60, s%d, 37" % S_GI)
    a("v_add_u32 v2, s60, v0")
    a("v_mul_u32_u24 v3, 1280, v2")
    a("v_mov_b32 v4, %d" % OOB)
    a("v_cmp_gt_u32 vcc, 256, v2")
    a("v_cndmask_b32 v3, v4, v3, vcc")
    a("v_cmp_gt_u32 vcc, 37, v0")
    a("v_cndmask_b32 v2, v4, v3, vcc")
    a("s_mul_i32 s60, s%d, %d" % (S_MT, 256 * 1280))
    a("s_sub_u32 s61, s%d, 3" % S_WAVE)
    a("s_lshl_b32 s61, s61, 7")
    a("s_add_u32 s60, s60, s61")
    a("buffer_load_dword v1, v2, s[%d:%d], s60 offen" % (SRD_X, SRD_X + 3))
    a.label("K1_PF_DONE"); a.flush()

def gen_loader(a):
    noload = CFG.get("no_load")
    a("s_sub_u32 s60, s%d, 8" % S_WAVE)
    if CFG.get("ld_prio", 3): a("s_setprio %d" % CFG.get("ld_prio", 3))
    if STAMP:
        a("s_mov_b32 s94, 0")
        a("v_mov_b32 v167, 0")
    a("v_lshrrev_b32 v4, 3, v0")
    a("v_mul_u32_u24 v12, 1280, v4")
    a("v_lshrrev_b32 v5, 4, v0")
    a("v_and_b32 v6, 7, v0")
    a("v_xor_b32 v7, v6, v5")
    a("v_lshl_add_u32 v2, v7, 4, v12")
    a("v_xor_b32 v7, 4, v7")
    a("v_lshl_add_u32 v3, v7, 4, v12")
    a("s_mov_b32 s74, %d" % WBASE)
    a("s_mul_i32 s76, s%d, %d" % (S_MT, 256 * 1280))
    a("s_mul_i32 s77, s60, %d" % (4 * 10240))
    a("s_add_u32 s76, s76, s77")
    a("s_lshl_b32 s75, s60, 12")
    a("s_add_u32 s77, s75, %d" % (XRING * XSLOT))
    def xhalf(hf):
        for i in range(4):
            a("s_add_u32 m0, s75, %d" % (i * 1024 + hf * 16384))
            a("s_add_u32 s81, s76, %d" % (i * 10240 + hf * 16 * 10240))
            if not noload: a("buffer_load_dwordx4 v%d, s[%d:%d], s81 offen lds" % (2 + (i & 1), SRD_X, SRD_X + 3))
        if hf:
            a("s_add_u32 s75, s75, %d" % XSLOT)
            a("s_sub_u32 s79, s75, %d" % (XRING * XSLOT))
            a("s_cmp_ge_u32 s75, s77")
            a("s_cselect_b32 s75, s79, s75")
            a("s_add_u32 s76, s76, 128")
    def wsub():
        for i, (srdw, dst) in enumerate(((SRD_W0, 64), (SRD_W1, 65), (SRD_W2, 66))):
            a("s_add_u32 m0, s74, s%d" % dst)
            if i == 0: a("s_add_u32 s74, s74, %d" % WSLOT) if False else None
            if not noload: a("buffer_load_dwordx4 v%d, s[%d:%d], s69 offen lds" % (8 + i, srdw, srdw + 3))
        a("s_add_u32 s74, s74, %d" % WSLOT)
        a("s_cmp_ge_u32 s74, %d" % (WBASE + WRING * WSLOT))
        a("s_cselect_b32 s74, %d, s74" % WBASE)
        a("s_add_u32 s69, s69, s68")
    xhalf(0); xhalf(1)
    a("s_lshl_b32 s67, s60, 6")
    a("v_add_u32 v17, s67, v0")
    a("s_cmp_ge_u32 s%d, 18" % S_GRP)
    a("s_cbranch_scc1 K1_LD_QKV")
    srd(a, SRD_W0, S_WG, 640 * 3456)
    srd(a, SRD_W2, S_WU, 640 * 3456)
    a("s_cmp_ge_u32 s60, 2")
    a("s_cselect_b32 s%d, s%d, s%d" % (SRD_W1, S_WU, S_WG))
    a("s_cselect_b32 s%d, s%d, s%d" % (SRD_W1 + 1, SRD_W2 + 1, SRD_W0 + 1))
    a("s_mov_b32 s%d, %d" % (SRD_W1 + 2, 640 * 3456))
    a("s_mov_b32 s%d, 0x20000" % (SRD_W1 + 3))
    a("s_add_u32 s70, s60, 4")
    a("s_sub_u32 s62, s60, 2")
    a("s_cmp_ge_u32 s60, 2")
    a("s_cselect_b32 s70, s62, s70")
    a("s_add_u32 s62, s60, 2")
    for i, sl in enumerate((60, 70, 62)):
        a("s_lshl_b32 s67, s%d, 6" % sl)
        a("v_add_u32 v11, s67, v0")
        divmod_const(a, 12, 13, 11, 12, 384)
        a("v_bfe_u32 v14, v12, 3, 1")
        a("v_lshlrev_b32 v14, 1, v14")
        a("v_xor_b32 v13, v13, v14")
        a("v_mul_u32_u24 v12, 3456, v12")
        a("v_lshl_add_u32 v%d, v13, 4, v12" % (8 + i))
    a("s_mov_b32 s68, %d" % (32 * 3456))
    a("s_mul_i32 s69, s%d, 192" % S_GRP)
    a("v_lshrrev_b32 v11, 5, v17")
    a("v_and_b32 v12, 15, v17")
    a("v_lshl_add_u32 v11, v11, 4, v12")
    a("v_bfe_u32 v12, v17, 4, 1")
    a("v_mul_u32_u24 v12, 1728, v12")
    a("s_mul_i32 s67, s%d, 96" % S_GRP)
    a("s_add_u32 s67, s67, 1920")
    a("v_add3_u32 v16, v11, v12, s67")
    a("s_branch K1_LD_GO")
    a.label("K1_LD_QKV"); a.flush()
    srd(a, SRD_W0, S_WQKV, 640 * 3840)
    srd(a, SRD_W1, S_WQKV, 640 * 3840)
    srd(a, SRD_W2, S_WQKV, 640 * 3840)
    a("s_cmp_ge_u32 s%d, 22" % S_GRP)
    a("s_cselect_b32 s70, %d, 0" % (1280 - 160))
    for i in range(3):
        a("s_lshl_b32 s67, s60, 6")
        a("s_add_u32 s67, s67, %d" % (256 * i))
        a("v_add_u32 v11, s67, v0")
        if i == 2:
            a("v_subrev_u32 v14, 128, v11")
            a("v_cmp_le_u32 vcc, 640, v11")
            a("v_cndmask_b32 v11, v11, v14, vcc")
        divmod_const(a, 12, 13, 11, 20, 640)
        a("v_bfe_u32 v14, v12, 3, 1")
        a("v_lshlrev_b32 v14, 1, v14")
        a("v_xor_b32 v13, v13, v14")
        a("v_mul_u32_u24 v12, 3840, v12")
        a("v_lshl_add_u32 v%d, v13, 4, v12" % (8 + i))
        a("v_mov_b32 v14, s70")
        a("v_cmp_le_u32 vcc, 10, v13")
        a("v_cndmask_b32 v14, 0, v14, vcc")
        a("v_add_u32 v%d, v%d, v14" % (8 + i, 8 + i))
    a("s_mov_b32 s68, %d" % (32 * 3840))
    a("s_sub_u32 s69, s%d, 18" % S_GRP)
    a("s_mul_i32 s69, s69, 320")
    a("s_sub_u32 s71, s%d, 22" % S_GRP)
    a("s_mul_i32 s71, s71, 160")
    a("s_add_u32 s71, s71, 1280")
    a("s_cmp_ge_u32 s%d, 22" % S_GRP)
    a("s_cselect_b32 s69, s71, s69")
    a("s_lshr_b32 s67, s69, 1")
    a("s_lshr_b32 s71, s70, 1")
    a("v_mov_b32 v14, s71")
    a("v_cmp_le_u32 vcc, 80, v17")
    a("v_cndmask_b32 v14, 0, v14, vcc")
    a("v_add3_u32 v16, v17, v14, s67")
    a.label("K1_LD_GO"); a.flush()
    a("s_lshl_b32 s64, s60, 10")
    a("s_add_u32 s65, s64, 4096")
    a("s_add_u32 s66, s64, 8192")
    ops = ["x0"] * 4 + ["x1"] * 4
    def W(n): wsub(); ops.extend(["w%d" % n] * 3)
    def X(n): xhalf(n & 1); ops.extend(["x%d" % n] * 4)
    lastdone = [-1]
    def wait(tags):
        last = max(i for i, t in enumerate(ops) if t in tags)
        lastdone[0] = max(lastdone[0], last)
        a("s_waitcnt vmcnt(%d)" % min(63, len(ops) - 1 - last))
    def bar(u):
        tags = ["w%d" % (u + 1)]
        if (u + 1) % 2 == 0:
            tags += ["x%d" % (u + 1), "x%d" % (u + 2)]
        tags = [t for t in tags if t in ops]
        if tags: wait(tags)
        tl(a); a("s_barrier"); tl(a)
    W(0); W(1)
    a("s_mov_b32 s61, 2")
    a("s_mov_b32 s62, s%d" % S_LIN)
    a("s_cmp_eq_u32 s60, 3")
    a("s_cbranch_scc1 K1_ST_DEC")
    a("s_mul_i32 s63, s%d, 3" % S_GI)
    a("s_add_u32 s63, s63, s60")
    a("s_mov_b32 s61, 1")
    a("s_lshl_b32 s67, s%d, 3" % S_NQ)
    a("s_lshr_b32 s70, 0x150f0800, s67")
    a("s_and_b32 s70, s70, 255")
    a("s_lshr_b32 s71, 0x06060708, s67")
    a("s_and_b32 s71, s71, 255")
    a("s_lshr_b32 s72, 0x170f0800, s67")
    a("s_and_b32 s72, s72, 255")
    a("s_lshr_b32 s73, 0x07080708, s67")
    a("s_and_b32 s73, s73, 255")
    a("s_add_u32 s62, s70, s63")
    a("s_add_u32 s62, s62, 30")
    a("s_sub_u32 s67, s62, s71")
    a("s_add_u32 s67, s67, 27")
    a("s_cmp_ge_u32 s63, s71")
    a("s_cselect_b32 s62, s67, s62")
    a("s_lshl_b32 s71, s71, 1")
    a("s_sub_u32 s67, s63, s71")
    a("s_add_u32 s72, s72, s67")
    a("s_cmp_ge_u32 s63, s71")
    a("s_cselect_b32 s62, s72, s62")
    a("s_add_u32 s71, s71, s73")
    a("s_cmp_ge_u32 s63, s71")
    a("s_cselect_b32 s61, 0, s61")
    a("s_cselect_b32 s67, 1, 0")
    a("s_cmp_eq_u32 s%d, 3" % S_NQ)
    a("s_cselect_b32 s67, s67, 0")
    a("s_cmp_eq_u32 s67, 1")
    a("s_cselect_b32 s61, 2, s61")
    a.label("K1_ST_DEC"); a.flush()
    a("s_movk_i32 s63, 3840")
    a("s_cmp_ge_u32 s62, 30")
    a("s_cselect_b32 s%d, s%d, s%d" % (SRD_ST, S_WG, S_WQKV))
    a("s_cselect_b32 s%d, s%d, s%d" % (SRD_ST + 1, S_WG + 1, S_WQKV + 1))
    a("s_cselect_b32 s63, 3456, s63")
    a("s_cselect_b32 s67, 30, 0")
    a("s_cmp_ge_u32 s62, 57")
    a("s_cselect_b32 s%d, s%d, s%d" % (SRD_ST, S_WU, SRD_ST))
    a("s_cselect_b32 s%d, s%d, s%d" % (SRD_ST + 1, S_WU + 1, SRD_ST + 1))
    a("s_cselect_b32 s67, 57, s67")
    a("s_sub_u32 s70, s62, s67")
    a("s_lshl_b32 s70, s70, 7")
    a("s_lshl_b32 s71, s%d, 3" % S_MT)
    a("s_mul_i32 s71, s71, s63")
    a("s_add_u32 s70, s70, s71")
    a("s_lshl_b32 s71, s63, 6")
    a("s_mul_i32 s%d, s63, 640" % (SRD_ST + 2))
    a("s_lshl_b32 s72, s%d, 8" % S_MT)
    a("s_lshl_b32 s73, s62, 3")
    a("s_add_u32 s72, s72, s73")
    a("s_mul_i32 s73, s72, 1280")
    a("s_cmp_eq_u32 s61, 2")
    a("s_cselect_b32 s%d, s%d, s%d" % (SRD_ST, S_X, SRD_ST))
    a("s_cselect_b32 s%d, s%d, s%d" % (SRD_ST + 1, S_X + 1, SRD_ST + 1))
    a("s_cselect_b32 s63, 1280, s63")
    a("s_cselect_b32 s70, s73, s70")
    a("s_cselect_b32 s71, 128, s71")
    a("s_cselect_b32 s%d, %d, s%d" % (SRD_ST + 2, 2048 * 1280, SRD_ST + 2))
    a("s_cmp_eq_u32 s61, 0")
    a("s_cselect_b32 s%d, 0, s%d" % (SRD_ST + 2, SRD_ST + 2))
    a("s_and_b32 s%d, s%d, 0xffff" % (SRD_ST + 1, SRD_ST + 1))
    a("s_mov_b32 s%d, 0x20000" % (SRD_ST + 3))
    a("v_mov_b32 v19, 0")
    a("v_mul_lo_u32 v18, v4, s63")
    a("v_lshl_add_u32 v18, v6, 4, v18")
    srd(a, SRD_DBG, S_DBG, 256)
    LD, U, A = 32, 72, 20
    order = CFG.get("st_order", [1, 2, 3, 4, 5, 6, 7, 8, 9, 0])
    nld = [0]
    def S(cnt):
        for _ in range(cnt):
            i = order[nld[0]]
            a("s_mul_i32 s73, s71, %d" % i)
            a("s_add_u32 s73, s73, s70")
            a("buffer_load_dwordx4 %s, v18, s[%d:%d], s73 offen" % (vr(LD + 4 * nld[0], 4), SRD_ST, SRD_ST + 3))
            ops.append("s%d" % nld[0]); nld[0] += 1
    class L:
        def __init__(self): self.l = []
        def __call__(self, t): self.l.append(t)
    def acc_items(i):
        o = []
        for d in range(4):
            o.append("v_lshlrev_b32 v%d, 16, v%d" % (U + 8 * i + 2 * d, LD + 4 * i + d))
            o.append("v_and_b32 v%d, 0xffff0000, v%d" % (U + 8 * i + 2 * d + 1, LD + 4 * i + d))
        for d in range(4):
            if i == 1: o.append("v_pk_add_f32 %s, %s, %s" % (vr(A + 2 * d, 2), vr(U + 2 * d, 2), vr(U + 8 + 2 * d, 2)))
            elif i > 1: o.append("v_pk_add_f32 %s, %s, %s" % (vr(A + 2 * d, 2), vr(A + 2 * d, 2), vr(U + 8 * i + 2 * d, 2)))
        return o
    col = L()
    col("v_lshl_add_u32 v19, v6, 3, v4")
    col("v_lshlrev_b32 v19, 3, v19")
    col("s_lshl_b32 s70, s62, 9")
    col("s_mul_i32 s71, s%d, %d" % (S_MT, CSP_STRIDE))
    col("s_add_u32 s70, s70, s71")
    col("s_add_u32 s70, s70, %d" % WS_CSP)
    col("s_cmp_eq_u32 s61, 0")
    col("s_cselect_b32 s70, %d, s70" % OOB)
    col("v_and_b32 v7, 8, v0")
    col("v_cmp_eq_u32 s[82:83], 0, v7")
    for j in range(4): col("v_permlane32_swap_b32 v%d, v%d" % (A + j, A + 4 + j))
    for j in range(4): col("v_add_f32 v%d, v%d, v%d" % (A + j, A + j, A + 4 + j))
    for j in range(2): col("v_permlane16_swap_b32 v%d, v%d" % (A + j, A + 2 + j))
    for j in range(2): col("v_add_f32 v%d, v%d, v%d" % (A + j, A + j, A + 2 + j))
    col("v_cndmask_b32 v%d, v%d, v%d, s[82:83]" % (A + 2, A + 1, A))
    col("v_cndmask_b32 v%d, v%d, v%d, s[82:83]" % (A + 3, A, A + 1))
    col("v_add_f32_dpp v%d, v%d, v%d row_ror:8 row_mask:0xf bank_mask:0xf" % (A, A + 3, A + 2))
    row = L()
    row("v_pk_add_f32 %s, %s, %s" % (vr(A, 2), vr(A, 2), vr(A + 2, 2)))
    row("v_pk_add_f32 %s, %s, %s" % (vr(A + 4, 2), vr(A + 4, 2), vr(A + 6, 2)))
    row("v_pk_add_f32 %s, %s, %s" % (vr(A, 2), vr(A, 2), vr(A + 4, 2)))
    row("v_add_f32 v%d, v%d, v%d" % (A, A, A + 1))
    red8(row, A)
    row("v_mul_f32 v%d, %s, v%d" % (A, f32bits(-1.0 / 640), A))
    for d in range(40):
        row("v_pk_add_f32 %s, %s, %s op_sel_hi:[1,0]" % (vr(U + 2 * d, 2), vr(U + 2 * d, 2), vr(A, 2)))
        c = A + 2 + 2 * (d & 1)
        if d < 2: row("v_pk_mul_f32 %s, %s, %s" % (vr(c, 2), vr(U + 2 * d, 2), vr(U + 2 * d, 2)))
        else: row("v_pk_fma_f32 %s, %s, %s, %s" % (vr(c, 2), vr(U + 2 * d, 2), vr(U + 2 * d, 2), vr(c, 2)))
    row("v_pk_add_f32 %s, %s, %s" % (vr(A + 2, 2), vr(A + 2, 2), vr(A + 4, 2)))
    row("v_add_f32 v%d, v%d, v%d" % (A + 2, A + 2, A + 3))
    red8(row, A + 2)
    row("v_mul_f32 v%d, %s, v%d" % (A + 2, f32bits(1.0 / 640), A + 2))
    rbf(row, A + 2)
    row("v_add_f32 v%d, %s, v%d" % (A + 2, f32bits(1e-5), A + 2))
    rbf(row, A + 2)
    row("v_sqrt_f32 v%d, v%d" % (A + 2, A + 2))
    row("v_cvt_pk_bf16_f32 v%d, v%d, v%d" % (A, A, A + 2))
    row("v_lshlrev_b32 v19, 3, v4")
    row("v_mov_b32 v7, %d" % OOB)
    row("v_cmp_eq_u32 vcc, 0, v6")
    row("v_cndmask_b32 v19, v7, v19, vcc")
    row("s_lshl_b32 s70, s72, 3")
    row("s_add_u32 s70, s70, %d" % WS_RST)
    CH = CFG.get("st_ch", 28)
    nw, nx = [2], [2]
    def ring(u, cap):
        n = 0
        while n < cap:
            wok = nw[0] < 20 and nw[0] - 5 <= u - 1
            xok = nx[0] < 20 and 2 * (nx[0] // 2) - 5 <= u - 1
            if xok and (not wok or nx[0] <= nw[0]):
                X(nx[0]); nx[0] += 1; n += 4
            elif wok:
                W(nw[0]); nw[0] += 1; n += 3
            else:
                break
    def landed():
        return sum(1 for t in ops[:lastdone[0] + 1] if t[0] == "s" and t[1:].isdigit())
    caps = CFG.get("ld_caps", [4, 10, 14, 10])
    pace = CFG.get("st_pace", [0, 0, 2, 2, 2, 2, 2])
    done = 0; rpos = 0; coldone = False; u_store = None; issued_at = {}; early = [8]
    for u in range(-1, 16):
        ring(u, caps[u + 1] if u + 1 < len(caps) else 7)
        if u + 1 < len(pace): S(pace[u + 1])
        if u == 2:
            a("buffer_load_dword v13, off, s[%d:%d], 0 sc1" % (SRD_DBG, SRD_DBG + 3)); ops.append("tag")
        issued_at[u] = nld[0]
        budget = CH
        avail = issued_at.get(u - CFG.get("st_lag", 2), 0)
        tgt = min(avail, done + budget // 12)
        if tgt > done and tgt > landed():
            wait(["s%d" % (tgt - 1)])
        while done < 10 and done < landed() and budget >= 12:
            for t in acc_items(done): a(t)
            done += 1; budget -= 12
        if done == 10 and u_store is None and budget >= 12:
            l1, l2 = a.newlabel("K1_STR"), a.newlabel("K1_STE")
            a("s_cmp_eq_u32 s61, 2")
            a("s_cbranch_scc1 %s" % l1)
            if not coldone:
                for t in col.l: a(t)
                coldone = True
            a("s_branch %s" % l2)
            a.label(l1); a.flush(); a.nops(2)
            n = budget
            while rpos + n < len(row.l) and row.l[rpos + n - 1].startswith(("v_cmp", "s_")): n += 1
            for t in row.l[rpos:rpos + n]: a(t)
            rpos += n
            a.label(l2); a.flush(); a.nops(2)
            if rpos >= len(row.l):
                a("s_mov_b32 s73, 0")
                a.label("K1_TAG_CHK")
                a("v_readfirstlane_b32 s78, v13")
                a("s_cmp_lg_u32 s78, 0")
                a("s_cbranch_scc1 K1_TAG_OK")
                a("s_add_u32 s73, s73, 1")
                a("s_cmp_gt_u32 s73, 200000")
                a("s_cbranch_scc1 K1_TAG_OK")
                a("s_sleep 8")
                a("buffer_load_dword v13, off, s[%d:%d], 0 sc1" % (SRD_DBG, SRD_DBG + 3))
                a("s_waitcnt vmcnt(0)")
                a("s_branch K1_TAG_CHK")
                a.label("K1_TAG_OK"); a.flush()
                a("v_mov_b32 v%d, v13" % (A + 1))
                a("buffer_store_dwordx2 %s, v19, s[%d:%d], s70 offen sc0 sc1" % (vr(A, 2), SRD_WS, SRD_WS + 3))
                ops.append("st"); u_store = u
        if CFG.get("merged") == 4 and u == 8:
            w2base(a)
            a("v_lshlrev_b32 v14, 7, v0")
            a("s_mov_b32 s73, %d" % WS_PKA)
            a("buffer_load_dword v12, v14, s[%d:%d], s73 offen sc1" % (SRD_WS, SRD_WS + 3)); ops.append("pka")
        if CFG.get("merged") == 4 and u_store is not None and u > u_store:
            import p2, p5
            if u == u_store + 1:
                wait(["pka"])
                a("v_cmp_ne_u32 vcc, v12, v13")
                a("s_and_b32 vcc_lo, vcc_lo, 0xffff")
                a("s_cbranch_scc0 K1_PKA_OK")
                a("s_mov_b32 s55, s76"); a("s_mov_b32 s31, s77")
                a("s_mov_b32 s73, %d" % WS_PKA)
                p2.poll(a, "PKA", 16, 73, 7)
                a("s_mov_b32 s76, s55"); a("s_mov_b32 s77, s31")
                a.label("K1_PKA_OK")
            for _ in range(2):
                if early[0] < 14:
                    p5.l_load(a, early[0], sbase=28, vb=5); ops.extend(["pre"] * 5); early[0] += 1
        bar(u)
    assert u_store is not None
    print("loader: stat store at u=%d" % u_store)
    a("v_lshlrev_b32 v16, 3, v16")
    a("v_lshlrev_b32 v15, 5, v0")
    a("s_mov_b32 s63, 0")
    a("s_cmp_eq_u32 s60, 3")
    a("s_cbranch_scc1 K1_LD_ROWS")
    def colloads():
        for c in range(8):
            a("s_mov_b32 s62, %d" % (WS_CSP + c * CSP_STRIDE))
            a("buffer_load_dwordx2 %s, v16, s[%d:%d], s62 offen sc1" % (vr(20 + 2 * c, 2), SRD_WS, SRD_WS + 3))
    assert nw[0] == 20 and nx[0] == 20
    def tailwait(tags, extra):
        last = max(i for i, t in enumerate(ops) if t in tags)
        a("s_waitcnt vmcnt(%d)" % (len(ops) - 1 - last + extra))
    colloads()
    tailwait(["w17"], 8)
    tl(a); a("s_barrier"); tl(a)
    a("s_waitcnt vmcnt(8)")
    tl(a); a("s_barrier"); tl(a)
    a.label("K1_LD_CCHK")
    a("s_waitcnt vmcnt(0)")
    a("v_xor_b32 v14, v13, v21")
    for c in range(1, 8):
        a("v_xor_b32 v12, v13, v%d" % (21 + 2 * c))
        a("v_or_b32 v14, v14, v12")
    a("v_cmp_ne_u32 vcc, 0, v14")
    a("s_cmp_eq_u64 vcc, 0")
    a("s_cbranch_scc1 K1_LD_COK")
    a("s_add_u32 s63, s63, 1")
    a("s_cmp_gt_u32 s63, 200000")
    a("s_cbranch_scc1 K1_LD_COK")
    a("s_sleep 8")
    colloads()
    a("s_branch K1_LD_CCHK")
    a.label("K1_LD_COK"); a.flush()
    for (d, x, y) in ((20, 20, 22), (24, 24, 26), (28, 28, 30), (32, 32, 34), (20, 20, 24), (28, 28, 32), (20, 20, 28)):
        a("v_add_f32 v%d, v%d, v%d" % (d, x, y))
    a("v_cvt_pk_bf16_f32 v21, v20, v20")
    a("v_and_b32 v21, 0xffff0000, v21")
    a("v_sub_f32 v22, v20, v21")
    a("v_cvt_pk_bf16_f32 v20, v21, v22")
    a("v_lshlrev_b32 v17, 2, v17")
    a("v_add_u32 v17, %d, v17" % ST_COL)
    a("ds_write_b32 v17, v20")
    a("s_branch K1_LD_FIN")
    a.label("K1_LD_ROWS"); a.flush()
    a("s_lshl_b32 s62, s%d, 11" % S_MT)
    a("s_add_u32 s62, s62, %d" % WS_RST)
    def rowloads():
        for i in range(4):
            a("buffer_load_dwordx2 %s, v15, s[%d:%d], s62 offen offset:%d sc1" % (vr(20 + 2 * i, 2), SRD_WS, SRD_WS + 3, 8 * i))
    rowloads()
    tailwait(["w17"], 4)
    tl(a); a("s_barrier"); tl(a)
    a("s_waitcnt vmcnt(4)")
    tl(a); a("s_barrier"); tl(a)
    a.label("K1_LD_RCHK")
    a("s_waitcnt vmcnt(0)")
    a("v_xor_b32 v14, v13, v21")
    for c in range(1, 4):
        a("v_xor_b32 v12, v13, v%d" % (21 + 2 * c))
        a("v_or_b32 v14, v14, v12")
    a("v_cmp_ne_u32 vcc, 0, v14")
    a("s_cmp_eq_u64 vcc, 0")
    a("s_cbranch_scc1 K1_LD_ROK")
    a("s_add_u32 s63, s63, 1")
    a("s_cmp_gt_u32 s63, 200000")
    a("s_cbranch_scc1 K1_LD_ROK")
    a("s_sleep 8")
    rowloads()
    a("s_branch K1_LD_RCHK")
    a.label("K1_LD_ROK"); a.flush()
    a("v_lshrrev_b32 v15, 1, v15")
    a("v_add_u32 v15, %d, v15" % ST_MEAN)
    for i in range(4):
        a("v_and_b32 v%d, 0xffff, v%d" % (28 + i, 20 + 2 * i))
        a("v_lshl_or_b32 v%d, v%d, 16, v%d" % (28 + i, 28 + i, 28 + i))
        a("v_and_b32 v%d, 0xffff0000, v%d" % (32 + i, 20 + 2 * i))
        a("v_rcp_f32 v%d, v%d" % (32 + i, 32 + i))
    a("s_nop 0")
    a("ds_write_b128 v15, v[28:31]")
    a("ds_write_b128 v15, v[32:35] offset:1024")
    a.label("K1_LD_FIN")
    a("s_waitcnt lgkmcnt(0)")
    tl(a); a("s_barrier"); tl(a)
    if CFG.get("merged") == 4:
        gen_phase5(a)
        return
    if CFG.get("merged", 0) >= 2:
        gen_phase3_l(a)
        return
    if CFG.get("merged"):
        gen_phase2(a)
        return
    if CFG.get("flagtest"):
        a("s_barrier")
        a("s_cmp_lt_u32 s%d, 22" % S_GRP)
        a("s_cbranch_scc1 K1_FT_NOKV")
        a("s_barrier")
        a.label("K1_FT_NOKV")
        a("s_barrier")
        a("s_cmp_lg_u32 s60, 0")
        a("s_cbranch_scc1 K1_FT_END")
        a("s_lshl_b32 s62, s%d, 5" % S_MT)
        a("s_add_u32 s63, s62, s%d" % S_GRP)
        a("s_lshl_b32 s63, s63, 7")
        a("s_add_u32 s63, s63, %d" % WS_FLG)
        a("s_mov_b64 exec, 1")
        a("buffer_store_dword v13, off, s[%d:%d], s63 sc0 sc1" % (SRD_WS, SRD_WS + 3))
        a("s_mov_b64 exec, -1")
        a("s_lshl_b32 s62, s%d, 12" % S_XCD)
        a("s_add_u32 s62, s62, %d" % WS_FLG)
        a("v_lshlrev_b32 v14, 7, v0")
        a("s_mov_b32 s66, 0x3fffff")
        a("s_mov_b32 s67, 0")
        a("s_mov_b32 s63, 0")
        a("s_mov_b64 exec, s[66:67]")
        a.label("K1_FT_POLL")
        a("buffer_load_dword v12, v14, s[%d:%d], s62 offen sc1" % (SRD_WS, SRD_WS + 3))
        a("s_waitcnt vmcnt(0)")
        a("v_cmp_ne_u32 vcc, v12, v13")
        a("s_cbranch_vccz K1_FT_OK")
        a("s_add_u32 s63, s63, 1")
        a("s_cmp_gt_u32 s63, 100000")
        a("s_cbranch_scc1 K1_FT_OK")
        a("s_sleep %d" % CFG.get("ft_sleep", 4))
        a("s_branch K1_FT_POLL")
        a.label("K1_FT_OK")
        a("s_mov_b64 exec, -1")
        a.label("K1_FT_END")
    if STAMP:
        a("s_mov_b32 s50, 0x7fffffff")
        a("s_lshl_b32 s82, s2, 2")
        a("s_add_u32 s82, s82, s60")
        a("s_lshl_b32 s82, s82, 8")
        a("s_add_u32 s82, s82, %d" % (WS_ST + (1 << 19)))
        a("v_lshlrev_b32 v2, 2, v0")
        a("buffer_store_dword v167, v2, s[48:51], s82 offen")
    stamp_flush(a, 0, S_WAVE, 1)
    a("s_endpgm")

def w2base(a):
    a("s_lshr_b32 s28, s%d, 2" % S_XCD)
    a("s_lshl_b32 s28, s28, 2")
    a("s_lshr_b32 s73, s%d, 3" % S_IDX)
    a("s_add_u32 s28, s28, s73")
    a("s_mul_i32 s28, s28, %d" % (74 * 5120))
    a("s_mul_i32 s73, s60, %d" % (13 * 5120))
    a("s_add_u32 s28, s28, s73")
    a("s_add_u32 s28, s28, %d" % WS_W2P)
    a("v_lshlrev_b32 v5, 4, v0")

def gen_phase5(a):
    import p2, p3, p5
    CFG["p3_obar"] = []
    p5.l_load(a, 7, sbase=28, vb=5)
    a.label("P5_LSET"); a.flush()
    p5.setup(a, CFG)
    a("v_mov_b32 v12, %d" % (ST_FLAG + 4))
    a("v_mov_b32 v14, 0")
    a("v_mov_b32 v15, 0")
    a("ds_write_b32 v12, v13")
    a("ds_write_b64 v12, v[14:15] offset:4")
    a("ds_write_b64 v%d, v[14:15]" % p5.V_W)
    a("ds_write_b32 v%d, v14 offset:8" % p5.V_W)
    a("s_waitcnt lgkmcnt(0)")
    a("s_barrier")
    a("s_setprio %d" % CFG.get("p5_lprio", 0))
    a("s_cmp_lt_u32 s%d, 22" % S_GRP)
    a("s_cbranch_scc1 P5_LPRE")
    a("s_barrier")
    a("v_mov_b32 v14, %d" % (ST_FLAG + 8))
    p5.ldswait(a, "CNT", 0, 8, areg=14)
    a.label("P5_LPRE"); a.flush()
    a("s_mov_b32 s73, %d" % WS_PKF)
    p2.poll(a, "PK1", 16, 73, 7)
    p5.l_preload_lds(a)
    a("v_mov_b32 v12, 7")
    a("s_waitcnt vmcnt(0)")
    a("ds_write_b32 v%d, v12 offset:4" % p5.V_W)
    p5.l_main(a)
    a("s_endpgm")
    a.label("P3_FIN"); a.flush()
    a("v_mov_b32 v12, %d" % (ST_FLAG + 4))
    a("ds_read_b32 v13, v12")
    a("v_mov_b32 v14, 1")
    a("s_waitcnt vmcnt(0) lgkmcnt(0)")
    a("s_mov_b64 exec, 1")
    a("ds_add_rtn_u32 v14, v12, v14 offset:4")
    a("s_waitcnt lgkmcnt(0)")
    a("v_readfirstlane_b32 s73, v14")
    a("s_cmp_lg_u32 s73, 7")
    a("s_cbranch_scc1 P3_NOFLAG")
    a("s_lshl_b32 s72, s%d, 5" % S_MT)
    a("s_add_u32 s72, s72, s83")
    a("s_lshl_b32 s72, s72, 7")
    a("s_add_u32 s72, s72, %d" % WS_FLG)
    a("buffer_store_dword v13, off, s[%d:%d], s72 sc0 sc1" % (SRD_WS, SRD_WS + 3))
    a.label("P3_NOFLAG")
    a("s_mov_b64 exec, -1")
    a.label("P3_WORK"); a.flush()
    stamp(a, 1)
    a("s_and_b32 s60, s%d, 3" % S_WAVE)
    p5.setup(a, CFG)
    a("v_mov_b32 v15, %d" % (ST_FLAG + 12))
    a("s_cmp_lt_u32 s%d, 4" % S_WAVE)
    a("s_cbranch_scc1 P3_O")
    a("s_cmp_lg_u32 s60, 0")
    a("s_cbranch_scc1 P5_HGO")
    a("s_lshr_b32 s73, s%d, 2" % p2.S_MT)
    a("s_lshl_b32 s73, s73, 12")
    a("s_add_u32 s73, s73, %d" % WS_FLG)
    p2.poll(a, "MAIN", 22, 73, 7, CFG.get("ft_sleep", 2))
    a("v_mov_b32 v12, 1")
    a("ds_write_b32 v15, v12")
    a.label("P5_HGO"); a.flush()
    a("s_setprio %d" % CFG.get("p5_hprio", 2))
    p5.ldswait(a, "HGO", 0, 1, areg=15)
    p5.ldswait(a, "HF7", 4, 7)
    if STAMP: a("s_memtime s[96:97]")
    p5.h_main(a, CFG)
    p3.h_epilogue(a)
    if STAMP: a("s_memtime s[98:99]")
    stamp_flush(a, 1, 60, 4)
    a("s_endpgm")
    a.label("P3_O"); a.flush()
    p5.ldswait(a, "OGO", 0, 1, areg=15)
    if STAMP: a("s_memtime s[96:97]")
    p3.o_main(a, CFG)
    if STAMP:
        a("s_memtime s[98:99]")
        a("s_add_u32 s60, s60, 4")
    stamp_flush(a, 1, 60, 4)
    a("s_endpgm")

def gen_phase3_l(a):
    import p2, p3, p4
    v4 = CFG.get("merged") == 3
    if v4:
        CFG["p3_obar"] = []; CFG["p3_nbar"] = 1
        Wk = p4.W(CFG)
        class Rec:
            def __init__(self): self.l = []
            def __call__(self, t): self.l.append(t)
        rec = Rec(); Wk.preload(rec)
    def pre_lds():
        if v4:
            for t in rec.l: a(t)
        else: p3.l_preload_lds(a)
    def pre_regs():
        if not v4: p3.l_preload_regs(a)
    def mainpoll():
        a("s_cmp_lg_u32 s60, 0")
        a("s_cbranch_scc1 P3_HB21")
        a("s_lshr_b32 s73, s%d, 2" % p2.S_MT)
        a("s_lshl_b32 s73, s73, 12")
        a("s_add_u32 s73, s73, %d" % WS_FLG)
        p2.poll(a, "MAIN", 22, 73, 7, CFG.get("ft_sleep", 2))
        a.label("P3_HB21"); a.flush()
    a("v_mov_b32 v12, %d" % (ST_FLAG + 4))
    a("v_mov_b32 v14, 0")
    a("ds_write2_b32 v12, v13, v14 offset0:0 offset1:1")
    p3.setup(a, CFG)
    a("s_waitcnt lgkmcnt(0)")
    a("s_barrier")
    a("s_setprio %d" % CFG.get("p2_prio", 0))
    a("s_cmp_ge_u32 s%d, 22" % S_GRP)
    a("s_cbranch_scc1 P3_KVWG")
    a("s_mov_b32 s73, %d" % WS_PKF)
    p2.poll(a, "PK1", 16, 73, 7)
    pre_lds()
    pre_regs()
    a("s_branch P3_PRE_DONE")
    a.label("P3_KVWG"); a.flush()
    a("s_barrier")
    a("s_mov_b32 s73, %d" % WS_PKF)
    p2.poll(a, "PK2", 16, 73, 7)
    pre_regs()
    a("v_mov_b32 v12, %d" % (ST_FLAG + 8))
    a("s_mov_b32 s78, 0")
    a.label("P3_CNT")
    a("ds_read_b32 v14, v12")
    a("s_waitcnt lgkmcnt(0)")
    a("v_readfirstlane_b32 s73, v14")
    a("s_add_u32 s78, s78, 1")
    a("s_cmp_gt_u32 s78, 1000000")
    a("s_cbranch_scc1 P3_LENTRY")
    a("s_sleep 1")
    a("s_cmp_lt_u32 s73, 8")
    a("s_cbranch_scc1 P3_CNT")
    a.label("P3_LENTRY"); a.flush()
    pre_lds()
    a.label("P3_PRE_DONE"); a.flush()
    if v4:
        stamp(a, 1)
        mainpoll()
        a("s_barrier")
        if STAMP: a("s_memtime s[96:97]")
        Wk.main(a)
        p3.h_epilogue(a)
        if STAMP: a("s_memtime s[98:99]")
        stamp_flush(a, 1, 60, 4)
    else:
        a("s_waitcnt vmcnt(0)")
        a("s_barrier")
        p3.l_main(a)
    a("s_endpgm")
    a.label("P3_FIN"); a.flush()
    a("v_mov_b32 v12, %d" % (ST_FLAG + 4))
    a("ds_read_b32 v13, v12")
    a("v_mov_b32 v14, 1")
    a("s_waitcnt vmcnt(0) lgkmcnt(0)")
    a("s_mov_b64 exec, 1")
    a("ds_add_rtn_u32 v14, v12, v14 offset:4")
    a("s_waitcnt lgkmcnt(0)")
    a("v_readfirstlane_b32 s73, v14")
    a("s_cmp_lg_u32 s73, 7")
    a("s_cbranch_scc1 P3_NOFLAG")
    a("s_lshl_b32 s72, s%d, 5" % S_MT)
    a("s_add_u32 s72, s72, s83")
    a("s_lshl_b32 s72, s72, 7")
    a("s_add_u32 s72, s72, %d" % WS_FLG)
    a("buffer_store_dword v13, off, s[%d:%d], s72 sc0 sc1" % (SRD_WS, SRD_WS + 3))
    a.label("P3_NOFLAG")
    a("s_mov_b64 exec, -1")
    a.label("P3_WORK"); a.flush()
    stamp(a, 1)
    a("s_and_b32 s60, s%d, 3" % S_WAVE)
    p3.setup(a, CFG)
    a("s_cmp_lt_u32 s%d, 4" % S_WAVE)
    a("s_cbranch_scc1 P3_O")
    if not v4:
        mainpoll()
        a("s_barrier")
        if STAMP: a("s_memtime s[96:97]")
        p3.h_main(a, CFG)
        p3.h_epilogue(a)
        if STAMP: a("s_memtime s[98:99]")
        stamp_flush(a, 1, 60, 4)
    else:
        a("s_mov_b32 s73, %d" % WS_PKF)
        p2.gen_reducer(a, pkpoll=True)
    a("s_endpgm")
    a.label("P3_O"); a.flush()
    if not v4:
        a("s_mov_b32 s73, %d" % WS_PKF)
        p2.gen_reducer(a, pkpoll=True)
    a("s_barrier")
    if STAMP: a("s_memtime s[96:97]")
    p3.o_main(a, CFG)
    if STAMP:
        a("s_memtime s[98:99]")
        a("s_add_u32 s60, s60, 4")
    stamp_flush(a, 1, 60, 4)
    a("s_endpgm")

def gen_phase2(a):
    import p2
    p2.setup(a, CFG)
    P, blocks = p2.build(a, CFG)
    class Rec:
        def __init__(self): self.l = []
        def __call__(self, t): self.l.append(t)
    rec = Rec(); P.a = rec
    p2.gen_preload(rec, CFG, P, blocks)
    P.a = a
    a("s_barrier")
    a("s_mov_b32 s79, 1")
    a("s_cmp_ge_u32 s%d, 22" % S_GRP)
    a("s_cbranch_scc1 P2_KVWG")
    a("s_mov_b32 s73, %d" % WS_PKF)
    p2.poll(a, "PK1", 16, 73, 7)
    for t in rec.l: a(t)
    a("s_mov_b32 s79, 0")
    a("s_branch P2_B20")
    a.label("P2_KVWG"); a.flush()
    a("s_barrier")
    a.label("P2_B20"); a.flush()
    a("s_barrier")
    a("s_cmp_lg_u32 s60, 0")
    a("s_cbranch_scc1 P2_ENTRY")
    a("s_lshl_b32 s72, s%d, 5" % S_MT)
    a("s_add_u32 s72, s72, s%d" % S_GRP)
    a("s_lshl_b32 s72, s72, 7")
    a("s_add_u32 s72, s72, %d" % WS_FLG)
    a("s_mov_b64 exec, 1")
    a("buffer_store_dword v13, off, s[%d:%d], s72 sc0 sc1" % (SRD_WS, SRD_WS + 3))
    a("s_mov_b64 exec, -1")
    a.label("P2_ENTRY"); a.flush()
    stamp(a, 1)
    a("s_cmp_eq_u32 s79, 0")
    a("s_cbranch_scc1 P2_PRE_DONE")
    a("s_mov_b32 s73, %d" % WS_PKF)
    p2.poll(a, "PK2", 16, 73, 7)
    for t in rec.l: a(t)
    a.label("P2_PRE_DONE"); a.flush()
    p2.gen_reducer(a)
    a("s_cmp_lg_u32 s60, 0")
    a("s_cbranch_scc1 P2_B21")
    a("s_lshr_b32 s73, s%d, 2" % p2.S_MT)
    a("s_lshl_b32 s73, s73, 12")
    a("s_add_u32 s73, s73, %d" % WS_FLG)
    p2.poll(a, "MAIN", 22, 73, 7, CFG.get("ft_sleep", 2))
    a.label("P2_B21"); a.flush()
    a("s_barrier")
    if STAMP: a("s_memtime s[96:97]")
    p2.gen_main(a, CFG, P, blocks)
    if STAMP: a("s_memtime s[98:99]")
    stamp_flush(a, 1, 60, 4)
    a("s_endpgm")

ACC = 16
XS = [112, 128]
WA, WB = 144, 156
V_XB = 2
V_WE, V_WO = 4, 5
V_XA, V_WAE, V_WAO = 6, 7, 8
T0 = 112

def gen_compute(a, typ):
    nt = 6 if typ == "F" else 5
    orient = "N" if typ == "K" else "T"
    rowb = 192 if typ == "F" else 320
    def acc(t, rb): return ACC + (t * 4 + rb) * 4
    def wf(t): return (WA + 4 * t) if t < 3 else (WB + 4 * (t - 3))
    a("v_and_b32 v14, 15, v0")
    a("v_lshrrev_b32 v15, 4, v0")
    a("v_bfe_u32 v9, v0, 1, 3")
    a("v_xor_b32 v9, v9, v15")
    a("s_lshl_b32 s61, s60, 13")
    a("v_lshl_add_u32 v10, v14, 7, s61")
    a("v_lshl_add_u32 v%d, v9, 4, v10" % V_XB)
    a("v_xor_b32 v9, 4, v9")
    a("v_lshl_add_u32 v%d, v9, 4, v10" % (V_XB + 1))
    a("v_bfe_u32 v9, v0, 2, 2")
    a("v_lshl_add_u32 v9, v15, 3, v9")
    a("v_mul_u32_u24 v9, %d, v9" % rowb)
    a("v_and_b32 v10, 3, v0")
    a("v_lshl_add_u32 v9, v10, 3, v9")
    a("v_bfe_u32 v10, v0, 4, 1")
    a("v_lshlrev_b32 v10, 5, v10")
    if typ in "FQ":
        P = 3 if typ == "F" else 5
        a("s_mul_i32 s62, s67, %d" % (32 * P))
        a("v_add_u32 v9, s62, v9")
        a("v_add_u32 v11, v9, v10")
        a("v_sub_u32 v12, v9, v10")
        a("s_cmp_eq_u32 s67, 0")
        a("s_cselect_b64 s[68:69], -1, 0")
        a("v_cndmask_b32 v%d, v12, v11, s[68:69]" % V_WE)
        a("v_cndmask_b32 v%d, v11, v12, s[68:69]" % V_WO)
        if typ == "F":
            tl = [((t & 1) * UPOFF + (t >> 1) * 32, (t >> 1) & 1) for t in range(6)]
        else:
            tl = [(t * 32, t & 1) for t in range(5)]
    else:
        a("s_mul_i32 s62, s67, 96")
        a("v_add_u32 v9, s62, v9")
        a("v_add_u32 v11, v9, v10")
        a("v_sub_u32 v12, v9, v10")
        a("s_cmp_eq_u32 s67, 0")
        a("s_cselect_b64 s[68:69], -1, 0")
        a("v_cndmask_b32 v%d, v12, v11, s[68:69]" % V_WE)
        a("v_cndmask_b32 v%d, v11, v12, s[68:69]" % V_WO)
        a("s_lshl_b32 s70, s67, 6")
        tl = [(0, 0), (32, 1), (64, 2), (160, 1), (192, 0)]
    for r in range(nt * 16):
        a("v_mov_b32 v%d, 0" % (ACC + r))
    a("s_mov_b32 s63, 0")
    a("s_mov_b32 s64, %d" % XSLOT)
    a("s_mov_b32 s65, %d" % WBASE)
    a("s_mov_b32 s66, 0")
    def waddr():
        out = ["v_add_u32 v%d, s65, v%d" % (V_WAE, V_WE), "v_add_u32 v%d, s65, v%d" % (V_WAO, V_WO)]
        if typ == "K":
            out.append("v_add_u32 v13, s70, v%d" % V_WAE)
        return out
    def wreads(ts):
        out = []
        for t in ts:
            off, par = tl[t]
            reg = (V_WAE, V_WAO, 13)[par]
            out.append("ds_read_b64_tr_b16 %s, v%d offset:%d" % (vr(wf(t), 2), reg, off))
            out.append("ds_read_b64_tr_b16 %s, v%d offset:%d" % (vr(wf(t) + 2, 2), reg, off + 4 * rowb))
        return out
    def xreads(st, hf, xs):
        out = ["v_add_u32 v%d, s%d, v%d" % (V_XA, xs, V_XB + hf)]
        for rb in range(4):
            out.append("ds_read_b128 %s, v%d offset:%d" % (vr(XS[st] + 4 * rb, 4), V_XA, rb * 2048))
        return out
    def mfma(t, rb, W, X):
        A, B = (W, X) if orient == "T" else (X, W)
        return "v_mfma_f32_16x16x32_bf16 %s, %s, %s, %s" % (vr(acc(t, rb), 4), vr(A, 4), vr(B, 4), vr(acc(t, rb), 4))
    def wadv():
        return ["s_add_u32 s65, s65, %d" % WSLOT,
                "s_cmp_ge_u32 s65, %d" % (WBASE + WRING * WSLOT),
                "s_cselect_b32 s65, %d, s65" % WBASE] + waddr()
    for t in waddr(): a(t)
    a("s_barrier")
    stamp(a, 1)
    if STAMP: a("s_memtime s[96:97]")
    xr = xreads(0, 0, 63); wr = wreads([0, 1, 2])
    for t in xr[:1] + wr[:2] + xr[1:] + wr[2:]:
        a(t)
    a.label("K1_LOOP_" + typ)
    def phase(ms, fill, barrier):
        if CFG.get("no_ds"): fill = [f for f in fill if not f.startswith("ds_")]
        if CFG.get("no_mfma"): ms = ["s_nop 0"] * len(ms)
        a("s_waitcnt lgkmcnt(0)")
        nb = CFG.get("k1_prebar", 2)
        for m in ms[:nb]: a(m)
        if barrier: a("s_barrier")
        rest = ms[nb:]
        k = 0
        for i, m in enumerate(rest):
            per = 2 if len(fill) - k > len(rest) - i else 1
            for f in fill[k:k + per]: a(f)
            k += per
            a(m)
        for f in fill[k:]: a(f)
    for hf in range(2):
        cur = hf
        msA = [mfma(t, rb, wf(t), XS[cur] + 4 * rb) for t in range(3) for rb in range(4)]
        msB = [mfma(t, rb, wf(t), XS[cur] + 4 * rb) for t in range(3, nt) for rb in range(4)]
        phase(msA, wreads(range(3, nt)), False)
        xr = xreads(cur ^ 1, hf ^ 1, 63 if hf == 0 else 64); wr = wreads([0, 1, 2])
        phase(msB, wadv() + xr[:1] + wr[:2] + xr[1:] + wr[2:], True)
    a("s_mov_b32 s63, s64")
    a("s_add_u32 s64, s64, %d" % XSLOT)
    a("s_cmp_ge_u32 s64, %d" % (XRING * XSLOT))
    a("s_cselect_b32 s64, 0, s64")
    a("s_add_u32 s66, s66, 1")
    a("s_cmp_lt_u32 s66, 10")
    a("s_cbranch_scc1 K1_LOOP_" + typ)
    stamp(a, 2)
    if STAMP: a("s_memtime s[98:99]")
    a("s_waitcnt lgkmcnt(0)")
    XC = T0
    WC = T0 + 16
    M = T0 + 40
    a("s_lshl_b32 s61, s60, 8")
    a("s_add_u32 s61, s61, %d" % ST_MEAN)
    a("v_lshl_add_u32 v9, v0, 2, s61")
    a("ds_read_b32 v%d, v9" % M)
    a("v_lshlrev_b32 v10, 2, v14")
    if typ == "F":
        a("s_mul_i32 s62, s67, %d" % (3 * 128))
        co = [(t >> 1) * 128 + (t & 1) * 64 for t in range(6)]
    elif typ == "Q":
        a("s_mul_i32 s62, s67, %d" % (5 * 64))
        co = [t * 64 for t in range(5)]
    else:
        a("s_mul_i32 s62, s67, %d" % (3 * 64))
        co = [0, 64, 128, 320, 384]
    a("s_add_u32 s62, s62, %d" % ST_COL)
    a("v_add_u32 v10, s62, v10")
    if typ == "K":
        a("s_lshl_b32 s70, s67, 7")
        a("v_add_u32 v11, s70, v10")
    for t in range(nt):
        a("ds_read_b32 v%d, v%d offset:%d" % (WC + 4 * t, 11 if (typ == "K" and t == 2) else 10, co[t]))
    RS = T0 + 44
    if orient == "T":
        a("v_lshl_add_u32 v9, v14, 2, s61")
        for rb in range(4):
            a("ds_read_b32 v%d, v9 offset:%d" % (RS + rb, 1024 + rb * 64))
    for r in range(1, 4):
        for k in range(4): a("v_mov_b32 v%d, 0" % (XC + 4 * k + r))
        for t in range(nt): a("v_mov_b32 v%d, 0" % (WC + 4 * t + r))
    for rb in range(4):
        a("v_cmp_eq_u32 s[%d:%d], %d, v15" % (72 + 2 * rb, 73 + 2 * rb, rb))
    a("s_waitcnt lgkmcnt(0)")
    for rb in range(4):
        a("v_cndmask_b32 v%d, 0, v%d, s[%d:%d]" % (XC + 4 * rb, M, 72 + 2 * rb, 73 + 2 * rb))
    for t in range(nt):
        for rb in range(4):
            a(mfma(t, rb, WC + 4 * t, XC + 4 * rb))
    stamp(a, 3)
    if typ == "F":
        epi_ffn(a, acc, RS)
    elif typ == "Q":
        epi_q(a, acc, RS)
    else:
        epi_kv(a, acc)

def fin_compute(a):
    if CFG.get("merged", 0) >= 2:
        a("s_branch P3_FIN")
        return
    if CFG.get("flagtest") or CFG.get("merged"):
        a("s_waitcnt vmcnt(0)")
        a("s_barrier")
    if CFG.get("merged", 0) >= 2:
        a("s_branch P3_WORK")
        return
    stamp_flush(a, 0, S_WAVE, 4)
    a("s_endpgm")

def epi_ffn(a, acc, RS):
    c0 = -2.0 * math.sqrt(2.0 / math.pi) * LOG2E
    K = T0
    for rb in range(4):
        k = K + rb * 6; R = RS + rb
        a("v_mul_f32 v%d, v%d, v%d" % (k + 4, R, R))
        a("v_mul_f32 v%d, %s, v%d" % (k, f32bits(c0), R))
        a("v_mul_f32 v%d, v%d, v%d" % (k + 2, k, k + 4))
        a("v_rcp_f32 v%d, v%d" % (k + 4, k + 4))
        a("v_mul_f32 v%d, %s, v%d" % (k + 2, f32bits(0.044715), k + 2))
    VA = 9
    a("v_lshlrev_b32 v%d, 4, v0" % VA)
    a("s_lshl_b32 s61, s%d, 2" % S_MT)
    a("s_add_u32 s61, s61, s60")
    a("s_mul_i32 s61, s61, %d" % (54 * 4096))
    a("s_mul_i32 s62, s%d, %d" % (S_GRP, 3 * 4096))
    a("s_add_u32 s61, s61, s62")
    a("s_add_u32 s62, s61, 8192")
    a("s_add_u32 s63, s61, 4096")
    T = T0 + 24
    for rb in range(4):
        k = K + rb * 6
        out = T0 + 40 + 8 * (rb & 1)
        for i in range(3):
            G, Uu = acc(2 * i, rb), acc(2 * i + 1, rb)
            t = T + 8 * (i & 1)
            for p in range(2):
                a("v_pk_mul_f32 %s, %s, %s" % (vr(t + 2 * p, 2), vr(G + 2 * p, 2), vr(G + 2 * p, 2)))
            for p in range(2):
                a("v_pk_fma_f32 %s, %s, %s, %s op_sel_hi:[1,0,0]" % (vr(t + 2 * p, 2), vr(t + 2 * p, 2), vr(k + 2, 2), vr(k, 2)))
            for p in range(2):
                a("v_pk_mul_f32 %s, %s, %s" % (vr(t + 2 * p, 2), vr(t + 2 * p, 2), vr(G + 2 * p, 2)))
            for j in range(4):
                a("v_exp_f32 v%d, v%d" % (t + j, t + j))
            for p in range(2):
                a("v_pk_mul_f32 %s, %s, %s" % (vr(t + 4 + 2 * p, 2), vr(G + 2 * p, 2), vr(Uu + 2 * p, 2)))
            for p in range(2):
                a("v_pk_fma_f32 %s, %s, %s, %s op_sel_hi:[1,0,0]" % (vr(t + 2 * p, 2), vr(t + 2 * p, 2), vr(k + 4, 2), vr(k + 4, 2)))
            for j in range(4):
                a("v_rcp_f32 v%d, v%d" % (t + j, t + j))
            for p in range(2):
                a("v_pk_mul_f32 %s, %s, %s" % (vr(t + 4 + 2 * p, 2), vr(t + 4 + 2 * p, 2), vr(t + 2 * p, 2)))
            for p in range(2):
                a("v_cvt_pk_bf16_f32 v%d, v%d, v%d" % (out + 2 * i + p, t + 4 + 2 * p, t + 5 + 2 * p))
        l1, l2 = a.newlabel("K1_FS"), a.newlabel("K1_FS")
        a("s_cmp_lg_u32 s67, 0")
        a("s_cbranch_scc1 %s" % l1)
        a("buffer_store_dwordx4 %s, v%d, s[%d:%d], s61 offen offset:%d %s" % (vr(out, 4), VA, SRD_WS, SRD_WS + 3, rb * 1024, stflag()))
        a("buffer_store_dwordx2 %s, v%d, s[%d:%d], s63 offen offset:%d %s" % (vr(out + 4, 2), VA, SRD_WS, SRD_WS + 3, rb * 1024, stflag()))
        a("s_branch %s" % l2)
        a.label(l1)
        a("buffer_store_dwordx4 %s, v%d, s[%d:%d], s62 offen offset:%d %s" % (vr(out + 2, 4), VA, SRD_WS, SRD_WS + 3, rb * 1024, stflag()))
        a("buffer_store_dwordx2 %s, v%d, s[%d:%d], s63 offen offset:%d %s" % (vr(out, 2), VA, SRD_WS, SRD_WS + 3, rb * 1024 + 8, stflag()))
        a.label(l2)
    fin_compute(a)

def epi_q(a, acc, RS):
    K = T0
    for rb in range(4):
        a("v_mov_b32 v%d, v%d" % (K + 4 * rb, RS + rb))
        a("v_mul_f32 v%d, %s, v%d" % (K + 4 * rb + 2, f32bits(LOG2E), RS + rb))
    VA = 9
    a("v_lshlrev_b32 v%d, 4, v14" % VA)
    a("v_bfe_u32 v10, v0, 4, 1")
    a("v_lshl_add_u32 v%d, v10, 9, v%d" % (VA, VA))
    a("v_lshrrev_b32 v10, 5, v0")
    a("v_lshl_add_u32 v%d, v10, 3, v%d" % (VA, VA))
    a("s_lshl_b32 s61, s%d, 2" % S_MT)
    a("s_add_u32 s61, s61, s60")
    a("s_mul_i32 s61, s61, %d" % (40 * 2048))
    a("s_mul_i32 s62, s%d, %d" % (S_GRP, 10 * 2048))
    a("s_add_u32 s61, s61, s62")
    a("s_mul_i32 s62, s67, %d" % (5 * 2048))
    a("s_add_u32 s61, s61, s62")
    a("s_add_u32 s61, s61, %d" % WS_PQ)
    a("s_mov_b32 s64, %s" % f32bits(1e-6))
    a("s_mov_b32 s65, %s" % f32bits(1e-6))
    T = T0 + 16
    n = 0
    for t in range(5):
        a("s_add_u32 s62, s61, %d" % (t * 2048))
        for rb in range(4):
            D = acc(t, rb); k = K + 4 * rb
            out = T0 + 32 + 2 * (n & 7); n += 1
            for p in range(2):
                a("v_pk_mul_f32 %s, %s, %s op_sel_hi:[1,0]" % (vr(T + 2 * p, 2), vr(D + 2 * p, 2), vr(k + 2, 2)))
            for p in range(2):
                a("v_pk_fma_f32 %s, %s, %s, s[64:65] op_sel_hi:[1,0,1]" % (vr(T + 4 + 2 * p, 2), vr(D + 2 * p, 2), vr(k, 2)))
            for j in range(4):
                a("v_exp_f32 v%d, v%d clamp" % (T + j, T + j))
            for j in range(4):
                a("v_max_f32 v%d, s64, v%d" % (T + 4 + j, T + 4 + j))
            for p in range(2):
                a("v_pk_add_f32 %s, %s, %s" % (vr(T + 2 * p, 2), vr(T + 2 * p, 2), vr(T + 4 + 2 * p, 2)))
            for p in range(2):
                a("v_cvt_pk_bf16_f32 v%d, v%d, v%d" % (out + p, T + 2 * p, T + 2 * p + 1))
            a("buffer_store_dwordx2 %s, v%d, s[%d:%d], s62 offen offset:%d %s" % (vr(out, 2), VA, SRD_WS, SRD_WS + 3, (rb >> 1) * 1024 + (rb & 1) * 256, stflag()))
    fin_compute(a)

FRL = 0
def epi_kv(a, acc):
    RR = T0 + 40
    a("v_lshl_add_u32 v9, v15, 4, s61")
    for rb in range(4):
        a("ds_read_b128 %s, v9 offset:%d" % (vr(RR + 4 * rb, 4), 1024 + rb * 64))
    VA = 9
    a("s_lshl_b32 s61, s60, 11")
    a("s_mul_i32 s62, s67, %d" % (3 * 8192))
    a("s_add_u32 s61, s61, s62")
    a("v_lshl_add_u32 v10, v0, 4, s61")
    a("s_lshl_b32 s62, s67, 14")
    a("v_add_u32 v11, s62, v10")
    a("s_mov_b32 s64, %s" % f32bits(1e-6))
    a("s_mov_b32 s65, %s" % f32bits(1e-6))
    a("s_mov_b32 s62, %s" % f32bits(LOG2E))
    a("s_mov_b32 s63, %s" % f32bits(LOG2E))
    a("s_cmp_eq_u32 s67, 0")
    a("s_cselect_b64 s[68:69], -1, 0")
    a("s_waitcnt lgkmcnt(0)")
    T = T0 + 16
    po = [0, 1, 2, 5, 6]
    n = 0
    def tile(t, isv):
        nonlocal n
        for R in range(2):
            out = T0 + 4 * (n & 3); n += 1
            for h in range(2):
                rb = 2 * R + h
                D = acc(t, rb); rr = RR + 4 * rb
                if isv:
                    for p in range(2):
                        a("v_pk_mul_f32 %s, %s, %s" % (vr(T + 2 * p, 2), vr(D + 2 * p, 2), vr(rr + 2 * p, 2)))
                else:
                    for p in range(2):
                        a("v_pk_mul_f32 %s, %s, %s" % (vr(T + 8 + 2 * p, 2), vr(D + 2 * p, 2), vr(rr + 2 * p, 2)))
                    for p in range(2):
                        a("v_pk_mul_f32 %s, %s, s[62:63]" % (vr(T + 2 * p, 2), vr(T + 8 + 2 * p, 2)))
                    for p in range(2):
                        a("v_pk_add_f32 %s, %s, s[64:65]" % (vr(T + 4 + 2 * p, 2), vr(T + 8 + 2 * p, 2)))
                    for j in range(4):
                        a("v_exp_f32 v%d, v%d clamp" % (T + j, T + j))
                    for j in range(4):
                        a("v_max_f32 v%d, s64, v%d" % (T + 4 + j, T + 4 + j))
                    for p in range(2):
                        a("v_pk_add_f32 %s, %s, %s" % (vr(T + 2 * p, 2), vr(T + 2 * p, 2), vr(T + 4 + 2 * p, 2)))
                for p in range(2):
                    a("v_cvt_pk_bf16_f32 v%d, v%d, v%d" % (out + 2 * h + p, T + 2 * p, T + 2 * p + 1))
            a("ds_write_b128 v%d, %s offset:%d" % (11 if t == 2 else 10, vr(out, 4), FRL + po[t] * 8192 + R * 1024))
    tile(3, True); tile(4, True); tile(0, False); tile(1, False)
    a("s_cmp_lg_u32 s67, 0")
    a("s_cbranch_scc1 K1_KV_T2V")
    tile(2, False)
    a("s_branch K1_KV_T2E")
    a.label("K1_KV_T2V"); a.flush()
    tile(2, True)
    a.label("K1_KV_T2E"); a.flush()
    a("s_waitcnt lgkmcnt(0)")
    a("s_barrier")
    gen_kvjob(a)

def gen_kvjob(a):
    w = S_WAVE
    a("v_lshlrev_b32 v2, 4, v0")
    a("s_sub_u32 s61, s%d, 5" % w)
    a("s_add_u32 s62, s61, 1")
    a("s_cmp_lt_u32 s%d, 5" % w)
    a("s_cselect_b32 s63, s%d, s61" % w)
    a("s_cselect_b32 s64, s%d, s62" % w)
    a("s_cselect_b32 s65, s%d, s62" % w)
    a("s_cselect_b32 s66, s%d, s61" % w)
    a("s_cselect_b32 s70, 1, 0")
    a("s_add_u32 s71, s%d, 3" % w)
    a("s_sub_u32 s72, 4, s%d" % w)
    a("s_lshl_b32 s74, s%d, 6" % S_MT)
    a("s_lshl_b32 s75, s%d, 3" % S_GRP)
    a("s_add_u32 s74, s74, s75")
    a("s_lshl_b32 s74, s74, 11")
    a("s_add_u32 s74, s74, %d" % WS_KVP)
    a("v_mov_b32 v13, %d" % OOB)
    A0, B0, D = 16, 48, 80
    def job(sa, sb, zflag, tag):
        a("s_lshl_b32 s76, s%d, 13" % sa)
        a("v_add_u32 v3, s76, v2")
        a("s_lshl_b32 s77, s%d, 13" % sb)
        a("s_add_u32 s77, s77, %d" % (5 * 8192))
        a("v_add_u32 v4, s77, v2")
        for k in range(8):
            a("ds_read_b128 %s, v3 offset:%d" % (vr(A0 + 4 * k, 4), FRL + k * 1024))
        for k in range(8):
            a("ds_read_b128 %s, v4 offset:%d" % (vr(B0 + 4 * k, 4), FRL + k * 1024))
        a("s_lshl_b32 s77, s%d, 4" % sb)
        a("v_add_u32 v6, s77, v14")
        divmod_const(a, 7, 8, 6, 20, 128)
        a("v_cmp_le_u32 vcc, 10, v8")
        a("v_cndmask_b32 v9, 0, 1, vcc")
        a("v_mul_u32_u24 v10, 10, v9")
        a("v_sub_u32 v10, v8, v10")
        a("v_lshrrev_b32 v11, 2, v10")
        a("v_lshlrev_b32 v11, 3, v11")
        a("v_lshl_add_u32 v11, v9, 2, v11")
        a("v_and_b32 v12, 3, v10")
        a("v_add_u32 v11, v11, v12")
        if zflag:
            lab = "K1_KVJ_NZ" + tag
            a("s_cmp_eq_u32 s%d, 0" % zflag)
            a("s_cbranch_scc1 %s" % lab)
            a("s_waitcnt lgkmcnt(0)")
            for r in range(32):
                a("v_mov_b32 v%d, 0x3f803f80" % (B0 + r))
            a("v_lshrrev_b32 v7, 1, v14")
            a("v_and_b32 v11, 1, v14")
            a("v_lshlrev_b32 v11, 2, v11")
            a("v_add_u32 v11, 18, v11")
            a("v_cmp_gt_u32 vcc, 8, v14")
            a("v_cndmask_b32 v7, 64, v7, vcc")
            a.label(lab)
        a("v_sub_u32 v12, s%d, v7" % sa)
        a("v_cmp_gt_u32 vcc, 2, v12")
        a("v_lshl_add_u32 v12, v7, 1, v12")
        a("v_lshl_add_u32 v11, v12, 6, v11")
        a("v_and_b32 v12, 1, v15")
        a("v_lshl_add_u32 v11, v12, 5, v11")
        a("v_lshlrev_b32 v11, 5, v11")
        a("v_lshrrev_b32 v12, 1, v15")
        a("v_lshl_add_u32 v11, v12, 4, v11")
        a("v_cndmask_b32 v11, v13, v11, vcc")
        a("s_waitcnt lgkmcnt(0)")
        for k in range(8):
            a("v_mfma_f32_16x16x32_bf16 %s, %s, %s, %s" % (vr(D, 4), vr(A0 + 4 * k, 4), vr(B0 + 4 * k, 4), vr(D, 4) if k else "0"))
        a("buffer_store_dwordx4 %s, v11, s[%d:%d], s74 offen %s" % (vr(D, 4), SRD_WS, SRD_WS + 3, stflag()))
        a.nops(2)
    job(63, 64, 0, "0")
    job(65, 66, 70, "1")
    a("s_cmp_ge_u32 s%d, 2" % w)
    a("s_cbranch_scc1 K1_KVJ_DONE")
    job(71, 72, 0, "2")
    a.label("K1_KVJ_DONE")
    fin_compute(a)

def gen_packer(a):
    pst = CFG.get("pk_st", "sc1")
    a("s_sub_u32 s60, s29, 4")
    a("s_lshl_b32 s60, s60, 2")
    a("s_add_u32 s60, s60, s52")
    a("s_mul_i32 s60, s60, 12")
    a("s_add_u32 s60, s60, s%d" % S_WAVE)
    a("s_cmp_lg_u32 s60, 0")
    a("s_cbranch_scc1 K1_PK_NOTAG")
    srd(a, SRD_DBG, S_DBG, 256)
    a("s_memrealtime s[72:73]")
    a("s_waitcnt lgkmcnt(0)")
    a("s_or_b32 s72, s72, 1")
    a("v_mov_b32 v2, s72")
    a("s_mov_b64 exec, 1")
    a("buffer_store_dword v2, off, s[%d:%d], 0 sc0 sc1" % (SRD_DBG, SRD_DBG + 3))
    a("s_mov_b64 exec, -1")
    a.label("K1_PK_NOTAG")
    srd(a, SRD_W0, S_WD, 1728 * 1280)
    srd(a, SRD_W1, S_WO, 640 * 1280)
    a("s_mul_i32 s61, s%d, 10240" % S_WAVE)
    for i in range(10):
        a("v_add_u32 v2, %d, v0" % (64 * i))
        divmod_const(a, 20 + i, 3, 2, 20, 640)
        a("v_lshlrev_b32 v%d, 4, v3" % (30 + i))
    a("v_lshrrev_b32 v2, 4, v0")
    a("v_bfe_u32 v3, v0, 2, 2")
    a("v_lshl_add_u32 v2, v2, 3, v3")
    a("v_mul_u32_u24 v2, 320, v2")
    a("v_and_b32 v3, 3, v0")
    a("v_lshl_add_u32 v2, v3, 3, v2")
    a("v_add_u32 v10, s61, v2")
    a("v_lshlrev_b32 v11, 4, v0")
    a("s_cmp_ge_u32 s60, 64")
    a("s_cbranch_scc1 K1_PK_NOPOI")
    for r in range(4):
        a("v_mov_b32 v%d, -1" % (12 + r))
    a("s_lshl_b32 s62, s60, 10")
    a("s_add_u32 s62, s62, %d" % WS_KVF)
    a("buffer_store_dwordx4 v[12:15], v11, s[%d:%d], s62 offen sc0 sc1" % (SRD_WS, SRD_WS + 3))
    a.label("K1_PK_NOPOI")
    a("s_mov_b32 s70, 0")
    a.label("K1_PK_LOOP")
    a("s_lshr_b32 s62, s60, 2")
    a("s_and_b32 s63, s60, 3")
    a("s_mul_i32 s64, s63, 320")
    a("s_cmp_ge_u32 s62, 54")
    a("s_cbranch_scc1 K1_PK_O")
    a("s_mul_i32 s65, s62, %d" % (32 * 1280))
    a("s_add_u32 s64, s64, s65")
    for i in range(10):
        r = 20 + i
        a("v_and_b32 v2, 3, v%d" % r)
        a("v_lshrrev_b32 v3, 3, v%d" % r)
        a("v_lshl_add_u32 v2, v3, 2, v2")
        a("v_bfe_u32 v3, v%d, 2, 1" % r)
        a("v_lshl_add_u32 v2, v3, 4, v2")
        a("v_mul_u32_u24 v2, 1280, v2")
        a("v_add_u32 v2, v2, v%d" % (30 + i))
        a("s_add_u32 m0, s61, %d" % (i * 1024))
        a("buffer_load_dwordx4 v2, s[%d:%d], s64 offen lds" % (SRD_W0, SRD_W0 + 3))
    a("s_branch K1_PK_GO")
    a.label("K1_PK_O"); a.flush()
    a("s_sub_u32 s65, s62, 54")
    a("s_mul_i32 s66, s65, 52")
    a("s_lshr_b32 s66, s66, 8")
    a("s_mul_i32 s67, s66, 5")
    a("s_sub_u32 s67, s65, s67")
    a("s_lshl_b32 s67, s67, 4")
    a("s_mul_i32 s66, s66, %d" % (160 * 1280))
    a("s_add_u32 s64, s64, s66")
    for i in range(10):
        r = 20 + i
        a("v_and_b32 v2, 15, v%d" % r)
        a("v_add_u32 v2, s67, v2")
        divmod_const(a, 3, 4, 2, 10, 80)
        a("v_mul_u32_u24 v3, 20, v3")
        a("v_add_u32 v3, v3, v4")
        a("v_lshrrev_b32 v4, 4, v%d" % r)
        a("v_mul_u32_u24 v4, 10, v4")
        a("v_add_u32 v3, v3, v4")
        a("v_mul_u32_u24 v2, 1280, v3")
        a("v_add_u32 v2, v2, v%d" % (30 + i))
        a("s_add_u32 m0, s61, %d" % (i * 1024))
        a("buffer_load_dwordx4 v2, s[%d:%d], s64 offen lds" % (SRD_W1, SRD_W1 + 3))
    a.label("K1_PK_GO"); a.flush()
    m4 = CFG.get("merged") == 4
    def gettag(t):
        a("s_mov_b32 s73, 0")
        a.label("K1_PK_TAG" + t)
        a("buffer_load_dword v13, off, s[%d:%d], 0 sc1" % (SRD_DBG, SRD_DBG + 3))
        a("s_waitcnt vmcnt(0)")
        a("v_readfirstlane_b32 s78, v13")
        a("s_add_u32 s73, s73, 1")
        a("s_cmp_gt_u32 s73, 200000")
        a("s_cbranch_scc1 K1_PK_TAGOK" + t)
        a("s_cmp_eq_u32 s78, 0")
        a("s_cbranch_scc1 K1_PK_TAG" + t)
        a.label("K1_PK_TAGOK" + t)
    def pkflag(base):
        a("s_sub_u32 s72, s29, 4")
        a("s_lshl_b32 s72, s72, 2")
        a("s_add_u32 s72, s72, s52")
        a("s_lshl_b32 s72, s72, 7")
        a("s_add_u32 s72, s72, %d" % base)
        a("s_mov_b64 exec, 1")
        a("buffer_store_dword v13, off, s[%d:%d], s72 sc0 sc1" % (SRD_WS, SRD_WS + 3))
        a("s_mov_b64 exec, -1")
    def stores(base, sreg):
        for c in range(10):
            off = (c // 5) * 74 * 5120 + (c % 5) * 1024
            a("s_add_u32 s66, s%d, %d" % (sreg, off))
            a("buffer_store_dwordx4 %s, v11, s[%d:%d], s66 offen %s" % (vr(base + 4 * c, 4), SRD_WS, SRD_WS + 3, pst))
    def trreads(base):
        for c in range(10):
            a("ds_read_b64_tr_b16 %s, v10 offset:%d" % (vr(base + 4 * c, 2), c * 32))
            a("ds_read_b64_tr_b16 %s, v10 offset:%d" % (vr(base + 2 + 4 * c, 2), c * 32 + 4 * 320))
    a("s_lshl_b32 s65, s63, 1")
    a("s_mul_i32 s65, s65, 74")
    a("s_add_u32 s65, s65, s62")
    a("s_mul_i32 s65, s65, 5120")
    a("s_add_u32 s65, s65, %d" % WS_W2P)
    a("s_cmp_eq_u32 s70, 1")
    a("s_cbranch_scc1 K1_PK_SECOND")
    a("s_waitcnt vmcnt(0)")
    trreads(40)
    a("s_mov_b32 s71, s65")
    a("s_mov_b32 s70, 1")
    a("s_add_u32 s60, s60, 192")
    a("s_waitcnt lgkmcnt(0)")
    a("s_cmp_lt_u32 s60, 296")
    a("s_cbranch_scc1 K1_PK_LOOP")
    stores(40, 71)
    if m4: a("s_mov_b32 s70, 2")
    else: a("s_branch K1_PK_FIN")
    if m4: a("s_branch K1_PK_A")
    a.label("K1_PK_SECOND"); a.flush()
    stores(40, 71)
    if m4:
        a.label("K1_PK_A"); a.flush()
        srd(a, SRD_DBG, S_DBG, 256)
        a("s_waitcnt vmcnt(0)")
        a("s_barrier")
        a("s_cmp_lg_u32 s%d, 11" % S_WAVE)
        a("s_cbranch_scc1 K1_PK_NOA")
        gettag("A")
        pkflag(WS_PKA)
        a.label("K1_PK_NOA")
        a("s_cmp_eq_u32 s70, 2")
        a("s_cbranch_scc1 K1_PK_FIN")
    else:
        a("s_waitcnt vmcnt(10)")
    trreads(80)
    a("s_waitcnt lgkmcnt(0)")
    stores(80, 65)
    a.label("K1_PK_FIN"); a.flush()
    if CFG.get("pk_wb"):
        a("s_waitcnt vmcnt(0)")
        a("buffer_wbl2 sc1")
    if CFG.get("merged"):
        import p2
        srd(a, SRD_DBG, S_DBG, 256)
        a("s_waitcnt vmcnt(0)")
        a("s_barrier")
        a("s_cmp_lt_u32 s%d, 8" % S_WAVE)
        a("s_cbranch_scc1 %s" % ("K1_PK_W" if CFG.get("merged", 0) >= 2 else "K1_END"))
        a("s_mov_b32 s73, 0")
        a.label("K1_PK_TAG")
        a("buffer_load_dword v13, off, s[%d:%d], 0 sc1" % (SRD_DBG, SRD_DBG + 3))
        a("s_waitcnt vmcnt(0)")
        a("v_readfirstlane_b32 s78, v13")
        a("s_add_u32 s73, s73, 1")
        a("s_cmp_gt_u32 s73, 200000")
        a("s_cbranch_scc1 K1_PK_TAGOK")
        a("s_cmp_eq_u32 s78, 0")
        a("s_cbranch_scc1 K1_PK_TAG")
        a.label("K1_PK_TAGOK")
        a("s_sub_u32 s60, s%d, 8" % S_WAVE)
        a("s_cmp_lg_u32 s60, 0")
        a("s_cbranch_scc1 K1_PK_NOFLAG")
        a("s_sub_u32 s72, s29, 4")
        a("s_lshl_b32 s72, s72, 2")
        a("s_add_u32 s72, s72, s52")
        a("s_lshl_b32 s72, s72, 7")
        a("s_add_u32 s72, s72, %d" % WS_PKF)
        a("s_mov_b64 exec, 1")
        a("buffer_store_dword v13, off, s[%d:%d], s72 sc0 sc1" % (SRD_WS, SRD_WS + 3))
        a("s_mov_b64 exec, -1")
        a.label("K1_PK_NOFLAG")
        if m4:
            import p5
            w2base(a)
            a("s_mov_b32 s73, %d" % WS_PKA)
            p2.poll(a, "PK4", 16, 73, 7)
            for p in range(7, 14): p5.l_load(a, p, sbase=28, vb=5)
            a("s_mov_b32 s%d, 0" % S_GRP)
            a("s_branch P5_LSET")
            a.label("K1_PK_W"); a.flush()
            a("s_barrier")
            a("v_mov_b32 v12, %d" % (ST_FLAG + 4))
            a("ds_read_b32 v13, v12")
            a("s_waitcnt lgkmcnt(0)")
            a("s_cmp_ge_u32 s%d, 4" % S_WAVE)
            a("s_cbranch_scc1 P3_WORK")
            a("s_sub_u32 s82, s29, 4")
            a("s_lshl_b32 s82, s82, 2")
            a("s_add_u32 s82, s82, s52")
            a("s_lshl_b32 s82, s82, 2")
            a("s_add_u32 s82, s82, s%d" % S_WAVE)
            a("v_lshlrev_b32 v%d, 4, v0" % p2.V_B)
            p2.gen_reducer(a, F=82)
            a("s_branch P3_WORK")
            return
        if CFG.get("merged", 0) >= 2:
            import p3
            p3.setup(a, CFG)
            a("v_mov_b32 v12, %d" % (ST_FLAG + 4))
            a("ds_write_b32 v12, v13")
            a("s_waitcnt lgkmcnt(0)")
            a("s_barrier")
            a("s_mov_b32 s73, %d" % WS_PKF)
            p2.poll(a, "PK3", 16, 73, 7)
            if CFG.get("merged") == 2: p3.l_preload_regs(a)
            a("s_branch P3_LENTRY")
            a.label("K1_PK_W"); a.flush()
            a("s_barrier")
            a("v_mov_b32 v12, %d" % (ST_FLAG + 4))
            a("ds_read_b32 v13, v12")
            a("s_waitcnt lgkmcnt(0)")
            a("s_branch P3_WORK")
            return
        p2.setup(a, CFG)
        a("s_mov_b32 s79, 1")
        a("s_branch P2_ENTRY")
        return
    stamp_flush(a, 0, S_WAVE, 1)
    a("s_endpgm")
```

```python
from asmlib import *
import k1
from k1 import WS_H, WS_PQ, WS_W2P, WS_KVP, WS_KVF, WS_FLG, WS_END, OOB, srd, f32bits, stamp, SRD_WS, SRD_X

S_OUT = 18
SRD_OUT = 36
S_W = 60
S_MT, S_NT = 61, 62
S_HB, S_WB, S_PB, S_KB, S_WO, S_HH, S_WH, S_XO, S_LB = 63, 64, 65, 66, 67, 68, 69, 70, 71
ACC = 16
V_A, V_B, V_P, V_XO, V_L, V_TAG = 2, 6, 7, 9, 10, 13
NL = 38

def setup(a, cfg):
    a("s_and_b32 s72, s2, 7")
    a("s_lshr_b32 s73, s2, 3")
    a("s_and_b32 s74, s72, 3")
    a("s_lshl_b32 s74, s74, 3")
    a("s_and_b32 s75, s73, 7")
    a("s_add_u32 s%d, s74, s75" % S_MT)
    a("s_lshr_b32 s74, s72, 2")
    a("s_lshl_b32 s74, s74, 2")
    a("s_lshr_b32 s75, s73, 3")
    a("s_add_u32 s%d, s74, s75" % S_NT)
    a("v_lshlrev_b32 v%d, 4, v0" % V_B)
    for rb in range(4):
        a("s_xor_b32 s72, s%d, %d" % (S_W, rb))
        a("s_lshl_b32 s72, s72, 10")
        a("v_add_u32 v%d, s72, v%d" % (V_A + rb, V_B))
    a("s_and_b32 s72, s%d, 1" % S_W)
    a("s_lshl_b32 s72, s72, 8")
    a("v_xor_b32 v11, s72, v%d" % V_B)
    a("s_lshr_b32 s72, s%d, 1" % S_W)
    a("s_lshl_b32 s73, s72, 10")
    a("v_add_u32 v%d, s73, v11" % V_P)
    a("s_xor_b32 s73, s73, 1024")
    a("v_add_u32 v%d, s73, v11" % (V_P + 1))
    a("s_mul_i32 s%d, s%d, %d" % (S_HB, S_MT, 54 * 4096))
    a("s_mul_i32 s%d, s%d, %d" % (S_WB, S_NT, 74 * 5120))
    a("s_add_u32 s%d, s%d, %d" % (S_WB, S_WB, WS_W2P))
    a("s_mul_i32 s72, s%d, %d" % (S_W, 5 * 5120))
    a("s_add_u32 s%d, s%d, s72" % (S_WO, S_WB))
    a("s_add_u32 s%d, s%d, %d" % (S_WO, S_WO, 54 * 5120))
    a("s_and_b32 s72, s%d, 1" % S_W)
    a("s_add_u32 s72, s72, 52")
    a("s_lshl_b32 s73, s72, 12")
    a("s_add_u32 s%d, s%d, s73" % (S_HH, S_HB))
    a("s_mul_i32 s73, s72, 5120")
    a("s_add_u32 s%d, s%d, s73" % (S_WH, S_WB))
    a("s_mul_i32 s72, s%d, %d" % (S_W, 13 * 4096))
    a("s_add_u32 s%d, s%d, s72" % (S_HB, S_HB))
    a("s_mul_i32 s72, s%d, %d" % (S_W, 13 * 5120))
    a("s_add_u32 s%d, s%d, s72" % (S_WB, S_WB))
    a("s_mul_i32 s%d, s%d, %d" % (S_PB, S_MT, 40 * 2048))
    a("s_mul_i32 s72, s%d, %d" % (S_W, 10 * 2048))
    a("s_add_u32 s%d, s%d, s72" % (S_PB, S_PB))
    a("s_add_u32 s%d, s%d, %d" % (S_PB, S_PB, WS_PQ))
    a("s_lshl_b32 s%d, s%d, 14" % (S_KB, S_W))
    a("s_add_u32 s%d, s%d, %d" % (S_KB, S_KB, WS_KVF))
    a("v_and_b32 v11, 15, v0")
    a("v_mul_u32_u24 v%d, 1280, v11" % V_XO)
    a("v_lshrrev_b32 v11, 4, v0")
    a("v_lshl_add_u32 v%d, v11, 3, v%d" % (V_XO, V_XO))
    a("s_lshl_b32 s72, s%d, 2" % S_MT)
    a("s_add_u32 s72, s72, s%d" % S_W)
    a("s_mul_i32 s72, s72, %d" % (16 * 1280))
    a("s_mul_i32 s73, s%d, 160" % S_NT)
    a("s_add_u32 s%d, s72, s73" % S_XO)
    a("s_mul_i32 s%d, s%d, %d" % (S_LB, S_W, globals()["NL"] * 1024))
    a("v_add_u32 v%d, s%d, v%d" % (V_L, S_LB, V_B))
    srd(a, SRD_OUT, S_OUT, 2048 * 1280)

def pf_b(a):
    a("v_lshlrev_b32 v14, 7, v0")
    a("s_and_b32 s72, s%d, 7" % S_MT)
    a("s_lshl_b32 s72, s72, 2")
    a("s_add_u32 s72, s72, s%d" % S_W)
    a("s_mul_i32 s72, s72, %d" % (93 * 128))
    a("s_mul_i32 s73, s%d, %d" % (S_NT, 74 * 5120))
    a("s_add_u32 s72, s72, s73")
    a("s_add_u32 s72, s72, %d" % WS_W2P)
    a("buffer_load_dword v1, v14, s[%d:%d], s72 offen" % (SRD_WS, SRD_WS + 3))
    a("s_add_u32 s72, s72, %d" % (29 * 128))
    a("buffer_load_dword v1, v14, s[%d:%d], s72 offen" % (SRD_WS, SRD_WS + 3))

def pf_a(a):
    a("v_lshlrev_b32 v14, 7, v0")
    a("s_and_b32 s72, s%d, 3" % S_NT)
    a("s_lshl_b32 s72, s72, 2")
    a("s_add_u32 s72, s72, s%d" % S_W)
    a("s_mul_i32 s73, s72, %d" % (108 * 128))
    a("s_mul_i32 s74, s%d, %d" % (S_MT, 54 * 4096))
    a("s_add_u32 s73, s73, s74")
    a("buffer_load_dword v1, v14, s[%d:%d], s73 offen" % (SRD_WS, SRD_WS + 3))
    a("s_add_u32 s73, s73, %d" % (44 * 128))
    a("buffer_load_dword v1, v14, s[%d:%d], s73 offen" % (SRD_WS, SRD_WS + 3))
    a("s_mul_i32 s73, s72, %d" % (40 * 128))
    a("s_mul_i32 s74, s%d, %d" % (S_MT, 40 * 2048))
    a("s_add_u32 s73, s73, s74")
    a("s_add_u32 s73, s73, %d" % WS_PQ)
    a("s_mov_b32 s76, -1")
    a("s_mov_b32 s77, 0xff")
    a("s_mov_b64 exec, s[76:77]")
    a("buffer_load_dword v1, v14, s[%d:%d], s73 offen" % (SRD_WS, SRD_WS + 3))
    a("s_mov_b64 exec, -1")

def poll(a, tag, nlanes, soff_sgpr, stride_shift, sleep=4):
    a("v_lshlrev_b32 v14, %d, v0" % stride_shift)
    a("s_mov_b32 s76, 0x%x" % ((1 << nlanes) - 1))
    a("s_mov_b32 s77, 0")
    a("s_mov_b32 s78, 0")
    a("s_mov_b64 exec, s[76:77]")
    a.label("P2_POLL_" + tag)
    a("buffer_load_dword v12, v14, s[%d:%d], s%d offen sc1" % (SRD_WS, SRD_WS + 3, soff_sgpr))
    a("s_waitcnt vmcnt(0)")
    a("v_cmp_ne_u32 vcc, v12, v%d" % V_TAG)
    a("s_cbranch_vccz P2_OK_" + tag)
    a("s_add_u32 s78, s78, 1")
    a("s_cmp_gt_u32 s78, 100000")
    a("s_cbranch_scc1 P2_OK_" + tag)
    a("s_sleep %d" % sleep)
    a("s_branch P2_POLL_" + tag)
    a.label("P2_OK_" + tag)
    a("s_mov_b64 exec, -1")

class Plan:
    def __init__(self, a, cfg):
        self.a, self.cfg = a, cfg
        self.lfree = list(range(NL))
        self.rfree = list(range(112, 168, 4)) + [96, 100, 104, 108]
        self.lslot, self.reg, self.pos, self.dpos = {}, {}, {}, {}
        self.nv = 0
        self.nd = 0
        self.src = {}
        self.stream = []
        self.sp = 0
    def item(self, name, v, sb, off):
        self.src[name] = (v, sb, off)
    def dma(self, name):
        a = self.a
        v, sb, off = self.src[name]
        sl = self.lfree.pop(0)
        self.lslot[name] = sl
        a("s_add_u32 m0, s%d, %d" % (S_LB, sl * 1024))
        a("s_add_u32 s72, s%d, %d" % (sb, off))
        a("buffer_load_dwordx4 v%d, s[%d:%d], s72 offen %s lds" % (v, SRD_WS, SRD_WS + 3, k1.CFG.get("p2_ld", "sc1")))
        self.pos[name] = self.nv; self.nv += 1
    def pump(self, n):
        k = 0
        while k < n and self.sp < len(self.stream) and self.lfree:
            nm = self.stream[self.sp]; self.sp += 1
            if nm in self.pos: continue
            self.dma(nm); k += 1
        return k
    def ensure(self, names):
        while any(n not in self.pos for n in names):
            assert self.pump(1), "LDS deadlock %s" % names
    def vwait(self, names):
        last = max(self.pos[n] for n in names)
        if last < 0: return
        self.a("s_waitcnt vmcnt(%d)" % min(63, self.nv - 1 - last))
    def rd(self, name, avoid=()):
        r = [x for x in self.rfree if x not in avoid][0]
        self.rfree.remove(r); self.reg[name] = r
        self.dpos[name] = self.nd; self.nd += 1
        return "ds_read_b128 %s, v%d offset:%d" % (vr(r, 4), V_L, self.lslot[name] * 1024)
    def dwait(self, names):
        last = max(self.dpos[n] for n in names)
        self.a("s_waitcnt lgkmcnt(%d)" % min(15, self.nd - 1 - last))
        for n, p in list(self.dpos.items()):
            if p <= last and n in self.lslot:
                self.lfree.append(self.lslot.pop(n))
    def rel(self, name):
        self.rfree.append(self.reg.pop(name))

def build(a, cfg):
    P = Plan(a, cfg)
    blocks = []
    def H(i):
        half = i == 13
        nm = []
        for j in range(5):
            n = "H%dB%d" % (i, j); P.item(n, V_B, S_WH if half else S_WB, (0 if half else i * 5120) + j * 1024)
        for j in range(2 if half else 4):
            n = "H%dA%d" % (i, j); P.item(n, V_A + j, S_HH if half else S_HB, 0 if half else i * 4096)
        order = ["B0", "A0", "A1", "B1", "A2", "A3", "B2", "B3", "B4"]
        nm = ["H%d%s" % (i, o) for o in order if "H%d%s" % (i, o) in P.src]
        blocks.append(("H", i, nm))
    def G(phi):
        nm = []
        for cb in range(5):
            n = "W%d_%d" % (phi, cb); P.item(n, V_B, S_WO, phi * 5120 + cb * 1024); nm.append(n)
        blocks.append(("G", phi, nm))
    NH1 = cfg.get("p2_nh1", 8)
    for i in range(NH1): H(i)
    gdone, hnext = 0, NH1
    for hh in range(8):
        b0 = 5 * (hh >> 2) + (hh & 3)
        for R in range(2):
            nm = []
            for i in range(2):
                n = "K%d_%d" % (2 * hh + i, R); P.item(n, V_B, S_KB, (2 * hh + i) * 1024); nm.append(n)
            for i in range(2):
                n = "P%d_%d_%d" % (hh, i, R); P.item(n, V_P + R, S_PB, (b0 + i) * 2048); nm.append(n)
            blocks.append(("O", (hh, R), nm))
        if gdone < 5 and (16 * gdone + 15) // 10 <= hh:
            G(gdone); gdone += 1
        elif hnext < 14:
            H(hnext); hnext += 1
    while gdone < 5 or hnext < 14:
        if hnext < 14: H(hnext); hnext += 1
        if gdone < 5: G(gdone); gdone += 1
    return P, blocks

def gen_preload(a, cfg, P, blocks):
    npre = cfg.get("p2_pre", 30)
    pre = [n for k, arg, nm in blocks if k == "H" for n in sorted(nm) if "B" in n][:npre]
    for n in pre: P.dma(n)
    if cfg.get("p2_pfb"): pf_b(a)

def gen_main(a, cfg, P, blocks, bars=(), epilogue=True):
    alias = {}
    stream = []
    for k, arg, nm in blocks:
        for n in nm:
            key = P.src[n]
            if key in alias: continue
            alias[key] = n; stream.append(n)
    uses = {}
    for k, arg, nm in blocks:
        for n in nm: uses[alias[P.src[n]]] = uses.get(alias[P.src[n]], 0) + 1
    P.stream = stream
    DT = 96
    def acc(rb, cb): return ACC + (rb * 5 + cb) * 4
    started = set()
    def mf(rb, cb, A, B):
        c = vr(acc(rb, cb), 4) if (rb, cb) in started else "0"
        started.add((rb, cb))
        return "v_mfma_f32_16x16x32_bf16 %s, %s, %s, %s" % (vr(acc(rb, cb), 4), vr(A, 4), vr(B, 4), c)
    in_o = [False]
    def avoid(): return (96, 100, 104, 108) if in_o[0] else ()
    pend = {}
    def issue_reads(nm, limit):
        out = []
        for n in nm:
            if n in P.reg: continue
            if len([x for x in P.rfree if x not in avoid()]) <= limit: break
            m = alias[P.src[n]]
            r = [x for x in P.rfree if x not in avoid()][0]
            P.rfree.remove(r); P.reg[n] = r
            P.dpos[n] = P.nd; P.nd += 1
            out.append("ds_read_b128 %s, v%d offset:%d" % (vr(r, 4), V_L, P.lslot[m] * 1024))
        return out
    def dwait(nm):
        last = max(P.dpos[n] for n in nm)
        a("s_waitcnt lgkmcnt(%d)" % min(15, P.nd - 1 - last))
        for n, p in list(P.dpos.items()):
            if p <= last:
                del P.dpos[n]
                m = alias[P.src[n]]
                uses[m] -= 1
                if uses[m] == 0: P.lfree.append(P.lslot.pop(m))
    def landed(nm):
        ms = [alias[P.src[n]] for n in nm]
        P.ensure(ms); P.vwait(ms)
    opiece = {}
    if cfg.get("p2_pfa") == 1: pf_a(a)
    P.pump(64)
    if cfg.get("p2_pfa") == 2: pf_a(a)
    first_o = min(i for i, b in enumerate(blocks) if b[0] == "O")
    last_o = max(i for i, b in enumerate(blocks) if b[0] == "O")
    pendingOB = None
    def ob(hh, R):
        o = []
        o.append("v_add_f32 v%d, %s, v%d" % (DT + 10, f32bits(1e-6), DT + 10))
        o.append("v_rcp_f32 v%d, v%d" % (DT + 10, DT + 10))
        for j in range(0, 10, 2):
            o.append("v_pk_mul_f32 %s, %s, %s op_sel_hi:[1,0]" % (vr(DT + j, 2), vr(DT + j, 2), vr(DT + 10, 2)))
        for j in range(5):
            d = 5 * hh + j; key = (R, d // 4)
            if key not in opiece:
                r = [x for x in P.rfree if x not in avoid()][0]
                P.rfree.remove(r); opiece[key] = r
            o.append("v_cvt_pk_bf16_f32 v%d, v%d, v%d" % (opiece[key] + d % 4, DT + 2 * j, DT + 2 * j + 1))
        return o
    for bi, (kind, arg, nm) in enumerate(blocks):
        for _ in range(list(bars).count(bi)): a("s_barrier")
        if bi + 1 >= first_o and bi <= last_o: in_o[0] = True
        if bi > last_o: in_o[0] = False
        lim = 2 if in_o[0] else 0
        if any(n not in P.reg for n in nm):
            landed([n for n in nm if n not in P.reg])
            for t in issue_reads(nm, 0): a(t)
            assert all(n in P.reg for n in nm), ("regs", kind, arg, P.rfree)
        if bi == 0: stamp(a, 2)
        pending = [n for n in nm if n in P.dpos]
        if pending: dwait(pending)
        if kind == "H":
            i = arg; nrb = 2 if i == 13 else 4
            ms = [mf(rb, cb, P.reg["H%dB%d" % (i, cb)], P.reg["H%dA%d" % (i, rb)]) for cb in range(5) for rb in range(nrb)]
        elif kind == "G":
            phi = arg
            for R in range(2):
                for j in range(4):
                    a("v_permlane16_swap_b32 v%d, v%d" % (opiece[(R, 2 * phi)] + j, opiece[(R, 2 * phi + 1)] + j))
            ms = [mf(rb, cb, P.reg["W%d_%d" % (phi, cb)], opiece[(rb >> 1, 2 * phi + (rb & 1))]) for cb in range(5) for rb in range(4)]
        else:
            hh, R = arg
            k0, k1r = P.reg[nm[0]], P.reg[nm[1]]
            lchk, lok = a.newlabel("P2_KC"), a.newlabel("P2_KO")
            a("s_mov_b32 s78, 0")
            a.label(lchk)
            a("v_cmp_eq_u32 vcc, -1, v%d" % k0)
            a("v_cmp_eq_u32 s[76:77], -1, v%d" % k1r)
            a("s_or_b64 vcc, vcc, s[76:77]")
            a("s_cbranch_vccz %s" % lok)
            a("s_add_u32 s78, s78, 1")
            a("s_cmp_gt_u32 s78, 100000")
            a("s_cbranch_scc1 %s" % lok)
            a("s_sleep 4")
            a("s_add_u32 s73, s%d, %d" % (S_KB, 2 * hh * 1024))
            a("buffer_load_dwordx4 %s, v%d, s[%d:%d], s73 offen sc1" % (vr(k0, 4), V_B, SRD_WS, SRD_WS + 3))
            a("buffer_load_dwordx4 %s, v%d, s[%d:%d], s73 offen offset:1024 sc1" % (vr(k1r, 4), V_B, SRD_WS, SRD_WS + 3))
            a("s_waitcnt vmcnt(0)")
            a("s_branch %s" % lchk)
            a.label(lok)
            ms = ["v_mfma_f32_32x32x16_bf16 %s, %s, %s, %s" % (vr(DT, 16), vr(P.reg[nm[i]], 4), vr(P.reg[nm[2 + i]], 4), vr(DT, 16) if i else "0") for i in range(2)]
        mid = int(len(ms) * cfg.get("p2_mid", 0.4))
        fill = []; k = 0
        for i, m in enumerate(ms):
            if i == mid and bi + 1 < len(blocks):
                nn = blocks[bi + 1][2]
                landed(nn)
                fill = issue_reads(nn, lim)
            a(m)
            if k < len(fill): a(fill[k]); k += 1
            if i % 2 == 1 or i < mid: P.pump(1)
        for t in fill[k:]: a(t)
        for n in nm: P.rel(n)
        if kind == "G":
            for R in range(2):
                for i in range(2): P.rfree.append(opiece.pop((R, 2 * arg + i)))
        if kind == "O":
            P.pump(3)
            for t in ob(*arg): a(t)
        if bi == len(blocks) - 3:
            xr = []
            for cb in range(5):
                pass
    assert P.sp == len(P.stream)
    stamp(a, 3)
    if not epilogue: return
    XR = 96
    for cb in range(5):
        a("buffer_load_dwordx2 %s, v%d, s[%d:%d], s%d offen offset:%d" % (vr(XR + 2 * cb, 2), V_XO, SRD_X, SRD_X + 3, S_XO, cb * 32))
    a("s_barrier")
    for rb in range(1, 4):
        a("s_xor_b32 s72, s%d, %d" % (S_W, rb))
        a("s_mul_i32 s72, s72, %d" % (3 * 5120))
        a("v_add_u32 v%d, s72, v%d" % (1 + rb, V_B))
    for rb in range(1, 4):
        for cb in range(5):
            a("ds_write_b128 v%d, %s offset:%d" % (1 + rb, vr(acc(rb, cb), 4), (rb - 1) * 5120 + cb * 1024))
    a("s_mul_i32 s72, s%d, %d" % (S_W, 3 * 5120))
    a("v_add_u32 v5, s72, v%d" % V_B)
    a("s_waitcnt lgkmcnt(0)")
    a("s_barrier")
    for j in range(3):
        for cb in range(5):
            a("ds_read_b128 %s, v5 offset:%d" % (vr(acc(1 + j, cb), 4), j * 5120 + cb * 1024))
    a("s_waitcnt vmcnt(0)")
    T = 112
    for cb in range(5):
        t = T + 4 * cb; xr = XR + 2 * cb
        a("v_lshlrev_b32 v%d, 16, v%d" % (t, xr))
        a("v_and_b32 v%d, 0xffff0000, v%d" % (t + 1, xr))
        a("v_lshlrev_b32 v%d, 16, v%d" % (t + 2, xr + 1))
        a("v_and_b32 v%d, 0xffff0000, v%d" % (t + 3, xr + 1))
        for p in (0, 2):
            a("v_pk_add_f32 %s, %s, %s" % (vr(acc(0, cb) + p, 2), vr(acc(0, cb) + p, 2), vr(t + p, 2)))
    a("s_waitcnt lgkmcnt(0)")
    for cb in range(5):
        c = acc(0, cb); xr = XR + 2 * cb
        for j in range(1, 4):
            for p in (0, 2):
                a("v_pk_add_f32 %s, %s, %s" % (vr(c + p, 2), vr(c + p, 2), vr(acc(j, cb) + p, 2)))
        a("v_cvt_pk_bf16_f32 v%d, v%d, v%d" % (xr, c, c + 1))
        a("v_cvt_pk_bf16_f32 v%d, v%d, v%d" % (xr + 1, c + 2, c + 3))
        a("buffer_store_dwordx2 %s, v%d, s[%d:%d], s%d offen offset:%d" % (vr(xr, 2), V_XO, SRD_OUT, SRD_OUT + 3, S_XO, cb * 32))

def gen_reducer(a, pkpoll=False, F=2):
    if F == 2:
        a("s_cmp_ge_u32 s2, 64")
        a("s_cbranch_scc1 P2_NORED")
        a("s_cmp_lg_u32 s%d, 1" % S_W)
        a("s_cbranch_scc1 P2_NORED")
    if pkpoll:
        poll(a, "PKR", 16, 73, 7)
    a("s_lshr_b32 s72, s%d, 3" % F)
    a("s_add_u32 s72, s72, 22")
    a("s_lshl_b32 s72, s72, 7")
    a("s_add_u32 s73, s72, %d" % WS_FLG)
    a("s_lshr_b32 s74, s%d, 1" % F)
    a("s_and_b32 s74, s74, 3")
    a("s_and_b32 s75, s%d, 1" % F)
    a("s_add_u32 s75, s75, s74")
    a("s_lshl_b32 s75, s75, 4")
    a("s_mul_i32 s74, s74, 20")
    a("s_sub_i32 s75, s75, s74")
    T = 96
    a("v_lshrrev_b32 v%d, 5, v0" % T)
    a("v_lshlrev_b32 v%d, 2, v%d" % (T, T))
    a("v_add_u32 v%d, s75, v%d" % (T, T))
    a("v_bfe_u32 v%d, v0, 3, 2" % (T + 1))
    a("v_and_b32 v%d, 3, v0" % (T + 2))
    a("v_lshl_add_u32 v%d, v%d, 2, v%d" % (T + 1, T + 1, T + 2))
    a("v_cmp_ge_u32 s[80:81], 10, v%d" % (T + 1))
    a("v_lshlrev_b32 v%d, 5, v0" % (T + 1))
    a("v_mov_b32 v%d, %d" % (T + 2, OOB))
    a("v_cmp_gt_u32 vcc, 20, v%d" % T)
    a("s_and_b64 vcc, vcc, s[80:81]")
    a("v_cndmask_b32 v%d, v%d, v%d, vcc" % (T + 3, T + 2, T + 1))
    a("v_add_u32 v%d, 8, v%d" % (T, T))
    a("v_cmp_gt_u32 vcc, 20, v%d" % T)
    a("s_and_b64 vcc, vcc, s[80:81]")
    a("v_cndmask_b32 v%d, v%d, v%d, vcc" % (T + 4, T + 2, T + 1))
    poll(a, "KV", 8, 73, 12, sleep=2)
    a("s_lshl_b32 s72, s%d, 11" % F)
    a("s_add_u32 s72, s72, %d" % WS_KVP)
    for mt in range(8):
        a("buffer_load_dwordx4 %s, v%d, s[%d:%d], s72 offen sc1" % (vr(ACC + 8 * mt, 4), T + 3, SRD_WS, SRD_WS + 3))
        a("buffer_load_dwordx4 %s, v%d, s[%d:%d], s72 offen offset:16 sc1" % (vr(ACC + 8 * mt + 4, 4), T + 4, SRD_WS, SRD_WS + 3))
        a("s_add_u32 s72, s72, %d" % (64 * 2048))
    a("s_waitcnt vmcnt(0)")
    for mt in range(1, 8):
        for j in range(0, 8, 2):
            a("v_pk_add_f32 %s, %s, %s" % (vr(ACC + j, 2), vr(ACC + j, 2), vr(ACC + 8 * mt + j, 2)))
    for j in range(4):
        a("v_cvt_pk_bf16_f32 v%d, v%d, v%d" % (ACC + 8 + j, ACC + 2 * j, ACC + 2 * j + 1))
    a("s_lshl_b32 s72, s%d, 10" % F)
    a("s_add_u32 s72, s72, %d" % WS_KVF)
    a("buffer_store_dwordx4 %s, v%d, s[%d:%d], s72 offen sc0 sc1" % (vr(ACC + 8, 4), V_B, SRD_WS, SRD_WS + 3))
    a.label("P2_NORED")
    a.nops(2)
```

```python
from asmlib import *
import k1, p2
from k1 import WS_H, WS_PQ, WS_W2P, WS_KVP, WS_KVF, WS_FLG, WS_PKF, OOB, srd, f32bits, stamp, SRD_WS, SRD_X
from p2 import S_W, S_MT, S_NT, S_HB, S_WB, S_PB, S_KB, S_WO, S_HH, S_WH, S_XO, S_LB, ACC, V_A, V_B, V_P, V_XO, V_L, V_TAG, SRD_OUT

NSTEP = 19
Z = 20
def acc(rb, cb): return ACC + (rb * 5 + cb) * 4
def bsrc(s, cb):
    if s == 13: return (S_WH, cb * 1024)
    if s > 13: return (S_WO, (s - 14) * 5120 + cb * 1024)
    return (S_WB, s * 5120 + cb * 1024)
def bslot(s, cb):
    if 4 <= s < 8: return Z + (s - 4) * 5 + cb
    return ((s >> 1) & 1) * 10 + (s & 1) * 5 + cb
BARS = [3, 7, 9, 11, 13, 15, 17]
def allowed_after(s):
    return {3: 7, 7: 11, 9: 11, 11: 13, 13: 15, 15: 17, 17: 19}[s]

V_L2 = 11
def la(slot):
    return "v%d offset:%d" % (V_L, slot * 1024) if slot < 39 else "v%d" % V_L2
def wr128(slot, reg):
    return ("ds_write_b128 v%d, %s offset:%d" % (V_L, vr(reg, 4), slot * 1024)) if slot < 39 else ("ds_write_b128 v%d, %s" % (V_L2, vr(reg, 4)))
def setup(a, cfg):
    p2.NL = 39
    p2.setup(a, cfg)
    a("s_lshl_b32 s72, s%d, 10" % S_W)
    a("s_add_u32 s72, s72, %d" % k1.ST_BASE)
    a("v_add_u32 v%d, s72, v%d" % (V_L2, V_B))

def dma(a, v, sb, off, slot):
    a("s_add_u32 m0, s%d, %d" % (S_LB, slot * 1024))
    a("s_add_u32 s72, s%d, %d" % (sb, off))
    a("buffer_load_dwordx4 v%d, s[%d:%d], s72 offen %s lds" % (v, SRD_WS, SRD_WS + 3, k1.CFG.get("p2_ld", "sc1")))

def l_preload_lds(a):
    for s in range(8):
        for cb in range(5):
            if bslot(s, cb) < 39:
                sb, off = bsrc(s, cb); dma(a, V_B, sb, off, bslot(s, cb))

LREG = 16
def lreg(s, cb): return LREG + (((s - 8) % 7) * 5 + cb) * 4
def l_load(a, s):
    for cb in range(5):
        sb, off = bsrc(s, cb)
        a("s_add_u32 s72, s%d, %d" % (sb, off))
        a("buffer_load_dwordx4 %s, v%d, s[%d:%d], s72 offen sc1" % (vr(lreg(s, cb), 4), V_B, SRD_WS, SRD_WS + 3))
def l_preload_regs(a):
    sb, off = bsrc(7, 4)
    a("s_add_u32 s72, s%d, %d" % (sb, off))
    a("buffer_load_dwordx4 v[156:159], v%d, s[%d:%d], s72 offen sc1" % (V_B, SRD_WS, SRD_WS + 3))
    for s in range(8, 15): l_load(a, s)

def l_main(a):
    def wr(steps):
        for s in steps:
            for cb in range(5):
                a("ds_write_b128 v%d, %s offset:%d" % (V_L, vr(lreg(s, cb), 4), bslot(s, cb) * 1024))
        a("s_waitcnt lgkmcnt(0)")
    a(wr128(39, 156))
    a("s_waitcnt lgkmcnt(0)")
    a("s_barrier")
    wr((8, 9, 10, 11))
    for s in (15, 16, 17, 18): l_load(a, s)
    a("s_barrier")
    a("s_barrier")
    wr((12, 13))
    a("s_barrier")
    a("s_waitcnt vmcnt(15)")
    wr((14, 15))
    a("s_barrier")
    a("s_waitcnt vmcnt(5)")
    wr((16, 17))
    a("s_barrier")
    a("s_waitcnt vmcnt(0)")
    wr((18,))
    a("s_barrier")

def h_main(a, cfg):
    areg = list(range(112, 168, 4))
    breg = [96, 100, 104, 108]
    nv = [0]; pos = {}; reg = {}
    stream = [(s, j) for s in range(14) for j in range(2 if s == 13 else 4)]
    sp = [0]
    nd = [0]; dpos = {}; bat = {}
    def pump(n):
        k = 0
        while k < n and sp[0] < len(stream) and areg:
            s, j = stream[sp[0]]; sp[0] += 1
            r = areg.pop(0); reg[(s, j)] = r
            if j == 0:
                if s == 13: a("s_mov_b32 s72, s%d" % S_HH)
                else: a("s_add_u32 s72, s%d, %d" % (S_HB, s * 4096))
            a("buffer_load_dwordx4 %s, v%d, s[%d:%d], s72 offen sc1" % (vr(r, 4), V_A + j, SRD_WS, SRD_WS + 3))
            pos[(s, j)] = nv[0]; nv[0] += 1; k += 1
    ostream = [(s, j) for s in range(14, NSTEP) for j in range(4)]
    op = [0]
    oready = [False]
    def opump(n):
        k = 0
        while k < n and oready[0] and sp[0] == len(stream) and op[0] < len(ostream) and areg:
            s, j = ostream[op[0]]; op[0] += 1
            r = areg.pop(0); reg[(s, j)] = r
            a("ds_read_b128 %s, %s" % (vr(r, 4), la(Z + (s - 14) * 4 + j)))
            dpos[("a", s, j)] = nd[0]; nd[0] += 1; k += 1
    pump(99)
    seq = [(s, cb) for s in range(NSTEP) for cb in range(5)]
    rp = [0]
    allowed = [7]
    def bread():
        if rp[0] < len(seq) and breg and seq[rp[0]][0] <= allowed[0]:
            s, cb = seq[rp[0]]; rp[0] += 1
            r = breg.pop(0); bat[(s, cb)] = r
            a("ds_read_b128 %s, %s" % (vr(r, 4), la(bslot(s, cb))))
            dpos[(s, cb)] = nd[0]; nd[0] += 1
    for _ in range(4): bread()
    started = set()
    for s, cb in seq:
        nrb = 2 if s == 13 else 4
        need = dpos[(s, cb)]
        if cb == 0:
            if s < 14:
                a("s_waitcnt vmcnt(%d)" % (nv[0] - 1 - pos[(s, nrb - 1)]))
            else:
                opump(99)
                need = max(need, dpos[("a", s, 3)])
            if s == 0: stamp(a, 2)
        a("s_waitcnt lgkmcnt(%d)" % min(15, nd[0] - 1 - need))
        if cb == 4 and s in BARS:
            a("s_barrier")
            allowed[0] = allowed_after(s)
            if s == cfg.get("p3_ordy", 11): oready[0] = True
            for _ in range(3): bread()
        for rb in range(nrb):
            c = vr(acc(rb, cb), 4) if (rb, cb) in started else "0"
            started.add((rb, cb))
            a("v_mfma_f32_16x16x32_bf16 %s, %s, %s, %s" % (vr(acc(rb, cb), 4), vr(bat[(s, cb)], 4), vr(reg[(s, rb)], 4), c))
            if rb == 1: pump(1); opump(1)
        breg.append(bat.pop((s, cb)))
        bread()
        if cb == 4:
            for j in range(nrb): areg.append(reg.pop((s, j)))
            if s == 16:
                for c5 in range(5):
                    pass
    stamp(a, 3)

def o_main(a, cfg):
    DT = [16, 32]
    free = list(range(48, 168, 4))
    nv = [0]; pos = {}; reg = {}
    stream = []
    npq = cfg.get("p3_npq", 12)
    for hh in range(8):
        b0 = 5 * (hh >> 2) + (hh & 3)
        for b in (b0, b0 + 1):
            for R in range(2):
                if ("P", b, R) not in stream: stream.append(("P", b, R))
        stream += [("K", 2 * hh, 0), ("K", 2 * hh + 1, 0)]
    first = [t for t in stream if t[0] == "P"][:npq]
    stream = first + [t for t in stream if t not in first]
    sp = [0]
    def pump(n, keep=0):
        k = 0
        while k < n and sp[0] < len(stream) and len(free) > keep:
            t = stream[sp[0]]; sp[0] += 1
            r = free.pop(0); reg[t] = r
            if t[0] == "P":
                a("s_add_u32 s72, s%d, %d" % (S_PB, t[1] * 2048))
                a("buffer_load_dwordx4 %s, v%d, s[%d:%d], s72 offen sc1" % (vr(r, 4), V_P + t[2], SRD_WS, SRD_WS + 3))
            else:
                a("s_add_u32 s72, s%d, %d" % (S_KB, t[1] * 1024))
                a("buffer_load_dwordx4 %s, v%d, s[%d:%d], s72 offen sc1" % (vr(r, 4), V_B, SRD_WS, SRD_WS + 3))
            pos[t] = nv[0]; nv[0] += 1; k += 1
    pump(npq)
    a("v_lshlrev_b32 v14, 10, v0")
    a("s_mov_b32 s76, 0xffff")
    a("s_mov_b32 s77, 0")
    a("s_mov_b32 s78, 0")
    a("s_mov_b64 exec, s[76:77]")
    a.label("P3_KP")
    a("buffer_load_dword v12, v14, s[%d:%d], s%d offen sc1" % (SRD_WS, SRD_WS + 3, S_KB))
    a("s_waitcnt vmcnt(0)")
    a("v_cmp_eq_u32 vcc, -1, v12")
    a("s_cbranch_vccz P3_KPOK")
    a("s_add_u32 s78, s78, 1")
    a("s_cmp_gt_u32 s78, 100000")
    a("s_cbranch_scc1 P3_KPOK")
    a("s_sleep %d" % cfg.get("p3_ksleep", 6))
    a("s_branch P3_KP")
    a.label("P3_KPOK")
    a("s_mov_b64 exec, -1")
    pump(cfg.get("p3_opre", 26) - npq)
    piece = {}
    obar = list(cfg.get("p3_obar", [2]))
    for hh in range(8):
        for _ in range(obar.count(hh)): a("s_barrier")
        b0 = 5 * (hh >> 2) + (hh & 3)
        need = [("P", b, R) for b in (b0, b0 + 1) for R in range(2)] + [("K", 2 * hh, 0), ("K", 2 * hh + 1, 0)]
        while any(t not in pos for t in need): pump(1)
        a("s_waitcnt vmcnt(%d)" % (nv[0] - 1 - max(pos[t] for t in need)))
        if hh == 0: stamp(a, 2)
        k0, k1r = reg[need[4]], reg[need[5]]
        lchk, lok = a.newlabel("P3_KC"), a.newlabel("P3_KO")
        a("s_mov_b32 s78, 0")
        a.label(lchk)
        a("v_cmp_eq_u32 vcc, -1, v%d" % k0)
        a("v_cmp_eq_u32 s[76:77], -1, v%d" % k1r)
        a("s_or_b64 vcc, vcc, s[76:77]")
        a("s_cbranch_vccz %s" % lok)
        a("s_add_u32 s78, s78, 1")
        a("s_cmp_gt_u32 s78, 100000")
        a("s_cbranch_scc1 %s" % lok)
        a("s_sleep 4")
        a("s_add_u32 s73, s%d, %d" % (S_KB, 2 * hh * 1024))
        a("buffer_load_dwordx4 %s, v%d, s[%d:%d], s73 offen sc1" % (vr(k0, 4), V_B, SRD_WS, SRD_WS + 3))
        a("buffer_load_dwordx4 %s, v%d, s[%d:%d], s73 offen offset:1024 sc1" % (vr(k1r, 4), V_B, SRD_WS, SRD_WS + 3))
        a("s_waitcnt vmcnt(0)")
        a("s_branch %s" % lchk)
        a.label(lok)
        for R in range(2):
            for i in range(2):
                a("v_mfma_f32_32x32x16_bf16 %s, %s, %s, %s" % (vr(DT[R], 16), vr(reg[("K", 2 * hh + i, 0)], 4), vr(reg[("P", b0 + i, R)], 4), vr(DT[R], 16) if i else "0"))
        for t in need[4:] + [("P", b0, 0), ("P", b0, 1)] + ([("P", b0 + 1, 0), ("P", b0 + 1, 1)] if (hh & 3) == 3 else []):
            free.append(reg.pop(t))
        pump(4, keep=4)
        for R in range(2):
            D = DT[R]
            a("v_add_f32 v%d, %s, v%d" % (D + 10, f32bits(1e-6), D + 10))
            a("v_rcp_f32 v%d, v%d" % (D + 10, D + 10))
            for j in range(0, 10, 2):
                a("v_pk_mul_f32 %s, %s, %s op_sel_hi:[1,0]" % (vr(D + j, 2), vr(D + j, 2), vr(D + 10, 2)))
            for j in range(5):
                d = 5 * hh + j; key = (R, d // 4)
                if key not in piece: piece[key] = free.pop(0)
                a("v_cvt_pk_bf16_f32 v%d, v%d, v%d" % (piece[key] + d % 4, D + 2 * j, D + 2 * j + 1))
    for phi in range(5):
        for R in range(2):
            for j in range(4):
                a("v_permlane16_swap_b32 v%d, v%d" % (piece[(R, 2 * phi)] + j, piece[(R, 2 * phi + 1)] + j))
    stamp(a, 3)
    if cfg.get("merged") == 4:
        import p5
        p5.ldswait(a, "OZ", 0, 7)
        for phi in range(5):
            for rb in range(4):
                a("ds_write_b128 v%d, %s offset:%d" % (V_L, vr(piece[(rb >> 1, 2 * phi + (rb & 1))], 4), (p5.Z + phi * 4 + rb) * 1024))
        a("v_mov_b32 v12, 1")
        a("s_waitcnt lgkmcnt(0)")
        a("ds_write_b32 v%d, v12 offset:8" % p5.V_W)
        return
    for _ in range(cfg.get("p3_nbar", 2) - len(obar)): a("s_barrier")
    for phi in range(5):
        for rb in range(4):
            a(wr128(Z + phi * 4 + rb, piece[(rb >> 1, 2 * phi + (rb & 1))]))
    a("s_waitcnt lgkmcnt(0)")
    a("s_barrier")

def h_epilogue(a):
    XR = 96
    for cb in range(5):
        a("buffer_load_dwordx2 %s, v%d, s[%d:%d], s%d offen offset:%d" % (vr(XR + 2 * cb, 2), V_XO, SRD_X, SRD_X + 3, S_XO, cb * 32))
    for rb in range(1, 4):
        a("s_xor_b32 s72, s%d, %d" % (S_W, rb))
        a("s_mul_i32 s72, s72, %d" % (3 * 5120))
        a("v_add_u32 v%d, s72, v%d" % (1 + rb, V_B))
    a("s_barrier")
    for rb in range(1, 4):
        for cb in range(5):
            a("ds_write_b128 v%d, %s offset:%d" % (1 + rb, vr(acc(rb, cb), 4), (rb - 1) * 5120 + cb * 1024))
    a("s_mul_i32 s72, s%d, %d" % (S_W, 3 * 5120))
    a("v_add_u32 v5, s72, v%d" % V_B)
    a("s_waitcnt lgkmcnt(0)")
    a("s_barrier")
    for cb in range(5):
        for j in range(3):
            a("ds_read_b128 %s, v5 offset:%d" % (vr(acc(1 + j, cb), 4), j * 5120 + cb * 1024))
    a("s_waitcnt vmcnt(0)")
    T = 112
    for cb in range(5):
        t = T + 4 * cb; xr = XR + 2 * cb
        a("v_lshlrev_b32 v%d, 16, v%d" % (t, xr))
        a("v_and_b32 v%d, 0xffff0000, v%d" % (t + 1, xr))
        a("v_lshlrev_b32 v%d, 16, v%d" % (t + 2, xr + 1))
        a("v_and_b32 v%d, 0xffff0000, v%d" % (t + 3, xr + 1))
        for p in (0, 2):
            a("v_pk_add_f32 %s, %s, %s" % (vr(acc(0, cb) + p, 2), vr(acc(0, cb) + p, 2), vr(t + p, 2)))
    for cb in range(5):
        a("s_waitcnt lgkmcnt(%d)" % (12 - 3 * cb))
        c = acc(0, cb); xr = XR + 2 * cb
        for j in range(1, 4):
            for p in (0, 2):
                a("v_pk_add_f32 %s, %s, %s" % (vr(c + p, 2), vr(c + p, 2), vr(acc(j, cb) + p, 2)))
        a("v_cvt_pk_bf16_f32 v%d, v%d, v%d" % (xr, c, c + 1))
        a("v_cvt_pk_bf16_f32 v%d, v%d, v%d" % (xr + 1, c + 2, c + 3))
        a("buffer_store_dwordx2 %s, v%d, s[%d:%d], s%d offen offset:%d" % (vr(xr, 2), V_XO, SRD_OUT, SRD_OUT + 3, S_XO, cb * 32))
```

```python
from asmlib import *
import k1, p2, p3
from k1 import stamp, SRD_WS
from p2 import S_W, S_HB, S_WB, S_WO, S_HH, S_WH, S_LB, ACC, V_A, V_B, V_L
from p3 import acc, bsrc, la, Z, NSTEP

class W:
    def __init__(self, cfg):
        self.cfg = cfg
        self.lfree = list(range(Z, 39)) + list(range(0, Z))
        self.lslot, self.pos = {}, {}
        self.nv = 0
        self.stream = []
        for s in range(NSTEP):
            o = [("B", s, 0)] + ([("A", s, j) for j in range(2 if s == 13 else 4)] if s < 14 else []) + [("B", s, c) for c in range(1, 5)]
            self.stream += o
        self.sp = 0
        self.noz_from = cfg.get("p4_x", 11)
    def dma(self, a, it):
        k, s, j = it
        cand = [x for x in self.lfree if x < Z or s <= self.noz_from]
        if not cand: return False
        sl = cand[0]; self.lfree.remove(sl); self.lslot[it] = sl
        if k == "B": v = V_B; sb, off = bsrc(s, j)
        else: v = V_A + j; sb, off = (S_HH, 0) if s == 13 else (S_HB, s * 4096)
        p3.dma(a, v, sb, off, sl)
        self.pos[it] = self.nv; self.nv += 1
        return True
    def preload(self, a):
        n = self.cfg.get("p2_pre", 25)
        for it in [x for x in self.stream if x[0] == "B"][:n]:
            assert self.dma(a, it)
    def pump(self, a, n):
        k = 0
        while k < n and self.sp < len(self.stream):
            it = self.stream[self.sp]
            if it in self.pos: self.sp += 1; continue
            if not self.dma(a, it): break
            self.sp += 1; k += 1
        return k
    def main(self, a):
        cfg = self.cfg
        rfree = list(range(96, 168, 4))
        reg, dpos = {}, {}
        nd = [0]
        def items(s): return [("B", s, 0)] + [("A", s, j) for j in range(2 if s == 13 else 4)] + [("B", s, c) for c in range(1, 5)]
        def reads(s):
            g = [it for it in items(s) if not (it[0] == "A" and s >= 14)]
            while any(it not in self.pos for it in g):
                assert self.pump(a, 1), "lds deadlock"
            a("s_waitcnt vmcnt(%d)" % min(63, self.nv - 1 - max(self.pos[it] for it in g)))
            out = []
            for it in items(s):
                r = rfree.pop(0); reg[it] = r
                sl = self.lslot[it] if it in self.lslot else Z + (s - 14) * 4 + it[2]
                out.append("ds_read_b128 %s, %s" % (vr(r, 4), la(sl)))
                dpos[it] = nd[0]; nd[0] += 1
            return out
        self.pump(a, 64)
        for t in reads(0): a(t)
        started = set()
        for s in range(NSTEP):
            nrb = 2 if s == 13 else 4
            a("s_waitcnt lgkmcnt(0)")
            if s == 0: stamp(a, 2)
            for it in items(s):
                if it in self.lslot: self.lfree.append(self.lslot.pop(it))
            if s == self.noz_from:
                assert all(x in self.lfree for x in range(Z, 39))
                a("s_barrier")
            ms = []
            for cb in range(5):
                for rb in range(nrb):
                    c = vr(acc(rb, cb), 4) if (rb, cb) in started else "0"
                    started.add((rb, cb))
                    ms.append("v_mfma_f32_16x16x32_bf16 %s, %s, %s, %s" % (vr(acc(rb, cb), 4), vr(reg[("B", s, cb)], 4), vr(reg[("A", s, rb)], 4), c))
            mid = int(len(ms) * cfg.get("p2_mid", 0.4))
            fill = []; k = 0
            for i, m in enumerate(ms):
                if i == mid and s + 1 < NSTEP:
                    if s + 1 == 14: a("s_barrier")
                    fill = reads(s + 1)
                a(m)
                if k < len(fill): a(fill[k]); k += 1
                if i % 2 == 1 or i < mid: self.pump(a, 1)
            for t in fill[k:]: a(t)
            for it in items(s): rfree.append(reg.pop(it))
        stamp(a, 3)
```

```python
from asmlib import *
import k1, p2, p3
from k1 import stamp, SRD_WS, ST_FLAG, f32bits
from p2 import S_W, S_HB, S_WB, S_WO, S_HH, S_WH, S_LB, S_PB, S_KB, ACC, V_A, V_B, V_L, V_P
from p3 import acc, dma

NPOS = 19
ORDER = [7, 8, 9, 10, 11, 12, 13, 0, 1, 2, 3, 4, 5, 6, 14, 15, 16, 17, 18]
Z = 15
V_W = 11
def bslot(p, cb):
    if p < 3: return p * 5 + cb
    if p < 7: return Z + (p - 3) * 5 + cb
    return ((p - 7) % 3) * 5 + cb
def prev(p): return p - 7 if p < 10 else p - 3

def setup(a, cfg):
    p2.NL = 39
    p2.setup(a, cfg)
    a("s_lshl_b32 s72, s%d, 4" % S_W)
    a("s_add_u32 s72, s72, %d" % (ST_FLAG + 16))
    a("v_mov_b32 v%d, s72" % V_W)

def ldswait(a, tag, off, atleast, areg=V_W, sleep=1):
    a("s_mov_b32 s78, 0")
    a.label("P5_W" + tag)
    a("ds_read_b32 v12, v%d offset:%d" % (areg, off))
    a("s_waitcnt lgkmcnt(0)")
    a("v_readfirstlane_b32 s79, v12")
    a("s_cmp_ge_u32 s79, %d" % atleast)
    a("s_cbranch_scc1 P5_X" + tag)
    a("s_add_u32 s78, s78, 1")
    a("s_cmp_gt_u32 s78, 2000000")
    a("s_cbranch_scc1 P5_X" + tag)
    a("s_sleep %d" % sleep)
    a("s_branch P5_W" + tag)
    a.label("P5_X" + tag)

LREG = 24
def lreg(p, cb): return LREG + (((p - 7) % 7) * 5 + cb) * 4
def l_load(a, p, sbase=None, vb=V_B):
    for cb in range(5):
        sb, off = p3.bsrc(ORDER[p], cb)
        a("s_add_u32 s80, s%d, %d" % (sbase if sbase is not None else sb, off))
        a("buffer_load_dwordx4 %s, v%d, s[%d:%d], s80 offen sc1" % (vr(lreg(p, cb), 4), vb, SRD_WS, SRD_WS + 3))
def l_preload_lds(a):
    for p in range(7):
        for cb in range(5):
            sb, off = p3.bsrc(ORDER[p], cb); dma(a, V_B, sb, off, bslot(p, cb))

def l_main(a):
    nout = 0
    for p in range(7, NPOS):
        ldswait(a, "L%d" % p, 0, prev(p) + 1)
        if p >= 14:
            a("s_waitcnt vmcnt(%d)" % (5 * (18 - p)))
        for cb in range(5):
            a("ds_write_b128 v%d, %s offset:%d" % (V_L, vr(lreg(p, cb), 4), bslot(p, cb) * 1024))
        a("v_mov_b32 v12, %d" % (p + 1))
        a("s_waitcnt lgkmcnt(0)")
        a("ds_write_b32 v%d, v12 offset:4" % V_W)
        if p + 7 < NPOS: l_load(a, p + 7)

def h_main(a, cfg):
    areg = list(range(112, 168, 4))
    breg = [96, 100, 104, 108]
    nv = [0]; pos = {}; reg = {}
    def nrb(p): return 2 if ORDER[p] == 13 else 4
    stream = [(p, j) for p in range(14) for j in range(nrb(p))]
    sp = [0]
    nd = [0]; dpos = {}; bat = {}
    def ds(t, key=None):
        a(t)
        if key is not None: dpos[key] = nd[0]
        nd[0] += 1
    def pump(n):
        k = 0
        while k < n and sp[0] < len(stream) and areg:
            p, j = stream[sp[0]]; sp[0] += 1
            r = areg.pop(0); reg[(p, j)] = r
            s = ORDER[p]
            if j == 0:
                if s == 13: a("s_mov_b32 s72, s%d" % S_HH)
                else: a("s_add_u32 s72, s%d, %d" % (S_HB, s * 4096))
            a("buffer_load_dwordx4 %s, v%d, s[%d:%d], s72 offen sc1" % (vr(r, 4), V_A + j, SRD_WS, SRD_WS + 3))
            pos[(p, j)] = nv[0]; nv[0] += 1; k += 1
    ostream = [(p, j) for p in range(14, NPOS) for j in range(4)]
    op = [0]; oready = [False]
    def opump(n):
        k = 0
        while k < n and oready[0] and sp[0] == len(stream) and op[0] < len(ostream) and areg:
            p, j = ostream[op[0]]; op[0] += 1
            r = areg.pop(0); reg[(p, j)] = r
            ds("ds_read_b128 %s, v%d offset:%d" % (vr(r, 4), V_L, (Z + (p - 14) * 4 + j) * 1024), ("a", p, j)); k += 1
    pump(99)
    seq = [(p, cb) for p in range(NPOS) for cb in range(5)]
    rp = [0]; allowed = [6]
    def bread():
        if rp[0] < len(seq) and breg and seq[rp[0]][0] <= allowed[0]:
            p, cb = seq[rp[0]]; rp[0] += 1
            r = breg.pop(0); bat[(p, cb)] = r
            ds("ds_read_b128 %s, v%d offset:%d" % (vr(r, 4), V_L, bslot(p, cb) * 1024), (p, cb))
    for _ in range(4): bread()
    started = set()
    for p, cb in seq:
        n = nrb(p)
        need = dpos[(p, cb)]
        if cb == 0:
            if p < 14: a("s_waitcnt vmcnt(%d)" % (nv[0] - 1 - pos[(p, n - 1)]))
            else:
                opump(99); need = max(need, dpos[("a", p, 3)])
            if p == 0: stamp(a, 2)
            if p + 1 >= 7 and p + 1 < NPOS:
                ds("ds_read2_b32 v[14:15], v%d offset0:1 offset1:2" % V_W, "F")
        if cb == 1 and p + 1 >= 7 and p + 1 < NPOS:
            need = max(need, dpos["F"])
        a("s_waitcnt lgkmcnt(%d)" % min(15, nd[0] - 1 - need))
        if cb == 1 and p + 1 >= 7 and p + 1 < NPOS:
            lab = a.newlabel("P5_HF")
            a("v_readfirstlane_b32 s79, v14")
            a("s_cmp_ge_u32 s79, %d" % (p + 2))
            a("s_cbranch_scc1 %s" % lab)
            ldswait(a, "H%d" % p, 4, p + 2, sleep=0)
            a.label(lab)
            allowed[0] = p + 1
            if p == cfg.get("p5_ordy", 12):
                lab = a.newlabel("P5_HO")
                a("v_readfirstlane_b32 s79, v15")
                a("s_cmp_ge_u32 s79, 1")
                a("s_cbranch_scc1 %s" % lab)
                ldswait(a, "HO", 8, 1, sleep=0)
                a.label(lab)
                oready[0] = True
            for _ in range(2): bread()
        if cb == 4 and p < 16:
            a("v_mov_b32 v12, %d" % (p + 1))
            ds("ds_write_b32 v%d, v12" % V_W)
        for rb in range(n):
            c = vr(acc(rb, cb), 4) if (rb, cb) in started else "0"
            started.add((rb, cb))
            a("v_mfma_f32_16x16x32_bf16 %s, %s, %s, %s" % (vr(acc(rb, cb), 4), vr(bat[(p, cb)], 4), vr(reg[(p, rb)], 4), c))
            if rb == 1: pump(1); opump(1)
        breg.append(bat.pop((p, cb)))
        bread()
        if cb == 4:
            for j in range(n): areg.append(reg.pop((p, j)))
    stamp(a, 3)
```

```python
import sys
s = open(sys.argv[1]).read()
kn, wv, idx, mode = int(sys.argv[3]), int(sys.argv[4]), int(sys.argv[5]), sys.argv[6]
L = [l for l in s.split("\n") if l.startswith("; @launch kernel=")]
ins = "; @launch kernel=spin_kernel grid=(1,1,1) block=(64,1,1) lds=0"
t = s.replace(L[-1], L[-1] + "\n" + ins)
base0 = (16 << 20) + (1 << 20)
baseX = (16 << 20) + kn * (1 << 20) + wv * 64 + idx * 8
red = ""
for i in range(4):
    red += "    s_mov_b32 s16, %d\n    buffer_load_dword v%d, v1, s[12:15], s16 offen\n" % (base0 + i * 65536, 2 + i)
    red += "    s_mov_b32 s16, %d\n    buffer_load_dword v%d, v1, s[12:15], s16 offen\n" % (baseX + i * 65536, 6 + i)
red += "    s_waitcnt vmcnt(0)\n"
for i in range(8):
    red += "    v_sub_u32 v%d, s8, v%d\n" % (2 + i, 2 + i)
for i in range(4):
    red += "    v_cmp_gt_u32 vcc, 0x186a0, v%d\n    s_nop 1\n    v_cndmask_b32 v%d, 0, v%d, vcc\n" % (2 + i, 2 + i, 2 + i)
    if mode == "min":
        red += "    v_cmp_gt_u32 vcc, 0x186a0, v%d\n    s_nop 1\n    v_cndmask_b32 v%d, 0, v%d, vcc\n" % (6 + i, 6 + i, 6 + i)
op = "min" if mode == "max" else "max"
red += "    v_max_u32 v2, v2, v3\n    v_max_u32 v4, v4, v5\n    v_max_u32 v2, v2, v4\n"
red += "    v_%s_u32 v6, v6, v7\n    v_%s_u32 v8, v8, v9\n    v_%s_u32 v6, v6, v8\n" % (op, op, op)
red += "    s_mov_b32 s20, 0\n    s_mov_b32 s21, %s\n    s_mov_b32 s22, 0\nSP_R:\n    s_nop 3\n    v_readlane_b32 s23, v2, s22\n    v_readlane_b32 s24, v6, s22\n    s_nop 3\n    s_max_u32 s20, s20, s23\n    s_%s_u32 s21, s21, s24\n    s_add_u32 s22, s22, 1\n    s_cmp_lt_u32 s22, 64\n    s_cbranch_scc1 SP_R\n" % ("-1" if op == "min" else "0", op)
t = t.replace('.section .rodata,"a"', '''.globl spin_kernel
.p2align 8
.type spin_kernel,@function
spin_kernel:
    s_cmp_ge_u32 s2, 1
    s_cbranch_scc1 SP_END
    s_memrealtime s[8:9]
    s_load_dwordx2 s[4:5], s[0:1], 72
    v_lshlrev_b32 v1, 10, v0
    s_waitcnt lgkmcnt(0)
    s_mov_b32 s12, s4
    s_and_b32 s13, s5, 0xffff
    s_mov_b32 s14, 0x7fffffff
    s_mov_b32 s15, 0x20000
''' + red + '''    s_sub_u32 s18, s20, s21
    s_min_u32 s18, s18, 20000
    s_lshl_b32 s18, s18, 2
    s_add_u32 s18, s18, 1000
SP_LOOP:
    s_memrealtime s[10:11]
    s_waitcnt lgkmcnt(0)
    s_sub_u32 s19, s10, s8
    s_cmp_lt_u32 s19, s18
    s_cbranch_scc1 SP_LOOP
SP_END:
    s_endpgm
.section .rodata,"a"''')
t += """.p2align 6
.amdhsa_kernel spin_kernel
  .amdhsa_next_free_vgpr 16
  .amdhsa_next_free_sgpr 32
  .amdhsa_accum_offset 16
  .amdhsa_group_segment_fixed_size 0
  .amdhsa_kernarg_size 80
  .amdhsa_user_sgpr_count 2
  .amdhsa_user_sgpr_kernarg_segment_ptr 1
  .amdhsa_system_sgpr_workgroup_id_x 1
.end_amdhsa_kernel
"""
open(sys.argv[2], 'w').write(t)
```

```python
from asmlib import *
import math, struct

WS_H = 0
WS_PQ = WS_H + 32 * 54 * 4096
WS_W2P = WS_PQ + 32 * 40 * 2048
WS_KVP = WS_W2P + 8 * 74 * 5120
WS_KVF = WS_KVP + 8 * 64 * 2048
WS_RST = WS_KVF + 65536
WS_CSP = WS_RST + 2048 * 8
CSP_STRIDE = 5376 * 8
WS_FLG = WS_CSP + 8 * CSP_STRIDE
WS_PKF = WS_FLG + 8 * 32 * 128
WS_PKA = WS_PKF + 16 * 128
WS_END = WS_PKA + 16 * 128
OOB = 0x40000000

XSLOT = 32768
XRING = 3
WSLOT = 12288
WRING = 5
WBASE = XSLOT * XRING
UPOFF = 6144
ST_BASE = WBASE + WRING * WSLOT
ST_MEAN = ST_BASE
ST_RSTD = ST_BASE + 1024
ST_COL = ST_BASE + 2048
ST_FLAG = ST_COL + 768
K1_LDS = 163840

LOG2E = 1.4426950408889634
def f32bits(x):
    return "0x%08x" % struct.unpack("<I", struct.pack("<f", x))[0]

S_X, S_WQKV, S_WO, S_WG, S_WU, S_WD, S_OUT, S_DBG, S_WS = 4, 6, 8, 12, 14, 16, 18, 20, 22
S_WAVE, S_MT, S_GRP, S_LIN = 24, 25, 26, 27
S_XCD, S_IDX, S_I3, S_GI, S_NQ = 29, 30, 52, 53, 54
SRD_X, SRD_W0, SRD_W1, SRD_W2, SRD_WS = 32, 36, 40, 44, 48
SRD_DBG = 56
SRD_ST = 8

STAMP = False
CFG = {}
WS_ST = 16 << 20

def stflag():
    return CFG.get("k1_st", "sc1")

def srd(a, base, ptr, nbytes):
    a("s_mov_b32 s%d, s%d" % (base, ptr))
    a("s_and_b32 s%d, s%d, 0xffff" % (base + 1, ptr + 1))
    a("s_mov_b32 s%d, %d" % (base + 2, nbytes))
    a("s_mov_b32 s%d, 0x20000" % (base + 3))

def divmod_const(a, q, r, x, d, maxx):
    sh = 16
    m = (1 << sh) // d + 1
    assert all((v * m) >> sh == v // d for v in range(maxx)), (d, maxx)
    assert m * maxx < (1 << 32) and m < (1 << 24)
    a("v_mul_u32_u24 v%d, %d, v%d" % (q, m, x))
    a("v_lshrrev_b32 v%d, %d, v%d" % (q, sh, q))
    a("v_mul_u32_u24 v%d, %d, v%d" % (r, d, q))
    a("v_sub_u32 v%d, v%d, v%d" % (r, x, r))

def stamp(a, idx):
    if STAMP:
        a("s_memrealtime s[%d:%d]" % (84 + 2 * idx, 85 + 2 * idx))
def stamp_flush(a, kernel_no, wave_sgpr, n):
    if not STAMP:
        return
    a("s_memrealtime s[100:101]")
    a("s_waitcnt lgkmcnt(0) vmcnt(0)")
    a("s_memrealtime s[%d:%d]" % (84 + 2 * n, 85 + 2 * n))
    a("s_mov_b32 s50, 0x7fffffff")
    a("s_lshl_b32 s82, s2, 4")
    a("s_add_u32 s82, s82, s%d" % wave_sgpr)
    a("s_lshl_b32 s82, s82, 6")
    a("s_add_u32 s82, s82, %d" % (WS_ST + kernel_no * (1 << 20)))
    a("s_waitcnt lgkmcnt(0)")
    a("s_mov_b64 exec, 1")
    for i in range(n + 1):
        a("v_mov_b32 v2, s%d" % (84 + 2 * i))
        a("v_mov_b32 v3, s%d" % (85 + 2 * i))
        a("buffer_store_dwordx2 v[2:3], off, s[48:51], s82 offset:%d" % (8 * i))
        a("s_nop 1")
    if n == 4:
        a("s_sub_u32 s96, s98, s96")
        a("v_mov_b32 v2, s96")
        a("v_mov_b32 v3, 0")
        a("buffer_store_dwordx2 v[2:3], off, s[48:51], s82 offset:56")
        a("s_nop 1")
        a("v_mov_b32 v2, s100")
        a("v_mov_b32 v3, s101")
        a("buffer_store_dwordx2 v[2:3], off, s[48:51], s82 offset:40")

def tl(a):
    if STAMP and CFG.get("tl"):
        a("s_memrealtime s[90:91]")
        a("s_waitcnt lgkmcnt(0)")
        a("s_mov_b32 m0, s94")
        a("s_nop 0")
        a("v_writelane_b32 v167, s90, m0")
        a("s_add_u32 s94, s94, 1")

def red8(a, r):
    a("v_add_f32_dpp v%d, v%d, v%d quad_perm:[1,0,3,2] row_mask:0xf bank_mask:0xf" % (r, r, r))
    a("v_add_f32_dpp v%d, v%d, v%d quad_perm:[2,3,0,1] row_mask:0xf bank_mask:0xf" % (r, r, r))
    a("v_add_f32_dpp v%d, v%d, v%d row_half_mirror row_mask:0xf bank_mask:0xf" % (r, r, r))

def rbf(a, r):
    a("v_cvt_pk_bf16_f32 v%d, v%d, v%d" % (r, r, r))
    a("v_and_b32 v%d, 0xffff0000, v%d" % (r, r))

def gen_k1(a, name):
    global KNAME
    KNAME = name
    a.raw(".globl %s\n.p2align 8\n.type %s,@function\n%s:" % (name, name, name))
    a.flush()
    a("s_cmp_ge_u32 s2, 256")
    a("s_cbranch_scc1 K1_END")
    if CFG.get("stamp_first"): a("s_memrealtime s[84:85]")
    a("s_load_dwordx16 s[4:19], s[0:1], 0")
    a("s_load_dwordx4 s[20:23], s[0:1], 64")
    a("v_lshrrev_b32 v1, 6, v0")
    a("v_and_b32 v0, 63, v0")
    a("v_readfirstlane_b32 s%d, v1" % S_WAVE)
    a("s_and_b32 s29, s2, 7")
    a("s_lshr_b32 s30, s2, 3")
    a("s_and_b32 s31, s29, 1")
    a("s_lshl_b32 s31, s31, 2")
    a("s_and_b32 s52, s30, 3")
    a("s_add_u32 s%d, s31, s52" % S_MT)
    a("s_lshr_b32 s53, s30, 2")
    a("s_lshr_b32 s54, s29, 1")
    a("s_lshl_b32 s55, s54, 3")
    a("s_cmp_eq_u32 s54, 3")
    a("s_cselect_b32 s60, 1, 0")
    a("s_sub_u32 s55, s55, s60")
    a("s_add_u32 s%d, s55, s53" % S_LIN)
    a("s_mul_i32 s61, s54, 5")
    a("s_sub_u32 s61, s61, s60")
    a("s_add_u32 s%d, s61, s53" % S_GRP)
    a("s_cmp_ge_u32 s54, 2")
    a("s_cselect_b32 s61, 4, 5")
    a("s_add_u32 s62, s54, 18")
    a("s_cmp_eq_u32 s53, s61")
    a("s_cselect_b32 s%d, s62, s%d" % (S_GRP, S_GRP))
    a("s_lshl_b32 s62, s54, 1")
    a("s_add_u32 s62, s62, s53")
    a("s_sub_u32 s62, s62, s61")
    a("s_add_u32 s62, s62, 21")
    a("s_cmp_gt_u32 s53, s61")
    a("s_cselect_b32 s%d, s62, s%d" % (S_GRP, S_GRP))
    a("s_cmp_ge_u32 s54, 2")
    a("s_cselect_b32 s60, 7, 8")
    a("s_waitcnt lgkmcnt(0)")
    if not CFG.get("stamp_first"): stamp(a, 0)
    srd(a, SRD_X, S_X, 2048 * 1280)
    srd(a, SRD_WS, S_WS, WS_END)
    if CFG.get("dbgspan"):
        a("s_memrealtime s[84:85]")
        a("s_or_b32 s86, s2, s%d" % S_WAVE)
        a("s_cmp_lg_u32 s86, 0")
        a("s_cbranch_scc1 K1_NOSPAN")
        a("s_waitcnt lgkmcnt(0)")
        a("v_mov_b32 v2, s84")
        a("s_mov_b32 s50, 0x7fffffff")
        a("s_mov_b32 s86, %d" % WS_ST)
        a("buffer_store_dword v2, off, s[48:51], s86")
        a("s_mov_b32 s50, %d" % WS_END)
        a.label("K1_NOSPAN")
    a("s_cmp_ge_u32 s53, s60")
    a("s_cbranch_scc1 K1_PACK")
    a("s_cmp_lt_u32 s%d, 8" % S_WAVE)
    a("s_cbranch_scc1 K1_COMP")
    gen_loader(a)
    a.label("K1_COMP"); a.flush()
    if CFG.get("k1_pf", 0):
        gen_prefetch(a)
    if CFG.get("k1_pf2", 0):
        gen_prefetch2(a)
    if CFG.get("code_pf", 0):
        a("s_cmp_ge_u32 s%d, %d" % (S_IDX, CFG.get("code_pf")))
        a("s_cbranch_scc1 K1_CPF_DONE")
        a("s_getpc_b64 s[60:61]")
        a.label("K1_CPF_PC")
        a("s_sub_u32 s60, s60, K1_CPF_PC-%s" % KNAME)
        a("s_subb_u32 s61, s61, 0")
        a("s_lshl_b32 s62, s%d, 13" % S_WAVE)
        a("v_lshlrev_b32 v2, 7, v0")
        a("v_add_u32 v2, s62, v2")
        a("v_mov_b32 v3, K1_END-%s" % KNAME)
        a("v_min_u32 v2, v2, v3")
        a("global_load_dword v1, v2, s[60:61]")
        a.label("K1_CPF_DONE")
    a("s_and_b32 s60, s%d, 3" % S_WAVE)
    a("s_mov_b32 s83, s%d" % S_GRP)
    a("s_lshr_b32 s67, s%d, 2" % S_WAVE)
    a("s_cmp_ge_u32 s%d, 22" % S_GRP)
    a("s_cbranch_scc1 K1_KV")
    a("s_cmp_ge_u32 s%d, 18" % S_GRP)
    a("s_cbranch_scc1 K1_Q")
    gen_compute(a, "F")
    a.label("K1_Q"); a.flush()
    a("s_sub_u32 s%d, s%d, 18" % (S_GRP, S_GRP))
    gen_compute(a, "Q")
    a.label("K1_KV"); a.flush()
    a("s_sub_u32 s%d, s%d, 22" % (S_GRP, S_GRP))
    gen_compute(a, "K")
    a.label("K1_PACK"); a.flush()
    gen_packer(a)
    a.label("K1_END"); a.flush()
    a("s_endpgm")

def gen_prefetch2(a):
    a("s_mul_i32 s60, s%d, 30" % S_MT)
    a("s_add_u32 s60, s60, s%d" % S_LIN)
    a("s_lshl_b32 s60, s60, 3")
    a("s_add_u32 s60, s60, s%d" % S_WAVE)
    a("v_lshlrev_b32 v2, 7, v0")
    bufs = [(S_X, 320), (S_WQKV, 300), (S_WG, 270), (S_WU, 270)] + ([(S_WD, 270), (S_WO, 100)] if CFG.get("k1_pf2") > 1 else [])
    a("s_mov_b32 s%d, s%d" % (SRD_W0, S_X))
    a("s_mov_b32 s%d, s%d" % (SRD_W0 + 1, S_X + 1))
    a("s_mov_b32 s%d, %d" % (SRD_W0 + 2, 320 * 8192))
    a("s_mov_b32 s61, s60")
    tot = 0
    for i, (p, n) in enumerate(bufs):
        if i:
            a("s_sub_u32 s62, s60, %d" % tot)
            a("s_cmp_ge_u32 s60, %d" % tot)
            a("s_cselect_b32 s%d, s%d, s%d" % (SRD_W0, p, SRD_W0))
            a("s_cselect_b32 s%d, s%d, s%d" % (SRD_W0 + 1, p + 1, SRD_W0 + 1))
            a("s_cselect_b32 s%d, %d, s%d" % (SRD_W0 + 2, n * 8192, SRD_W0 + 2))
            a("s_cselect_b32 s61, s62, s61")
        tot += n
    a("s_and_b32 s%d, s%d, 0xffff" % (SRD_W0 + 1, SRD_W0 + 1))
    a("s_mov_b32 s%d, 0x20000" % (SRD_W0 + 3))
    a("s_lshl_b32 s61, s61, 13")
    a("buffer_load_dword v1, v2, s[%d:%d], s61 offen" % (SRD_W0, SRD_W0 + 3))

def gen_prefetch(a):
    nst = CFG.get("pf_n", 1)
    a("s_and_b32 s60, s%d, 3" % S_WAVE)
    a("s_cmp_ge_u32 s%d, 4" % S_WAVE)
    a("s_cbranch_scc1 K1_PF_CHK")
    a("s_cmp_ge_u32 s%d, 18" % S_GRP)
    a("s_cbranch_scc1 K1_PF_CHK")
    a("s_and_b32 s60, s%d, 1" % S_WAVE)
    a("s_lshl_b32 s60, s60, 1")
    a.label("K1_PF_CHK")
    a("s_cmp_ge_u32 s60, %d" % nst)
    a("s_cbranch_scc1 K1_PF_DONE")
    a("s_cmp_ge_u32 s%d, 4" % S_WAVE)
    a("s_cbranch_scc1 K1_PF_X")
    a("s_cmp_ge_u32 s%d, 18" % S_GRP)
    a("s_cbranch_scc1 K1_PF_QKV")
    a("s_cmp_ge_u32 s%d, 2" % S_WAVE)
    a("s_cselect_b32 s%d, s%d, s%d" % (SRD_W0, S_WU, S_WG))
    a("s_cselect_b32 s%d, s%d, s%d" % (SRD_W0 + 1, S_WU + 1, S_WG + 1))
    a("s_and_b32 s%d, s%d, 0xffff" % (SRD_W0 + 1, SRD_W0 + 1))
    a("s_mov_b32 s%d, %d" % (SRD_W0 + 2, 640 * 3456))
    a("s_mov_b32 s%d, 0x20000" % (SRD_W0 + 3))
    a("v_lshrrev_b32 v2, 5, v0")
    a("v_bfe_u32 v3, v0, 1, 4")
    a("v_lshl_add_u32 v2, v2, 6, v3")
    a("v_mul_u32_u24 v2, 3456, v2")
    a("v_and_b32 v3, 1, v0")
    a("v_lshl_add_u32 v2, v3, 7, v2")
    a("s_and_b32 s60, s%d, 1" % S_WAVE)
    a("s_lshl_b32 s60, s60, 7")
    a("s_lshl_b32 s61, s%d, 4" % S_I3)
    a("s_add_u32 s60, s60, s61")
    a("s_add_u32 s60, s60, 64")
    a("s_mul_i32 s60, s60, 3456")
    a("s_mul_i32 s61, s%d, 192" % S_GRP)
    a("s_add_u32 s60, s60, s61")
    a("buffer_load_dword v1, v2, s[%d:%d], s60 offen" % (SRD_W0, SRD_W0 + 3))
    a("s_branch K1_PF_DONE")
    a.label("K1_PF_QKV"); a.flush()
    srd(a, SRD_W0, S_WQKV, 640 * 3840)
    a("v_lshrrev_b32 v2, 2, v0")
    a("v_mul_u32_u24 v2, 3840, v2")
    a("v_and_b32 v3, 1, v0")
    a("v_bfe_u32 v4, v0, 1, 1")
    a("s_cmp_ge_u32 s%d, 22" % S_GRP)
    a("s_movk_i32 s61, 192")
    a("s_cselect_b32 s61, 1280, s61")
    a("s_movk_i32 s60, 124")
    a("s_cselect_b32 s60, 156, s60")
    a("v_mul_lo_u32 v3, v3, s60")
    a("v_mul_lo_u32 v4, v4, s61")
    a("v_add3_u32 v2, v2, v3, v4")
    a("s_sub_u32 s62, s%d, 18" % S_GRP)
    a("s_mul_i32 s62, s62, 320")
    a("s_sub_u32 s63, s%d, 22" % S_GRP)
    a("s_mul_i32 s63, s63, 160")
    a("s_add_u32 s63, s63, 1280")
    a("s_cmp_ge_u32 s%d, 22" % S_GRP)
    a("s_cselect_b32 s62, s63, s62")
    a("s_add_u32 s60, s%d, 1" % S_WAVE)
    a("s_lshl_b32 s60, s60, 6")
    a("s_lshl_b32 s61, s%d, 4" % S_I3)
    a("s_add_u32 s60, s60, s61")
    a("s_mul_i32 s60, s60, 3840")
    a("s_add_u32 s60, s60, s62")
    a("buffer_load_dword v1, v2, s[%d:%d], s60 offen" % (SRD_W0, SRD_W0 + 3))
    a("s_branch K1_PF_DONE")
    a.label("K1_PF_X"); a.flush()
    a("s_mul_i32 s60, s%d, 37" % S_GI)
    a("v_add_u32 v2, s60, v0")
    a("v_mul_u32_u24 v3, 1280, v2")
    a("v_mov_b32 v4, %d" % OOB)
    a("v_cmp_gt_u32 vcc, 256, v2")
    a("v_cndmask_b32 v3, v4, v3, vcc")
    a("v_cmp_gt_u32 vcc, 37, v0")
    a("v_cndmask_b32 v2, v4, v3, vcc")
    a("s_mul_i32 s60, s%d, %d" % (S_MT, 256 * 1280))
    a("s_sub_u32 s61, s%d, 3" % S_WAVE)
    a("s_lshl_b32 s61, s61, 7")
    a("s_add_u32 s60, s60, s61")
    a("buffer_load_dword v1, v2, s[%d:%d], s60 offen" % (SRD_X, SRD_X + 3))
    a.label("K1_PF_DONE"); a.flush()

def gen_loader(a):
    noload = CFG.get("no_load")
    a("s_sub_u32 s60, s%d, 8" % S_WAVE)
    if CFG.get("ld_prio", 3): a("s_setprio %d" % CFG.get("ld_prio", 3))
    if STAMP:
        a("s_mov_b32 s94, 0")
        a("v_mov_b32 v167, 0")
    a("v_lshrrev_b32 v4, 3, v0")
    a("v_mul_u32_u24 v12, 1280, v4")
    a("v_lshrrev_b32 v5, 4, v0")
    a("v_and_b32 v6, 7, v0")
    a("v_xor_b32 v7, v6, v5")
    a("v_lshl_add_u32 v2, v7, 4, v12")
    a("v_xor_b32 v7, 4, v7")
    a("v_lshl_add_u32 v3, v7, 4, v12")
    a("s_mov_b32 s74, %d" % WBASE)
    a("s_mul_i32 s76, s%d, %d" % (S_MT, 256 * 1280))
    a("s_mul_i32 s77, s60, %d" % (4 * 10240))
    a("s_add_u32 s76, s76, s77")
    a("s_lshl_b32 s75, s60, 12")
    a("s_add_u32 s77, s75, %d" % (XRING * XSLOT))
    def xhalf(hf):
        for i in range(4):
            a("s_add_u32 m0, s75, %d" % (i * 1024 + hf * 16384))
            a("s_add_u32 s81, s76, %d" % (i * 10240 + hf * 16 * 10240))
            if not noload: a("buffer_load_dwordx4 v%d, s[%d:%d], s81 offen lds" % (2 + (i & 1), SRD_X, SRD_X + 3))
        if hf:
            a("s_add_u32 s75, s75, %d" % XSLOT)
            a("s_sub_u32 s79, s75, %d" % (XRING * XSLOT))
            a("s_cmp_ge_u32 s75, s77")
            a("s_cselect_b32 s75, s79, s75")
            a("s_add_u32 s76, s76, 128")
    def wsub():
        for i, (srdw, dst) in enumerate(((SRD_W0, 64), (SRD_W1, 65), (SRD_W2, 66))):
            a("s_add_u32 m0, s74, s%d" % dst)
            if i == 0: a("s_add_u32 s74, s74, %d" % WSLOT) if False else None
            if not noload: a("buffer_load_dwordx4 v%d, s[%d:%d], s69 offen lds" % (8 + i, srdw, srdw + 3))
        a("s_add_u32 s74, s74, %d" % WSLOT)
        a("s_cmp_ge_u32 s74, %d" % (WBASE + WRING * WSLOT))
        a("s_cselect_b32 s74, %d, s74" % WBASE)
        a("s_add_u32 s69, s69, s68")
    xhalf(0); xhalf(1)
    a("s_lshl_b32 s67, s60, 6")
    a("v_add_u32 v17, s67, v0")
    a("s_cmp_ge_u32 s%d, 18" % S_GRP)
    a("s_cbranch_scc1 K1_LD_QKV")
    srd(a, SRD_W0, S_WG, 640 * 3456)
    srd(a, SRD_W2, S_WU, 640 * 3456)
    a("s_cmp_ge_u32 s60, 2")
    a("s_cselect_b32 s%d, s%d, s%d" % (SRD_W1, S_WU, S_WG))
    a("s_cselect_b32 s%d, s%d, s%d" % (SRD_W1 + 1, SRD_W2 + 1, SRD_W0 + 1))
    a("s_mov_b32 s%d, %d" % (SRD_W1 + 2, 640 * 3456))
    a("s_mov_b32 s%d, 0x20000" % (SRD_W1 + 3))
    a("s_add_u32 s70, s60, 4")
    a("s_sub_u32 s62, s60, 2")
    a("s_cmp_ge_u32 s60, 2")
    a("s_cselect_b32 s70, s62, s70")
    a("s_add_u32 s62, s60, 2")
    for i, sl in enumerate((60, 70, 62)):
        a("s_lshl_b32 s67, s%d, 6" % sl)
        a("v_add_u32 v11, s67, v0")
        divmod_const(a, 12, 13, 11, 12, 384)
        a("v_bfe_u32 v14, v12, 3, 1")
        a("v_lshlrev_b32 v14, 1, v14")
        a("v_xor_b32 v13, v13, v14")
        a("v_mul_u32_u24 v12, 3456, v12")
        a("v_lshl_add_u32 v%d, v13, 4, v12" % (8 + i))
    a("s_mov_b32 s68, %d" % (32 * 3456))
    a("s_mul_i32 s69, s%d, 192" % S_GRP)
    a("v_lshrrev_b32 v11, 5, v17")
    a("v_and_b32 v12, 15, v17")
    a("v_lshl_add_u32 v11, v11, 4, v12")
    a("v_bfe_u32 v12, v17, 4, 1")
    a("v_mul_u32_u24 v12, 1728, v12")
    a("s_mul_i32 s67, s%d, 96" % S_GRP)
    a("s_add_u32 s67, s67, 1920")
    a("v_add3_u32 v16, v11, v12, s67")
    a("s_branch K1_LD_GO")
    a.label("K1_LD_QKV"); a.flush()
    srd(a, SRD_W0, S_WQKV, 640 * 3840)
    srd(a, SRD_W1, S_WQKV, 640 * 3840)
    srd(a, SRD_W2, S_WQKV, 640 * 3840)
    a("s_cmp_ge_u32 s%d, 22" % S_GRP)
    a("s_cselect_b32 s70, %d, 0" % (1280 - 160))
    for i in range(3):
        a("s_lshl_b32 s67, s60, 6")
        a("s_add_u32 s67, s67, %d" % (256 * i))
        a("v_add_u32 v11, s67, v0")
        if i == 2:
            a("v_subrev_u32 v14, 128, v11")
            a("v_cmp_le_u32 vcc, 640, v11")
            a("v_cndmask_b32 v11, v11, v14, vcc")
        divmod_const(a, 12, 13, 11, 20, 640)
        a("v_bfe_u32 v14, v12, 3, 1")
        a("v_lshlrev_b32 v14, 1, v14")
        a("v_xor_b32 v13, v13, v14")
        a("v_mul_u32_u24 v12, 3840, v12")
        a("v_lshl_add_u32 v%d, v13, 4, v12" % (8 + i))
        a("v_mov_b32 v14, s70")
        a("v_cmp_le_u32 vcc, 10, v13")
        a("v_cndmask_b32 v14, 0, v14, vcc")
        a("v_add_u32 v%d, v%d, v14" % (8 + i, 8 + i))
    a("s_mov_b32 s68, %d" % (32 * 3840))
    a("s_sub_u32 s69, s%d, 18" % S_GRP)
    a("s_mul_i32 s69, s69, 320")
    a("s_sub_u32 s71, s%d, 22" % S_GRP)
    a("s_mul_i32 s71, s71, 160")
    a("s_add_u32 s71, s71, 1280")
    a("s_cmp_ge_u32 s%d, 22" % S_GRP)
    a("s_cselect_b32 s69, s71, s69")
    a("s_lshr_b32 s67, s69, 1")
    a("s_lshr_b32 s71, s70, 1")
    a("v_mov_b32 v14, s71")
    a("v_cmp_le_u32 vcc, 80, v17")
    a("v_cndmask_b32 v14, 0, v14, vcc")
    a("v_add3_u32 v16, v17, v14, s67")
    a.label("K1_LD_GO"); a.flush()
    a("s_lshl_b32 s64, s60, 10")
    a("s_add_u32 s65, s64, 4096")
    a("s_add_u32 s66, s64, 8192")
    ops = ["x0"] * 4 + ["x1"] * 4
    def W(n): wsub(); ops.extend(["w%d" % n] * 3)
    def X(n): xhalf(n & 1); ops.extend(["x%d" % n] * 4)
    lastdone = [-1]
    def wait(tags):
        last = max(i for i, t in enumerate(ops) if t in tags)
        lastdone[0] = max(lastdone[0], last)
        a("s_waitcnt vmcnt(%d)" % min(63, len(ops) - 1 - last))
    def bar(u):
        tags = ["w%d" % (u + 1)]
        if (u + 1) % 2 == 0:
            tags += ["x%d" % (u + 1), "x%d" % (u + 2)]
        tags = [t for t in tags if t in ops]
        if tags: wait(tags)
        tl(a); a("s_barrier"); tl(a)
    W(0); W(1)
    a("s_mov_b32 s61, 2")
    a("s_mov_b32 s62, s%d" % S_LIN)
    a("s_cmp_eq_u32 s60, 3")
    a("s_cbranch_scc1 K1_ST_DEC")
    a("s_mul_i32 s63, s%d, 3" % S_GI)
    a("s_add_u32 s63, s63, s60")
    a("s_mov_b32 s61, 1")
    a("s_lshl_b32 s67, s%d, 3" % S_NQ)
    a("s_lshr_b32 s70, 0x150f0800, s67")
    a("s_and_b32 s70, s70, 255")
    a("s_lshr_b32 s71, 0x06060708, s67")
    a("s_and_b32 s71, s71, 255")
    a("s_lshr_b32 s72, 0x170f0800, s67")
    a("s_and_b32 s72, s72, 255")
    a("s_lshr_b32 s73, 0x07080708, s67")
    a("s_and_b32 s73, s73, 255")
    a("s_add_u32 s62, s70, s63")
    a("s_add_u32 s62, s62, 30")
    a("s_sub_u32 s67, s62, s71")
    a("s_add_u32 s67, s67, 27")
    a("s_cmp_ge_u32 s63, s71")
    a("s_cselect_b32 s62, s67, s62")
    a("s_lshl_b32 s71, s71, 1")
    a("s_sub_u32 s67, s63, s71")
    a("s_add_u32 s72, s72, s67")
    a("s_cmp_ge_u32 s63, s71")
    a("s_cselect_b32 s62, s72, s62")
    a("s_add_u32 s71, s71, s73")
    a("s_cmp_ge_u32 s63, s71")
    a("s_cselect_b32 s61, 0, s61")
    a("s_cselect_b32 s67, 1, 0")
    a("s_cmp_eq_u32 s%d, 3" % S_NQ)
    a("s_cselect_b32 s67, s67, 0")
    a("s_cmp_eq_u32 s67, 1")
    a("s_cselect_b32 s61, 2, s61")
    a.label("K1_ST_DEC"); a.flush()
    a("s_movk_i32 s63, 3840")
    a("s_cmp_ge_u32 s62, 30")
    a("s_cselect_b32 s%d, s%d, s%d" % (SRD_ST, S_WG, S_WQKV))
    a("s_cselect_b32 s%d, s%d, s%d" % (SRD_ST + 1, S_WG + 1, S_WQKV + 1))
    a("s_cselect_b32 s63, 3456, s63")
    a("s_cselect_b32 s67, 30, 0")
    a("s_cmp_ge_u32 s62, 57")
    a("s_cselect_b32 s%d, s%d, s%d" % (SRD_ST, S_WU, SRD_ST))
    a("s_cselect_b32 s%d, s%d, s%d" % (SRD_ST + 1, S_WU + 1, SRD_ST + 1))
    a("s_cselect_b32 s67, 57, s67")
    a("s_sub_u32 s70, s62, s67")
    a("s_lshl_b32 s70, s70, 7")
    a("s_lshl_b32 s71, s%d, 3" % S_MT)
    a("s_mul_i32 s71, s71, s63")
    a("s_add_u32 s70, s70, s71")
    a("s_lshl_b32 s71, s63, 6")
    a("s_mul_i32 s%d, s63, 640" % (SRD_ST + 2))
    a("s_lshl_b32 s72, s%d, 8" % S_MT)
    a("s_lshl_b32 s73, s62, 3")
    a("s_add_u32 s72, s72, s73")
    a("s_mul_i32 s73, s72, 1280")
    a("s_cmp_eq_u32 s61, 2")
    a("s_cselect_b32 s%d, s%d, s%d" % (SRD_ST, S_X, SRD_ST))
    a("s_cselect_b32 s%d, s%d, s%d" % (SRD_ST + 1, S_X + 1, SRD_ST + 1))
    a("s_cselect_b32 s63, 1280, s63")
    a("s_cselect_b32 s70, s73, s70")
    a("s_cselect_b32 s71, 128, s71")
    a("s_cselect_b32 s%d, %d, s%d" % (SRD_ST + 2, 2048 * 1280, SRD_ST + 2))
    a("s_cmp_eq_u32 s61, 0")
    a("s_cselect_b32 s%d, 0, s%d" % (SRD_ST + 2, SRD_ST + 2))
    a("s_and_b32 s%d, s%d, 0xffff" % (SRD_ST + 1, SRD_ST + 1))
    a("s_mov_b32 s%d, 0x20000" % (SRD_ST + 3))
    a("v_mov_b32 v19, 0")
    a("v_mul_lo_u32 v18, v4, s63")
    a("v_lshl_add_u32 v18, v6, 4, v18")
    srd(a, SRD_DBG, S_DBG, 256)
    LD, U, A = 32, 72, 20
    order = CFG.get("st_order", [1, 2, 3, 4, 5, 6, 7, 8, 9, 0])
    nld = [0]
    def S(cnt):
        for _ in range(cnt):
            i = order[nld[0]]
            a("s_mul_i32 s73, s71, %d" % i)
            a("s_add_u32 s73, s73, s70")
            a("buffer_load_dwordx4 %s, v18, s[%d:%d], s73 offen" % (vr(LD + 4 * nld[0], 4), SRD_ST, SRD_ST + 3))
            ops.append("s%d" % nld[0]); nld[0] += 1
    class L:
        def __init__(self): self.l = []
        def __call__(self, t): self.l.append(t)
    def acc_items(i):
        o = []
        for d in range(4):
            o.append("v_lshlrev_b32 v%d, 16, v%d" % (U + 8 * i + 2 * d, LD + 4 * i + d))
            o.append("v_and_b32 v%d, 0xffff0000, v%d" % (U + 8 * i + 2 * d + 1, LD + 4 * i + d))
        for d in range(4):
            if i == 1: o.append("v_pk_add_f32 %s, %s, %s" % (vr(A + 2 * d, 2), vr(U + 2 * d, 2), vr(U + 8 + 2 * d, 2)))
            elif i > 1: o.append("v_pk_add_f32 %s, %s, %s" % (vr(A + 2 * d, 2), vr(A + 2 * d, 2), vr(U + 8 * i + 2 * d, 2)))
        return o
    col = L()
    col("v_lshl_add_u32 v19, v6, 3, v4")
    col("v_lshlrev_b32 v19, 3, v19")
    col("s_lshl_b32 s70, s62, 9")
    col("s_mul_i32 s71, s%d, %d" % (S_MT, CSP_STRIDE))
    col("s_add_u32 s70, s70, s71")
    col("s_add_u32 s70, s70, %d" % WS_CSP)
    col("s_cmp_eq_u32 s61, 0")
    col("s_cselect_b32 s70, %d, s70" % OOB)
    col("v_and_b32 v7, 8, v0")
    col("v_cmp_eq_u32 s[82:83], 0, v7")
    for j in range(4): col("v_permlane32_swap_b32 v%d, v%d" % (A + j, A + 4 + j))
    for j in range(4): col("v_add_f32 v%d, v%d, v%d" % (A + j, A + j, A + 4 + j))
    for j in range(2): col("v_permlane16_swap_b32 v%d, v%d" % (A + j, A + 2 + j))
    for j in range(2): col("v_add_f32 v%d, v%d, v%d" % (A + j, A + j, A + 2 + j))
    col("v_cndmask_b32 v%d, v%d, v%d, s[82:83]" % (A + 2, A + 1, A))
    col("v_cndmask_b32 v%d, v%d, v%d, s[82:83]" % (A + 3, A, A + 1))
    col("v_add_f32_dpp v%d, v%d, v%d row_ror:8 row_mask:0xf bank_mask:0xf" % (A, A + 3, A + 2))
    row = L()
    row("v_pk_add_f32 %s, %s, %s" % (vr(A, 2), vr(A, 2), vr(A + 2, 2)))
    row("v_pk_add_f32 %s, %s, %s" % (vr(A + 4, 2), vr(A + 4, 2), vr(A + 6, 2)))
    row("v_pk_add_f32 %s, %s, %s" % (vr(A, 2), vr(A, 2), vr(A + 4, 2)))
    row("v_add_f32 v%d, v%d, v%d" % (A, A, A + 1))
    red8(row, A)
    row("v_mul_f32 v%d, %s, v%d" % (A, f32bits(-1.0 / 640), A))
    for d in range(40):
        row("v_pk_add_f32 %s, %s, %s op_sel_hi:[1,0]" % (vr(U + 2 * d, 2), vr(U + 2 * d, 2), vr(A, 2)))
        c = A + 2 + 2 * (d & 1)
        if d < 2: row("v_pk_mul_f32 %s, %s, %s" % (vr(c, 2), vr(U + 2 * d, 2), vr(U + 2 * d, 2)))
        else: row("v_pk_fma_f32 %s, %s, %s, %s" % (vr(c, 2), vr(U + 2 * d, 2), vr(U + 2 * d, 2), vr(c, 2)))
    row("v_pk_add_f32 %s, %s, %s" % (vr(A + 2, 2), vr(A + 2, 2), vr(A + 4, 2)))
    row("v_add_f32 v%d, v%d, v%d" % (A + 2, A + 2, A + 3))
    red8(row, A + 2)
    row("v_mul_f32 v%d, %s, v%d" % (A + 2, f32bits(1.0 / 640), A + 2))
    rbf(row, A + 2)
    row("v_add_f32 v%d, %s, v%d" % (A + 2, f32bits(1e-5), A + 2))
    rbf(row, A + 2)
    row("v_sqrt_f32 v%d, v%d" % (A + 2, A + 2))
    row("v_cvt_pk_bf16_f32 v%d, v%d, v%d" % (A, A, A + 2))
    row("v_lshlrev_b32 v19, 3, v4")
    row("v_mov_b32 v7, %d" % OOB)
    row("v_cmp_eq_u32 vcc, 0, v6")
    row("v_cndmask_b32 v19, v7, v19, vcc")
    row("s_lshl_b32 s70, s72, 3")
    row("s_add_u32 s70, s70, %d" % WS_RST)
    CH = CFG.get("st_ch", 28)
    nw, nx = [2], [2]
    def ring(u, cap):
        n = 0
        while n < cap:
            wok = nw[0] < 20 and nw[0] - 5 <= u - 1
            xok = nx[0] < 20 and 2 * (nx[0] // 2) - 5 <= u - 1
            if xok and (not wok or nx[0] <= nw[0]):
                X(nx[0]); nx[0] += 1; n += 4
            elif wok:
                W(nw[0]); nw[0] += 1; n += 3
            else:
                break
    def landed():
        return sum(1 for t in ops[:lastdone[0] + 1] if t[0] == "s" and t[1:].isdigit())
    caps = CFG.get("ld_caps", [4, 10, 14, 10])
    pace = CFG.get("st_pace", [0, 0, 2, 2, 2, 2, 2])
    done = 0; rpos = 0; coldone = False; u_store = None; issued_at = {}; early = [8]
    for u in range(-1, 16):
        ring(u, caps[u + 1] if u + 1 < len(caps) else 7)
        if u + 1 < len(pace): S(pace[u + 1])
        if u == 2:
            a("buffer_load_dword v13, off, s[%d:%d], 0 sc1" % (SRD_DBG, SRD_DBG + 3)); ops.append("tag")
        issued_at[u] = nld[0]
        budget = CH
        avail = issued_at.get(u - CFG.get("st_lag", 2), 0)
        tgt = min(avail, done + budget // 12)
        if tgt > done and tgt > landed():
            wait(["s%d" % (tgt - 1)])
        while done < 10 and done < landed() and budget >= 12:
            for t in acc_items(done): a(t)
            done += 1; budget -= 12
        if done == 10 and u_store is None and budget >= 12:
            l1, l2 = a.newlabel("K1_STR"), a.newlabel("K1_STE")
            a("s_cmp_eq_u32 s61, 2")
            a("s_cbranch_scc1 %s" % l1)
            if not coldone:
                for t in col.l: a(t)
                coldone = True
            a("s_branch %s" % l2)
            a.label(l1); a.flush(); a.nops(2)
            n = budget
            while rpos + n < len(row.l) and row.l[rpos + n - 1].startswith(("v_cmp", "s_")): n += 1
            for t in row.l[rpos:rpos + n]: a(t)
            rpos += n
            a.label(l2); a.flush(); a.nops(2)
            if rpos >= len(row.l):
                a("s_mov_b32 s73, 0")
                a.label("K1_TAG_CHK")
                a("v_readfirstlane_b32 s78, v13")
                a("s_cmp_lg_u32 s78, 0")
                a("s_cbranch_scc1 K1_TAG_OK")
                a("s_add_u32 s73, s73, 1")
                a("s_cmp_gt_u32 s73, 200000")
                a("s_cbranch_scc1 K1_TAG_OK")
                a("s_sleep 8")
                a("buffer_load_dword v13, off, s[%d:%d], 0 sc1" % (SRD_DBG, SRD_DBG + 3))
                a("s_waitcnt vmcnt(0)")
                a("s_branch K1_TAG_CHK")
                a.label("K1_TAG_OK"); a.flush()
                a("v_mov_b32 v%d, v13" % (A + 1))
                a("buffer_store_dwordx2 %s, v19, s[%d:%d], s70 offen sc0 sc1" % (vr(A, 2), SRD_WS, SRD_WS + 3))
                ops.append("st"); u_store = u
        if CFG.get("merged") == 4 and u == 8:
            w2base(a)
            a("v_lshlrev_b32 v14, 7, v0")
            a("s_mov_b32 s73, %d" % WS_PKA)
            a("buffer_load_dword v12, v14, s[%d:%d], s73 offen sc1" % (SRD_WS, SRD_WS + 3)); ops.append("pka")
        if CFG.get("merged") == 4 and u_store is not None and u > u_store:
            import p2, p5
            if u == u_store + 1:
                wait(["pka"])
                a("v_cmp_ne_u32 vcc, v12, v13")
                a("s_and_b32 vcc_lo, vcc_lo, 0xffff")
                a("s_cbranch_scc0 K1_PKA_OK")
                a("s_mov_b32 s55, s76"); a("s_mov_b32 s31, s77")
                a("s_mov_b32 s73, %d" % WS_PKA)
                p2.poll(a, "PKA", 16, 73, 7)
                a("s_mov_b32 s76, s55"); a("s_mov_b32 s77, s31")
                a.label("K1_PKA_OK")
            for _ in range(2):
                if early[0] < 14:
                    p5.l_load(a, early[0], sbase=28, vb=5); ops.extend(["pre"] * 5); early[0] += 1
        bar(u)
    assert u_store is not None
    print("loader: stat store at u=%d" % u_store)
    a("v_lshlrev_b32 v16, 3, v16")
    a("v_lshlrev_b32 v15, 5, v0")
    a("s_mov_b32 s63, 0")
    a("s_cmp_eq_u32 s60, 3")
    a("s_cbranch_scc1 K1_LD_ROWS")
    def colloads():
        for c in range(8):
            a("s_mov_b32 s62, %d" % (WS_CSP + c * CSP_STRIDE))
            a("buffer_load_dwordx2 %s, v16, s[%d:%d], s62 offen sc1" % (vr(20 + 2 * c, 2), SRD_WS, SRD_WS + 3))
    assert nw[0] == 20 and nx[0] == 20
    def tailwait(tags, extra):
        last = max(i for i, t in enumerate(ops) if t in tags)
        a("s_waitcnt vmcnt(%d)" % (len(ops) - 1 - last + extra))
    colloads()
    tailwait(["w17"], 8)
    tl(a); a("s_barrier"); tl(a)
    a("s_waitcnt vmcnt(8)")
    tl(a); a("s_barrier"); tl(a)
    a.label("K1_LD_CCHK")
    a("s_waitcnt vmcnt(0)")
    a("v_xor_b32 v14, v13, v21")
    for c in range(1, 8):
        a("v_xor_b32 v12, v13, v%d" % (21 + 2 * c))
        a("v_or_b32 v14, v14, v12")
    a("v_cmp_ne_u32 vcc, 0, v14")
    a("s_cmp_eq_u64 vcc, 0")
    a("s_cbranch_scc1 K1_LD_COK")
    a("s_add_u32 s63, s63, 1")
    a("s_cmp_gt_u32 s63, 200000")
    a("s_cbranch_scc1 K1_LD_COK")
    a("s_sleep 8")
    colloads()
    a("s_branch K1_LD_CCHK")
    a.label("K1_LD_COK"); a.flush()
    for (d, x, y) in ((20, 20, 22), (24, 24, 26), (28, 28, 30), (32, 32, 34), (20, 20, 24), (28, 28, 32), (20, 20, 28)):
        a("v_add_f32 v%d, v%d, v%d" % (d, x, y))
    a("v_cvt_pk_bf16_f32 v21, v20, v20")
    a("v_and_b32 v21, 0xffff0000, v21")
    a("v_sub_f32 v22, v20, v21")
    a("v_cvt_pk_bf16_f32 v20, v21, v22")
    a("v_lshlrev_b32 v17, 2, v17")
    a("v_add_u32 v17, %d, v17" % ST_COL)
    a("ds_write_b32 v17, v20")
    a("s_branch K1_LD_FIN")
    a.label("K1_LD_ROWS"); a.flush()
    a("s_lshl_b32 s62, s%d, 11" % S_MT)
    a("s_add_u32 s62, s62, %d" % WS_RST)
    def rowloads():
        for i in range(4):
            a("buffer_load_dwordx2 %s, v15, s[%d:%d], s62 offen offset:%d sc1" % (vr(20 + 2 * i, 2), SRD_WS, SRD_WS + 3, 8 * i))
    rowloads()
    tailwait(["w17"], 4)
    tl(a); a("s_barrier"); tl(a)
    a("s_waitcnt vmcnt(4)")
    tl(a); a("s_barrier"); tl(a)
    a.label("K1_LD_RCHK")
    a("s_waitcnt vmcnt(0)")
    a("v_xor_b32 v14, v13, v21")
    for c in range(1, 4):
        a("v_xor_b32 v12, v13, v%d" % (21 + 2 * c))
        a("v_or_b32 v14, v14, v12")
    a("v_cmp_ne_u32 vcc, 0, v14")
    a("s_cmp_eq_u64 vcc, 0")
    a("s_cbranch_scc1 K1_LD_ROK")
    a("s_add_u32 s63, s63, 1")
    a("s_cmp_gt_u32 s63, 200000")
    a("s_cbranch_scc1 K1_LD_ROK")
    a("s_sleep 8")
    rowloads()
    a("s_branch K1_LD_RCHK")
    a.label("K1_LD_ROK"); a.flush()
    a("v_lshrrev_b32 v15, 1, v15")
    a("v_add_u32 v15, %d, v15" % ST_MEAN)
    for i in range(4):
        a("v_and_b32 v%d, 0xffff, v%d" % (28 + i, 20 + 2 * i))
        a("v_lshl_or_b32 v%d, v%d, 16, v%d" % (28 + i, 28 + i, 28 + i))
        a("v_and_b32 v%d, 0xffff0000, v%d" % (32 + i, 20 + 2 * i))
        a("v_rcp_f32 v%d, v%d" % (32 + i, 32 + i))
    a("s_nop 0")
    a("ds_write_b128 v15, v[28:31]")
    a("ds_write_b128 v15, v[32:35] offset:1024")
    a.label("K1_LD_FIN")
    a("s_waitcnt lgkmcnt(0)")
    tl(a); a("s_barrier"); tl(a)
    if CFG.get("merged") == 4:
        gen_phase5(a)
        return
    if CFG.get("merged", 0) >= 2:
        gen_phase3_l(a)
        return
    if CFG.get("merged"):
        gen_phase2(a)
        return
    if CFG.get("flagtest"):
        a("s_barrier")
        a("s_cmp_lt_u32 s%d, 22" % S_GRP)
        a("s_cbranch_scc1 K1_FT_NOKV")
        a("s_barrier")
        a.label("K1_FT_NOKV")
        a("s_barrier")
        a("s_cmp_lg_u32 s60, 0")
        a("s_cbranch_scc1 K1_FT_END")
        a("s_lshl_b32 s62, s%d, 5" % S_MT)
        a("s_add_u32 s63, s62, s%d" % S_GRP)
        a("s_lshl_b32 s63, s63, 7")
        a("s_add_u32 s63, s63, %d" % WS_FLG)
        a("s_mov_b64 exec, 1")
        a("buffer_store_dword v13, off, s[%d:%d], s63 sc0 sc1" % (SRD_WS, SRD_WS + 3))
        a("s_mov_b64 exec, -1")
        a("s_lshl_b32 s62, s%d, 12" % S_XCD)
        a("s_add_u32 s62, s62, %d" % WS_FLG)
        a("v_lshlrev_b32 v14, 7, v0")
        a("s_mov_b32 s66, 0x3fffff")
        a("s_mov_b32 s67, 0")
        a("s_mov_b32 s63, 0")
        a("s_mov_b64 exec, s[66:67]")
        a.label("K1_FT_POLL")
        a("buffer_load_dword v12, v14, s[%d:%d], s62 offen sc1" % (SRD_WS, SRD_WS + 3))
        a("s_waitcnt vmcnt(0)")
        a("v_cmp_ne_u32 vcc, v12, v13")
        a("s_cbranch_vccz K1_FT_OK")
        a("s_add_u32 s63, s63, 1")
        a("s_cmp_gt_u32 s63, 100000")
        a("s_cbranch_scc1 K1_FT_OK")
        a("s_sleep %d" % CFG.get("ft_sleep", 4))
        a("s_branch K1_FT_POLL")
        a.label("K1_FT_OK")
        a("s_mov_b64 exec, -1")
        a.label("K1_FT_END")
    if STAMP:
        a("s_mov_b32 s50, 0x7fffffff")
        a("s_lshl_b32 s82, s2, 2")
        a("s_add_u32 s82, s82, s60")
        a("s_lshl_b32 s82, s82, 8")
        a("s_add_u32 s82, s82, %d" % (WS_ST + (1 << 19)))
        a("v_lshlrev_b32 v2, 2, v0")
        a("buffer_store_dword v167, v2, s[48:51], s82 offen")
    stamp_flush(a, 0, S_WAVE, 1)
    a("s_endpgm")

def w2base(a):
    a("s_lshr_b32 s28, s%d, 2" % S_XCD)
    a("s_lshl_b32 s28, s28, 2")
    a("s_lshr_b32 s73, s%d, 3" % S_IDX)
    a("s_add_u32 s28, s28, s73")
    a("s_mul_i32 s28, s28, %d" % (74 * 5120))
    a("s_mul_i32 s73, s60, %d" % (13 * 5120))
    a("s_add_u32 s28, s28, s73")
    a("s_add_u32 s28, s28, %d" % WS_W2P)
    a("v_lshlrev_b32 v5, 4, v0")

def gen_phase5(a):
    import p2, p3, p5
    CFG["p3_obar"] = []
    p5.l_load(a, 7, sbase=28, vb=5)
    a.label("P5_LSET"); a.flush()
    p5.setup(a, CFG)
    a("v_mov_b32 v12, %d" % (ST_FLAG + 4))
    a("v_mov_b32 v14, 0")
    a("v_mov_b32 v15, 0")
    a("ds_write_b32 v12, v13")
    a("ds_write_b64 v12, v[14:15] offset:4")
    a("ds_write_b64 v%d, v[14:15]" % p5.V_W)
    a("ds_write_b32 v%d, v14 offset:8" % p5.V_W)
    a("s_waitcnt lgkmcnt(0)")
    a("s_barrier")
    a("s_setprio %d" % CFG.get("p5_lprio", 0))
    a("s_cmp_lt_u32 s%d, 22" % S_GRP)
    a("s_cbranch_scc1 P5_LPRE")
    a("s_barrier")
    a("v_mov_b32 v14, %d" % (ST_FLAG + 8))
    p5.ldswait(a, "CNT", 0, 8, areg=14)
    a.label("P5_LPRE"); a.flush()
    a("s_mov_b32 s73, %d" % WS_PKF)
    p2.poll(a, "PK1", 16, 73, 7)
    p5.l_preload_lds(a)
    a("v_mov_b32 v12, 7")
    a("s_waitcnt vmcnt(0)")
    a("ds_write_b32 v%d, v12 offset:4" % p5.V_W)
    p5.l_main(a)
    a("s_endpgm")
    a.label("P3_FIN"); a.flush()
    a("v_mov_b32 v12, %d" % (ST_FLAG + 4))
    a("ds_read_b32 v13, v12")
    a("v_mov_b32 v14, 1")
    a("s_waitcnt vmcnt(0) lgkmcnt(0)")
    a("s_mov_b64 exec, 1")
    a("ds_add_rtn_u32 v14, v12, v14 offset:4")
    a("s_waitcnt lgkmcnt(0)")
    a("v_readfirstlane_b32 s73, v14")
    a("s_cmp_lg_u32 s73, 7")
    a("s_cbranch_scc1 P3_NOFLAG")
    a("s_lshl_b32 s72, s%d, 5" % S_MT)
    a("s_add_u32 s72, s72, s83")
    a("s_lshl_b32 s72, s72, 7")
    a("s_add_u32 s72, s72, %d" % WS_FLG)
    a("buffer_store_dword v13, off, s[%d:%d], s72 sc0 sc1" % (SRD_WS, SRD_WS + 3))
    a.label("P3_NOFLAG")
    a("s_mov_b64 exec, -1")
    a.label("P3_WORK"); a.flush()
    stamp(a, 1)
    a("s_and_b32 s60, s%d, 3" % S_WAVE)
    p5.setup(a, CFG)
    a("v_mov_b32 v15, %d" % (ST_FLAG + 12))
    a("s_cmp_lt_u32 s%d, 4" % S_WAVE)
    a("s_cbranch_scc1 P3_O")
    a("s_cmp_lg_u32 s60, 0")
    a("s_cbranch_scc1 P5_HGO")
    a("s_lshr_b32 s73, s%d, 2" % p2.S_MT)
    a("s_lshl_b32 s73, s73, 12")
    a("s_add_u32 s73, s73, %d" % WS_FLG)
    p2.poll(a, "MAIN", 22, 73, 7, CFG.get("ft_sleep", 2))
    a("v_mov_b32 v12, 1")
    a("ds_write_b32 v15, v12")
    a.label("P5_HGO"); a.flush()
    a("s_setprio %d" % CFG.get("p5_hprio", 2))
    p5.ldswait(a, "HGO", 0, 1, areg=15)
    p5.ldswait(a, "HF7", 4, 7)
    if STAMP: a("s_memtime s[96:97]")
    p5.h_main(a, CFG)
    p3.h_epilogue(a)
    if STAMP: a("s_memtime s[98:99]")
    stamp_flush(a, 1, 60, 4)
    a("s_endpgm")
    a.label("P3_O"); a.flush()
    p5.ldswait(a, "OGO", 0, 1, areg=15)
    if STAMP: a("s_memtime s[96:97]")
    p3.o_main(a, CFG)
    if STAMP:
        a("s_memtime s[98:99]")
        a("s_add_u32 s60, s60, 4")
    stamp_flush(a, 1, 60, 4)
    a("s_endpgm")

def gen_phase3_l(a):
    import p2, p3, p4
    v4 = CFG.get("merged") == 3
    if v4:
        CFG["p3_obar"] = []; CFG["p3_nbar"] = 1
        Wk = p4.W(CFG)
        class Rec:
            def __init__(self): self.l = []
            def __call__(self, t): self.l.append(t)
        rec = Rec(); Wk.preload(rec)
    def pre_lds():
        if v4:
            for t in rec.l: a(t)
        else: p3.l_preload_lds(a)
    def pre_regs():
        if not v4: p3.l_preload_regs(a)
    def mainpoll():
        a("s_cmp_lg_u32 s60, 0")
        a("s_cbranch_scc1 P3_HB21")
        a("s_lshr_b32 s73, s%d, 2" % p2.S_MT)
        a("s_lshl_b32 s73, s73, 12")
        a("s_add_u32 s73, s73, %d" % WS_FLG)
        p2.poll(a, "MAIN", 22, 73, 7, CFG.get("ft_sleep", 2))
        a.label("P3_HB21"); a.flush()
    a("v_mov_b32 v12, %d" % (ST_FLAG + 4))
    a("v_mov_b32 v14, 0")
    a("ds_write2_b32 v12, v13, v14 offset0:0 offset1:1")
    p3.setup(a, CFG)
    a("s_waitcnt lgkmcnt(0)")
    a("s_barrier")
    a("s_setprio %d" % CFG.get("p2_prio", 0))
    a("s_cmp_ge_u32 s%d, 22" % S_GRP)
    a("s_cbranch_scc1 P3_KVWG")
    a("s_mov_b32 s73, %d" % WS_PKF)
    p2.poll(a, "PK1", 16, 73, 7)
    pre_lds()
    pre_regs()
    a("s_branch P3_PRE_DONE")
    a.label("P3_KVWG"); a.flush()
    a("s_barrier")
    a("s_mov_b32 s73, %d" % WS_PKF)
    p2.poll(a, "PK2", 16, 73, 7)
    pre_regs()
    a("v_mov_b32 v12, %d" % (ST_FLAG + 8))
    a("s_mov_b32 s78, 0")
    a.label("P3_CNT")
    a("ds_read_b32 v14, v12")
    a("s_waitcnt lgkmcnt(0)")
    a("v_readfirstlane_b32 s73, v14")
    a("s_add_u32 s78, s78, 1")
    a("s_cmp_gt_u32 s78, 1000000")
    a("s_cbranch_scc1 P3_LENTRY")
    a("s_sleep 1")
    a("s_cmp_lt_u32 s73, 8")
    a("s_cbranch_scc1 P3_CNT")
    a.label("P3_LENTRY"); a.flush()
    pre_lds()
    a.label("P3_PRE_DONE"); a.flush()
    if v4:
        stamp(a, 1)
        mainpoll()
        a("s_barrier")
        if STAMP: a("s_memtime s[96:97]")
        Wk.main(a)
        p3.h_epilogue(a)
        if STAMP: a("s_memtime s[98:99]")
        stamp_flush(a, 1, 60, 4)
    else:
        a("s_waitcnt vmcnt(0)")
        a("s_barrier")
        p3.l_main(a)
    a("s_endpgm")
    a.label("P3_FIN"); a.flush()
    a("v_mov_b32 v12, %d" % (ST_FLAG + 4))
    a("ds_read_b32 v13, v12")
    a("v_mov_b32 v14, 1")
    a("s_waitcnt vmcnt(0) lgkmcnt(0)")
    a("s_mov_b64 exec, 1")
    a("ds_add_rtn_u32 v14, v12, v14 offset:4")
    a("s_waitcnt lgkmcnt(0)")
    a("v_readfirstlane_b32 s73, v14")
    a("s_cmp_lg_u32 s73, 7")
    a("s_cbranch_scc1 P3_NOFLAG")
    a("s_lshl_b32 s72, s%d, 5" % S_MT)
    a("s_add_u32 s72, s72, s83")
    a("s_lshl_b32 s72, s72, 7")
    a("s_add_u32 s72, s72, %d" % WS_FLG)
    a("buffer_store_dword v13, off, s[%d:%d], s72 sc0 sc1" % (SRD_WS, SRD_WS + 3))
    a.label("P3_NOFLAG")
    a("s_mov_b64 exec, -1")
    a.label("P3_WORK"); a.flush()
    stamp(a, 1)
    a("s_and_b32 s60, s%d, 3" % S_WAVE)
    p3.setup(a, CFG)
    a("s_cmp_lt_u32 s%d, 4" % S_WAVE)
    a("s_cbranch_scc1 P3_O")
    if not v4:
        mainpoll()
        a("s_barrier")
        if STAMP: a("s_memtime s[96:97]")
        p3.h_main(a, CFG)
        p3.h_epilogue(a)
        if STAMP: a("s_memtime s[98:99]")
        stamp_flush(a, 1, 60, 4)
    else:
        a("s_mov_b32 s73, %d" % WS_PKF)
        p2.gen_reducer(a, pkpoll=True)
    a("s_endpgm")
    a.label("P3_O"); a.flush()
    if not v4:
        a("s_mov_b32 s73, %d" % WS_PKF)
        p2.gen_reducer(a, pkpoll=True)
    a("s_barrier")
    if STAMP: a("s_memtime s[96:97]")
    p3.o_main(a, CFG)
    if STAMP:
        a("s_memtime s[98:99]")
        a("s_add_u32 s60, s60, 4")
    stamp_flush(a, 1, 60, 4)
    a("s_endpgm")

def gen_phase2(a):
    import p2
    p2.setup(a, CFG)
    P, blocks = p2.build(a, CFG)
    class Rec:
        def __init__(self): self.l = []
        def __call__(self, t): self.l.append(t)
    rec = Rec(); P.a = rec
    p2.gen_preload(rec, CFG, P, blocks)
    P.a = a
    a("s_barrier")
    a("s_mov_b32 s79, 1")
    a("s_cmp_ge_u32 s%d, 22" % S_GRP)
    a("s_cbranch_scc1 P2_KVWG")
    a("s_mov_b32 s73, %d" % WS_PKF)
    p2.poll(a, "PK1", 16, 73, 7)
    for t in rec.l: a(t)
    a("s_mov_b32 s79, 0")
    a("s_branch P2_B20")
    a.label("P2_KVWG"); a.flush()
    a("s_barrier")
    a.label("P2_B20"); a.flush()
    a("s_barrier")
    a("s_cmp_lg_u32 s60, 0")
    a("s_cbranch_scc1 P2_ENTRY")
    a("s_lshl_b32 s72, s%d, 5" % S_MT)
    a("s_add_u32 s72, s72, s%d" % S_GRP)
    a("s_lshl_b32 s72, s72, 7")
    a("s_add_u32 s72, s72, %d" % WS_FLG)
    a("s_mov_b64 exec, 1")
    a("buffer_store_dword v13, off, s[%d:%d], s72 sc0 sc1" % (SRD_WS, SRD_WS + 3))
    a("s_mov_b64 exec, -1")
    a.label("P2_ENTRY"); a.flush()
    stamp(a, 1)
    a("s_cmp_eq_u32 s79, 0")
    a("s_cbranch_scc1 P2_PRE_DONE")
    a("s_mov_b32 s73, %d" % WS_PKF)
    p2.poll(a, "PK2", 16, 73, 7)
    for t in rec.l: a(t)
    a.label("P2_PRE_DONE"); a.flush()
    p2.gen_reducer(a)
    a("s_cmp_lg_u32 s60, 0")
    a("s_cbranch_scc1 P2_B21")
    a("s_lshr_b32 s73, s%d, 2" % p2.S_MT)
    a("s_lshl_b32 s73, s73, 12")
    a("s_add_u32 s73, s73, %d" % WS_FLG)
    p2.poll(a, "MAIN", 22, 73, 7, CFG.get("ft_sleep", 2))
    a.label("P2_B21"); a.flush()
    a("s_barrier")
    if STAMP: a("s_memtime s[96:97]")
    p2.gen_main(a, CFG, P, blocks)
    if STAMP: a("s_memtime s[98:99]")
    stamp_flush(a, 1, 60, 4)
    a("s_endpgm")

ACC = 16
XS = [112, 128]
WA, WB = 144, 156
V_XB = 2
V_WE, V_WO = 4, 5
V_XA, V_WAE, V_WAO = 6, 7, 8
T0 = 112

def gen_compute(a, typ):
    nt = 6 if typ == "F" else 5
    orient = "N" if typ == "K" else "T"
    rowb = 192 if typ == "F" else 320
    def acc(t, rb): return ACC + (t * 4 + rb) * 4
    def wf(t): return (WA + 4 * t) if t < 3 else (WB + 4 * (t - 3))
    a("v_and_b32 v14, 15, v0")
    a("v_lshrrev_b32 v15, 4, v0")
    a("v_bfe_u32 v9, v0, 1, 3")
    a("v_xor_b32 v9, v9, v15")
    a("s_lshl_b32 s61, s60, 13")
    a("v_lshl_add_u32 v10, v14, 7, s61")
    a("v_lshl_add_u32 v%d, v9, 4, v10" % V_XB)
    a("v_xor_b32 v9, 4, v9")
    a("v_lshl_add_u32 v%d, v9, 4, v10" % (V_XB + 1))
    a("v_bfe_u32 v9, v0, 2, 2")
    a("v_lshl_add_u32 v9, v15, 3, v9")
    a("v_mul_u32_u24 v9, %d, v9" % rowb)
    a("v_and_b32 v10, 3, v0")
    a("v_lshl_add_u32 v9, v10, 3, v9")
    a("v_bfe_u32 v10, v0, 4, 1")
    a("v_lshlrev_b32 v10, 5, v10")
    if typ in "FQ":
        P = 3 if typ == "F" else 5
        a("s_mul_i32 s62, s67, %d" % (32 * P))
        a("v_add_u32 v9, s62, v9")
        a("v_add_u32 v11, v9, v10")
        a("v_sub_u32 v12, v9, v10")
        a("s_cmp_eq_u32 s67, 0")
        a("s_cselect_b64 s[68:69], -1, 0")
        a("v_cndmask_b32 v%d, v12, v11, s[68:69]" % V_WE)
        a("v_cndmask_b32 v%d, v11, v12, s[68:69]" % V_WO)
        if typ == "F":
            tl = [((t & 1) * UPOFF + (t >> 1) * 32, (t >> 1) & 1) for t in range(6)]
        else:
            tl = [(t * 32, t & 1) for t in range(5)]
    else:
        a("s_mul_i32 s62, s67, 96")
        a("v_add_u32 v9, s62, v9")
        a("v_add_u32 v11, v9, v10")
        a("v_sub_u32 v12, v9, v10")
        a("s_cmp_eq_u32 s67, 0")
        a("s_cselect_b64 s[68:69], -1, 0")
        a("v_cndmask_b32 v%d, v12, v11, s[68:69]" % V_WE)
        a("v_cndmask_b32 v%d, v11, v12, s[68:69]" % V_WO)
        a("s_lshl_b32 s70, s67, 6")
        tl = [(0, 0), (32, 1), (64, 2), (160, 1), (192, 0)]
    for r in range(nt * 16):
        a("v_mov_b32 v%d, 0" % (ACC + r))
    a("s_mov_b32 s63, 0")
    a("s_mov_b32 s64, %d" % XSLOT)
    a("s_mov_b32 s65, %d" % WBASE)
    a("s_mov_b32 s66, 0")
    def waddr():
        out = ["v_add_u32 v%d, s65, v%d" % (V_WAE, V_WE), "v_add_u32 v%d, s65, v%d" % (V_WAO, V_WO)]
        if typ == "K":
            out.append("v_add_u32 v13, s70, v%d" % V_WAE)
        return out
    def wreads(ts):
        out = []
        for t in ts:
            off, par = tl[t]
            reg = (V_WAE, V_WAO, 13)[par]
            out.append("ds_read_b64_tr_b16 %s, v%d offset:%d" % (vr(wf(t), 2), reg, off))
            out.append("ds_read_b64_tr_b16 %s, v%d offset:%d" % (vr(wf(t) + 2, 2), reg, off + 4 * rowb))
        return out
    def xreads(st, hf, xs):
        out = ["v_add_u32 v%d, s%d, v%d" % (V_XA, xs, V_XB + hf)]
        for rb in range(4):
            out.append("ds_read_b128 %s, v%d offset:%d" % (vr(XS[st] + 4 * rb, 4), V_XA, rb * 2048))
        return out
    def mfma(t, rb, W, X):
        A, B = (W, X) if orient == "T" else (X, W)
        return "v_mfma_f32_16x16x32_bf16 %s, %s, %s, %s" % (vr(acc(t, rb), 4), vr(A, 4), vr(B, 4), vr(acc(t, rb), 4))
    def wadv():
        return ["s_add_u32 s65, s65, %d" % WSLOT,
                "s_cmp_ge_u32 s65, %d" % (WBASE + WRING * WSLOT),
                "s_cselect_b32 s65, %d, s65" % WBASE] + waddr()
    for t in waddr(): a(t)
    a("s_barrier")
    stamp(a, 1)
    if STAMP: a("s_memtime s[96:97]")
    xr = xreads(0, 0, 63); wr = wreads([0, 1, 2])
    for t in xr[:1] + wr[:2] + xr[1:] + wr[2:]:
        a(t)
    a.label("K1_LOOP_" + typ)
    def phase(ms, fill, barrier):
        if CFG.get("no_ds"): fill = [f for f in fill if not f.startswith("ds_")]
        if CFG.get("no_mfma"): ms = ["s_nop 0"] * len(ms)
        a("s_waitcnt lgkmcnt(0)")
        nb = CFG.get("k1_prebar", 2)
        for m in ms[:nb]: a(m)
        if barrier: a("s_barrier")
        rest = ms[nb:]
        k = 0
        for i, m in enumerate(rest):
            per = 2 if len(fill) - k > len(rest) - i else 1
            for f in fill[k:k + per]: a(f)
            k += per
            a(m)
        for f in fill[k:]: a(f)
    for hf in range(2):
        cur = hf
        msA = [mfma(t, rb, wf(t), XS[cur] + 4 * rb) for t in range(3) for rb in range(4)]
        msB = [mfma(t, rb, wf(t), XS[cur] + 4 * rb) for t in range(3, nt) for rb in range(4)]
        phase(msA, wreads(range(3, nt)), False)
        xr = xreads(cur ^ 1, hf ^ 1, 63 if hf == 0 else 64); wr = wreads([0, 1, 2])
        phase(msB, wadv() + xr[:1] + wr[:2] + xr[1:] + wr[2:], True)
    a("s_mov_b32 s63, s64")
    a("s_add_u32 s64, s64, %d" % XSLOT)
    a("s_cmp_ge_u32 s64, %d" % (XRING * XSLOT))
    a("s_cselect_b32 s64, 0, s64")
    a("s_add_u32 s66, s66, 1")
    a("s_cmp_lt_u32 s66, 10")
    a("s_cbranch_scc1 K1_LOOP_" + typ)
    stamp(a, 2)
    if STAMP: a("s_memtime s[98:99]")
    a("s_waitcnt lgkmcnt(0)")
    XC = T0
    WC = T0 + 16
    M = T0 + 40
    a("s_lshl_b32 s61, s60, 8")
    a("s_add_u32 s61, s61, %d" % ST_MEAN)
    a("v_lshl_add_u32 v9, v0, 2, s61")
    a("ds_read_b32 v%d, v9" % M)
    a("v_lshlrev_b32 v10, 2, v14")
    if typ == "F":
        a("s_mul_i32 s62, s67, %d" % (3 * 128))
        co = [(t >> 1) * 128 + (t & 1) * 64 for t in range(6)]
    elif typ == "Q":
        a("s_mul_i32 s62, s67, %d" % (5 * 64))
        co = [t * 64 for t in range(5)]
    else:
        a("s_mul_i32 s62, s67, %d" % (3 * 64))
        co = [0, 64, 128, 320, 384]
    a("s_add_u32 s62, s62, %d" % ST_COL)
    a("v_add_u32 v10, s62, v10")
    if typ == "K":
        a("s_lshl_b32 s70, s67, 7")
        a("v_add_u32 v11, s70, v10")
    for t in range(nt):
        a("ds_read_b32 v%d, v%d offset:%d" % (WC + 4 * t, 11 if (typ == "K" and t == 2) else 10, co[t]))
    RS = T0 + 44
    if orient == "T":
        a("v_lshl_add_u32 v9, v14, 2, s61")
        for rb in range(4):
            a("ds_read_b32 v%d, v9 offset:%d" % (RS + rb, 1024 + rb * 64))
    for r in range(1, 4):
        for k in range(4): a("v_mov_b32 v%d, 0" % (XC + 4 * k + r))
        for t in range(nt): a("v_mov_b32 v%d, 0" % (WC + 4 * t + r))
    for rb in range(4):
        a("v_cmp_eq_u32 s[%d:%d], %d, v15" % (72 + 2 * rb, 73 + 2 * rb, rb))
    a("s_waitcnt lgkmcnt(0)")
    for rb in range(4):
        a("v_cndmask_b32 v%d, 0, v%d, s[%d:%d]" % (XC + 4 * rb, M, 72 + 2 * rb, 73 + 2 * rb))
    for t in range(nt):
        for rb in range(4):
            a(mfma(t, rb, WC + 4 * t, XC + 4 * rb))
    stamp(a, 3)
    if typ == "F":
        epi_ffn(a, acc, RS)
    elif typ == "Q":
        epi_q(a, acc, RS)
    else:
        epi_kv(a, acc)

def fin_compute(a):
    if CFG.get("merged", 0) >= 2:
        a("s_branch P3_FIN")
        return
    if CFG.get("flagtest") or CFG.get("merged"):
        a("s_waitcnt vmcnt(0)")
        a("s_barrier")
    if CFG.get("merged", 0) >= 2:
        a("s_branch P3_WORK")
        return
    stamp_flush(a, 0, S_WAVE, 4)
    a("s_endpgm")

def epi_ffn(a, acc, RS):
    c0 = -2.0 * math.sqrt(2.0 / math.pi) * LOG2E
    K = T0
    for rb in range(4):
        k = K + rb * 6; R = RS + rb
        a("v_mul_f32 v%d, v%d, v%d" % (k + 4, R, R))
        a("v_mul_f32 v%d, %s, v%d" % (k, f32bits(c0), R))
        a("v_mul_f32 v%d, v%d, v%d" % (k + 2, k, k + 4))
        a("v_rcp_f32 v%d, v%d" % (k + 4, k + 4))
        a("v_mul_f32 v%d, %s, v%d" % (k + 2, f32bits(0.044715), k + 2))
    VA = 9
    a("v_lshlrev_b32 v%d, 4, v0" % VA)
    a("s_lshl_b32 s61, s%d, 2" % S_MT)
    a("s_add_u32 s61, s61, s60")
    a("s_mul_i32 s61, s61, %d" % (54 * 4096))
    a("s_mul_i32 s62, s%d, %d" % (S_GRP, 3 * 4096))
    a("s_add_u32 s61, s61, s62")
    a("s_add_u32 s62, s61, 8192")
    a("s_add_u32 s63, s61, 4096")
    a("v_bfe_u32 v10, v0, 4, 1")
    a("v_lshlrev_b32 v10, 10, v10")
    a("v_lshl_add_u32 v10, v14, 4, v10")
    a("v_lshrrev_b32 v11, 5, v0")
    a("v_lshl_add_u32 v10, v11, 8, v10")
    a("s_lshl_b32 s64, s67, 9")
    a("s_add_u32 s63, s63, s64")
    a("s_cmp_lg_u32 s67, 0")
    a("s_cselect_b32 s61, s62, s61")
    a("s_cbranch_scc1 K1_FE1")
    T = T0 + 24
    def body(ch):
        hi = 2 if ch == 0 else 0
        for rp in range(2):
            half = T0 + 48 + 4 * rp
            for h in range(2):
                rb = 2 * rp + h
                k = K + rb * 6
                full = T0 + 40 + 4 * h
                n = 0
                for i in range(3):
                    G, Uu = acc(2 * i, rb), acc(2 * i + 1, rb)
                    t = T + 8 * (i & 1)
                    if i == hi: out = half + 2 * h
                    else: out = full + 2 * n; n += 1
                    for p in range(2):
                        a("v_pk_mul_f32 %s, %s, %s" % (vr(t + 2 * p, 2), vr(G + 2 * p, 2), vr(G + 2 * p, 2)))
                    for p in range(2):
                        a("v_pk_fma_f32 %s, %s, %s, %s op_sel_hi:[1,0,0]" % (vr(t + 2 * p, 2), vr(t + 2 * p, 2), vr(k + 2, 2), vr(k, 2)))
                    for p in range(2):
                        a("v_pk_mul_f32 %s, %s, %s" % (vr(t + 2 * p, 2), vr(t + 2 * p, 2), vr(G + 2 * p, 2)))
                    for j in range(4):
                        a("v_exp_f32 v%d, v%d" % (t + j, t + j))
                    for p in range(2):
                        a("v_pk_mul_f32 %s, %s, %s" % (vr(t + 4 + 2 * p, 2), vr(G + 2 * p, 2), vr(Uu + 2 * p, 2)))
                    for p in range(2):
                        a("v_pk_fma_f32 %s, %s, %s, %s op_sel_hi:[1,0,0]" % (vr(t + 2 * p, 2), vr(t + 2 * p, 2), vr(k + 4, 2), vr(k + 4, 2)))
                    for j in range(4):
                        a("v_rcp_f32 v%d, v%d" % (t + j, t + j))
                    for p in range(2):
                        a("v_pk_mul_f32 %s, %s, %s" % (vr(t + 4 + 2 * p, 2), vr(t + 4 + 2 * p, 2), vr(t + 2 * p, 2)))
                    for p in range(2):
                        a("v_cvt_pk_bf16_f32 v%d, v%d, v%d" % (out + p, t + 4 + 2 * p, t + 5 + 2 * p))
                a("buffer_store_dwordx4 %s, v%d, s[%d:%d], s61 offen offset:%d %s" % (vr(full, 4), VA, SRD_WS, SRD_WS + 3, rb * 1024, stflag()))
            for d in range(2):
                a("v_permlane16_swap_b32 v%d, v%d" % (half + d, half + 2 + d))
            a("buffer_store_dwordx4 %s, v10, s[%d:%d], s63 offen offset:%d %s" % (vr(half, 4), SRD_WS, SRD_WS + 3, rp * 2048, stflag()))
        fin_compute(a)
    body(0)
    a.label("K1_FE1"); a.flush()
    body(1)

def epi_q(a, acc, RS):
    K = T0
    for rb in range(4):
        a("v_mov_b32 v%d, v%d" % (K + 4 * rb, RS + rb))
        a("v_mul_f32 v%d, %s, v%d" % (K + 4 * rb + 2, f32bits(LOG2E), RS + rb))
    VA = 9
    a("v_lshlrev_b32 v%d, 4, v14" % VA)
    a("v_bfe_u32 v10, v0, 4, 1")
    a("v_lshl_add_u32 v%d, v10, 9, v%d" % (VA, VA))
    a("v_lshrrev_b32 v10, 5, v0")
    a("v_lshl_add_u32 v%d, v10, 8, v%d" % (VA, VA))
    a("s_lshl_b32 s61, s%d, 2" % S_MT)
    a("s_add_u32 s61, s61, s60")
    a("s_mul_i32 s61, s61, %d" % (40 * 2048))
    a("s_mul_i32 s62, s%d, %d" % (S_GRP, 10 * 2048))
    a("s_add_u32 s61, s61, s62")
    a("s_mul_i32 s62, s67, %d" % (5 * 2048))
    a("s_add_u32 s61, s61, s62")
    a("s_add_u32 s61, s61, %d" % WS_PQ)
    a("s_mov_b32 s64, %s" % f32bits(1e-6))
    a("s_mov_b32 s65, %s" % f32bits(1e-6))
    T = T0 + 16
    n = 0
    for t in range(5):
        a("s_add_u32 s62, s61, %d" % (t * 2048))
        for rb in range(4):
            D = acc(t, rb); k = K + 4 * rb
            out = T0 + 32 + 2 * (n & 7); n += 1
            for p in range(2):
                a("v_pk_mul_f32 %s, %s, %s op_sel_hi:[1,0]" % (vr(T + 2 * p, 2), vr(D + 2 * p, 2), vr(k + 2, 2)))
            for p in range(2):
                a("v_pk_fma_f32 %s, %s, %s, s[64:65] op_sel_hi:[1,0,1]" % (vr(T + 4 + 2 * p, 2), vr(D + 2 * p, 2), vr(k, 2)))
            for j in range(4):
                a("v_exp_f32 v%d, v%d clamp" % (T + j, T + j))
            for j in range(4):
                a("v_max_f32 v%d, s64, v%d" % (T + 4 + j, T + 4 + j))
            for p in range(2):
                a("v_pk_add_f32 %s, %s, %s" % (vr(T + 2 * p, 2), vr(T + 2 * p, 2), vr(T + 4 + 2 * p, 2)))
            for p in range(2):
                a("v_cvt_pk_bf16_f32 v%d, v%d, v%d" % (out + p, T + 2 * p, T + 2 * p + 1))
            if rb & 1:
                for d in range(2):
                    a("v_permlane32_swap_b32 v%d, v%d" % (out - 2 + d, out + d))
                a("buffer_store_dwordx4 %s, v%d, s[%d:%d], s62 offen offset:%d %s" % (vr(out - 2, 4), VA, SRD_WS, SRD_WS + 3, (rb >> 1) * 1024, stflag()))
    fin_compute(a)

FRL = 0
def epi_kv(a, acc):
    RR = T0 + 40
    a("v_lshl_add_u32 v9, v15, 4, s61")
    for rb in range(4):
        a("ds_read_b128 %s, v9 offset:%d" % (vr(RR + 4 * rb, 4), 1024 + rb * 64))
    VA = 9
    a("s_lshl_b32 s61, s60, 11")
    a("s_mul_i32 s62, s67, %d" % (3 * 8192))
    a("s_add_u32 s61, s61, s62")
    a("v_lshl_add_u32 v10, v0, 4, s61")
    a("s_lshl_b32 s62, s67, 14")
    a("v_add_u32 v11, s62, v10")
    a("s_mov_b32 s64, %s" % f32bits(1e-6))
    a("s_mov_b32 s65, %s" % f32bits(1e-6))
    a("s_mov_b32 s62, %s" % f32bits(LOG2E))
    a("s_mov_b32 s63, %s" % f32bits(LOG2E))
    a("s_cmp_eq_u32 s67, 0")
    a("s_cselect_b64 s[68:69], -1, 0")
    a("s_waitcnt lgkmcnt(0)")
    T = T0 + 16
    po = [0, 1, 2, 5, 6]
    n = 0
    def tile(t, isv):
        nonlocal n
        for R in range(2):
            out = T0 + 4 * (n & 3); n += 1
            for h in range(2):
                rb = 2 * R + h
                D = acc(t, rb); rr = RR + 4 * rb
                if isv:
                    for p in range(2):
                        a("v_pk_mul_f32 %s, %s, %s" % (vr(T + 2 * p, 2), vr(D + 2 * p, 2), vr(rr + 2 * p, 2)))
                else:
                    for p in range(2):
                        a("v_pk_mul_f32 %s, %s, %s" % (vr(T + 8 + 2 * p, 2), vr(D + 2 * p, 2), vr(rr + 2 * p, 2)))
                    for p in range(2):
                        a("v_pk_mul_f32 %s, %s, s[62:63]" % (vr(T + 2 * p, 2), vr(T + 8 + 2 * p, 2)))
                    for p in range(2):
                        a("v_pk_add_f32 %s, %s, s[64:65]" % (vr(T + 4 + 2 * p, 2), vr(T + 8 + 2 * p, 2)))
                    for j in range(4):
                        a("v_exp_f32 v%d, v%d clamp" % (T + j, T + j))
                    for j in range(4):
                        a("v_max_f32 v%d, s64, v%d" % (T + 4 + j, T + 4 + j))
                    for p in range(2):
                        a("v_pk_add_f32 %s, %s, %s" % (vr(T + 2 * p, 2), vr(T + 2 * p, 2), vr(T + 4 + 2 * p, 2)))
                for p in range(2):
                    a("v_cvt_pk_bf16_f32 v%d, v%d, v%d" % (out + 2 * h + p, T + 2 * p, T + 2 * p + 1))
            a("ds_write_b128 v%d, %s offset:%d" % (11 if t == 2 else 10, vr(out, 4), FRL + po[t] * 8192 + R * 1024))
    tile(3, True); tile(4, True); tile(0, False); tile(1, False)
    a("s_cmp_lg_u32 s67, 0")
    a("s_cbranch_scc1 K1_KV_T2V")
    tile(2, False)
    a("s_branch K1_KV_T2E")
    a.label("K1_KV_T2V"); a.flush()
    tile(2, True)
    a.label("K1_KV_T2E"); a.flush()
    a("s_waitcnt lgkmcnt(0)")
    a("s_barrier")
    gen_kvjob(a)

def gen_kvjob(a):
    w = S_WAVE
    a("v_lshlrev_b32 v2, 4, v0")
    a("s_sub_u32 s61, s%d, 5" % w)
    a("s_add_u32 s62, s61, 1")
    a("s_cmp_lt_u32 s%d, 5" % w)
    a("s_cselect_b32 s63, s%d, s61" % w)
    a("s_cselect_b32 s64, s%d, s62" % w)
    a("s_cselect_b32 s65, s%d, s62" % w)
    a("s_cselect_b32 s66, s%d, s61" % w)
    a("s_cselect_b32 s70, 1, 0")
    a("s_add_u32 s71, s%d, 3" % w)
    a("s_sub_u32 s72, 4, s%d" % w)
    a("s_lshl_b32 s74, s%d, 6" % S_MT)
    a("s_lshl_b32 s75, s%d, 3" % S_GRP)
    a("s_add_u32 s74, s74, s75")
    a("s_lshl_b32 s74, s74, 11")
    a("s_add_u32 s74, s74, %d" % WS_KVP)
    a("v_mov_b32 v13, %d" % OOB)
    A0, B0, D = 16, 48, 80
    def job(sa, sb, zflag, tag):
        a("s_lshl_b32 s76, s%d, 13" % sa)
        a("v_add_u32 v3, s76, v2")
        a("s_lshl_b32 s77, s%d, 13" % sb)
        a("s_add_u32 s77, s77, %d" % (5 * 8192))
        a("v_add_u32 v4, s77, v2")
        for k in range(8):
            a("ds_read_b128 %s, v3 offset:%d" % (vr(A0 + 4 * k, 4), FRL + k * 1024))
        for k in range(8):
            a("ds_read_b128 %s, v4 offset:%d" % (vr(B0 + 4 * k, 4), FRL + k * 1024))
        a("s_lshl_b32 s77, s%d, 4" % sb)
        a("v_add_u32 v6, s77, v14")
        divmod_const(a, 7, 8, 6, 20, 128)
        a("v_cmp_le_u32 vcc, 10, v8")
        a("v_cndmask_b32 v9, 0, 1, vcc")
        a("v_mul_u32_u24 v10, 10, v9")
        a("v_sub_u32 v10, v8, v10")
        a("v_lshrrev_b32 v11, 2, v10")
        a("v_lshlrev_b32 v11, 3, v11")
        a("v_lshl_add_u32 v11, v9, 2, v11")
        a("v_and_b32 v12, 3, v10")
        a("v_add_u32 v11, v11, v12")
        if zflag:
            lab = "K1_KVJ_NZ" + tag
            a("s_cmp_eq_u32 s%d, 0" % zflag)
            a("s_cbranch_scc1 %s" % lab)
            a("s_waitcnt lgkmcnt(0)")
            for r in range(32):
                a("v_mov_b32 v%d, 0x3f803f80" % (B0 + r))
            a("v_lshrrev_b32 v7, 1, v14")
            a("v_and_b32 v11, 1, v14")
            a("v_lshlrev_b32 v11, 2, v11")
            a("v_add_u32 v11, 18, v11")
            a("v_cmp_gt_u32 vcc, 8, v14")
            a("v_cndmask_b32 v7, 64, v7, vcc")
            a.label(lab)
        a("v_sub_u32 v12, s%d, v7" % sa)
        a("v_cmp_gt_u32 vcc, 2, v12")
        a("v_lshl_add_u32 v12, v7, 1, v12")
        a("v_lshl_add_u32 v11, v12, 6, v11")
        a("v_and_b32 v12, 1, v15")
        a("v_lshl_add_u32 v11, v12, 5, v11")
        a("v_lshlrev_b32 v11, 5, v11")
        a("v_lshrrev_b32 v12, 1, v15")
        a("v_lshl_add_u32 v11, v12, 4, v11")
        a("v_cndmask_b32 v11, v13, v11, vcc")
        a("s_waitcnt lgkmcnt(0)")
        for k in range(8):
            a("v_mfma_f32_16x16x32_bf16 %s, %s, %s, %s" % (vr(D, 4), vr(A0 + 4 * k, 4), vr(B0 + 4 * k, 4), vr(D, 4) if k else "0"))
        a("buffer_store_dwordx4 %s, v11, s[%d:%d], s74 offen %s" % (vr(D, 4), SRD_WS, SRD_WS + 3, stflag()))
        a.nops(2)
    job(63, 64, 0, "0")
    job(65, 66, 70, "1")
    a("s_cmp_ge_u32 s%d, 2" % w)
    a("s_cbranch_scc1 K1_KVJ_DONE")
    job(71, 72, 0, "2")
    a.label("K1_KVJ_DONE")
    fin_compute(a)

def gen_packer(a):
    pst = CFG.get("pk_st", "sc1")
    a("s_sub_u32 s60, s29, 4")
    a("s_lshl_b32 s60, s60, 2")
    a("s_add_u32 s60, s60, s52")
    a("s_mul_i32 s60, s60, 12")
    a("s_add_u32 s60, s60, s%d" % S_WAVE)
    a("s_cmp_lg_u32 s60, 0")
    a("s_cbranch_scc1 K1_PK_NOTAG")
    srd(a, SRD_DBG, S_DBG, 256)
    a("s_memrealtime s[72:73]")
    a("s_waitcnt lgkmcnt(0)")
    a("s_or_b32 s72, s72, 1")
    a("v_mov_b32 v2, s72")
    a("s_mov_b64 exec, 1")
    a("buffer_store_dword v2, off, s[%d:%d], 0 sc0 sc1" % (SRD_DBG, SRD_DBG + 3))
    a("s_mov_b64 exec, -1")
    a.label("K1_PK_NOTAG")
    srd(a, SRD_W0, S_WD, 1728 * 1280)
    srd(a, SRD_W1, S_WO, 640 * 1280)
    a("s_mul_i32 s61, s%d, 10240" % S_WAVE)
    for i in range(10):
        a("v_add_u32 v2, %d, v0" % (64 * i))
        divmod_const(a, 20 + i, 3, 2, 20, 640)
        a("v_lshlrev_b32 v%d, 4, v3" % (30 + i))
    a("v_lshrrev_b32 v2, 4, v0")
    a("v_bfe_u32 v3, v0, 2, 2")
    a("v_lshl_add_u32 v2, v2, 3, v3")
    a("v_mul_u32_u24 v2, 320, v2")
    a("v_and_b32 v3, 3, v0")
    a("v_lshl_add_u32 v2, v3, 3, v2")
    a("v_add_u32 v10, s61, v2")
    a("v_lshlrev_b32 v11, 4, v0")
    a("s_cmp_ge_u32 s60, 64")
    a("s_cbranch_scc1 K1_PK_NOPOI")
    for r in range(4):
        a("v_mov_b32 v%d, -1" % (12 + r))
    a("s_lshl_b32 s62, s60, 10")
    a("s_add_u32 s62, s62, %d" % WS_KVF)
    a("buffer_store_dwordx4 v[12:15], v11, s[%d:%d], s62 offen sc0 sc1" % (SRD_WS, SRD_WS + 3))
    a.label("K1_PK_NOPOI")
    a("s_mov_b32 s70, 0")
    a.label("K1_PK_LOOP")
    a("s_lshr_b32 s62, s60, 2")
    a("s_and_b32 s63, s60, 3")
    a("s_mul_i32 s64, s63, 320")
    a("s_cmp_ge_u32 s62, 54")
    a("s_cbranch_scc1 K1_PK_O")
    a("s_mul_i32 s65, s62, %d" % (32 * 1280))
    a("s_add_u32 s64, s64, s65")
    a("s_mul_i32 s65, s62, 86")
    a("s_lshr_b32 s65, s65, 8")
    a("s_mul_i32 s65, s65, 3")
    a("s_sub_u32 s65, s62, s65")
    a("s_cmp_eq_u32 s65, 1")
    a("s_cselect_b64 s[68:69], -1, 0")
    for i in range(10):
        r = 20 + i
        a("v_and_b32 v2, 3, v%d" % r)
        a("v_lshrrev_b32 v3, 3, v%d" % r)
        a("v_lshl_add_u32 v2, v3, 2, v2")
        a("v_bfe_u32 v3, v%d, 2, 1" % r)
        a("v_lshl_add_u32 v2, v3, 4, v2")
        a("v_cndmask_b32 v2, v2, v%d, s[68:69]" % r)
        a("v_mul_u32_u24 v2, 1280, v2")
        a("v_add_u32 v2, v2, v%d" % (30 + i))
        a("s_add_u32 m0, s61, %d" % (i * 1024))
        a("buffer_load_dwordx4 v2, s[%d:%d], s64 offen lds" % (SRD_W0, SRD_W0 + 3))
    a("s_branch K1_PK_GO")
    a.label("K1_PK_O"); a.flush()
    a("s_sub_u32 s65, s62, 54")
    a("s_mul_i32 s66, s65, 52")
    a("s_lshr_b32 s66, s66, 8")
    a("s_mul_i32 s67, s66, 5")
    a("s_sub_u32 s67, s65, s67")
    a("s_lshl_b32 s67, s67, 4")
    a("s_mul_i32 s66, s66, %d" % (160 * 1280))
    a("s_add_u32 s64, s64, s66")
    for i in range(10):
        r = 20 + i
        a("v_and_b32 v2, 15, v%d" % r)
        a("v_add_u32 v2, s67, v2")
        divmod_const(a, 3, 4, 2, 10, 80)
        a("v_mul_u32_u24 v3, 20, v3")
        a("v_add_u32 v3, v3, v4")
        a("v_lshrrev_b32 v4, 4, v%d" % r)
        a("v_mul_u32_u24 v4, 10, v4")
        a("v_add_u32 v3, v3, v4")
        a("v_mul_u32_u24 v2, 1280, v3")
        a("v_add_u32 v2, v2, v%d" % (30 + i))
        a("s_add_u32 m0, s61, %d" % (i * 1024))
        a("buffer_load_dwordx4 v2, s[%d:%d], s64 offen lds" % (SRD_W1, SRD_W1 + 3))
    a.label("K1_PK_GO"); a.flush()
    m4 = CFG.get("merged") == 4
    def gettag(t):
        a("s_mov_b32 s73, 0")
        a.label("K1_PK_TAG" + t)
        a("buffer_load_dword v13, off, s[%d:%d], 0 sc1" % (SRD_DBG, SRD_DBG + 3))
        a("s_waitcnt vmcnt(0)")
        a("v_readfirstlane_b32 s78, v13")
        a("s_add_u32 s73, s73, 1")
        a("s_cmp_gt_u32 s73, 200000")
        a("s_cbranch_scc1 K1_PK_TAGOK" + t)
        a("s_cmp_eq_u32 s78, 0")
        a("s_cbranch_scc1 K1_PK_TAG" + t)
        a.label("K1_PK_TAGOK" + t)
    def pkflag(base):
        a("s_sub_u32 s72, s29, 4")
        a("s_lshl_b32 s72, s72, 2")
        a("s_add_u32 s72, s72, s52")
        a("s_lshl_b32 s72, s72, 7")
        a("s_add_u32 s72, s72, %d" % base)
        a("s_mov_b64 exec, 1")
        a("buffer_store_dword v13, off, s[%d:%d], s72 sc0 sc1" % (SRD_WS, SRD_WS + 3))
        a("s_mov_b64 exec, -1")
    def stores(base, sreg):
        for c in range(10):
            off = (c // 5) * 74 * 5120 + (c % 5) * 1024
            a("s_add_u32 s66, s%d, %d" % (sreg, off))
            a("buffer_store_dwordx4 %s, v11, s[%d:%d], s66 offen %s" % (vr(base + 4 * c, 4), SRD_WS, SRD_WS + 3, pst))
    def trreads(base):
        for c in range(10):
            a("ds_read_b64_tr_b16 %s, v10 offset:%d" % (vr(base + 4 * c, 2), c * 32))
            a("ds_read_b64_tr_b16 %s, v10 offset:%d" % (vr(base + 2 + 4 * c, 2), c * 32 + 4 * 320))
    a("s_lshl_b32 s65, s63, 1")
    a("s_mul_i32 s65, s65, 74")
    a("s_add_u32 s65, s65, s62")
    a("s_mul_i32 s65, s65, 5120")
    a("s_add_u32 s65, s65, %d" % WS_W2P)
    a("s_cmp_eq_u32 s70, 1")
    a("s_cbranch_scc1 K1_PK_SECOND")
    a("s_waitcnt vmcnt(0)")
    trreads(40)
    a("s_mov_b32 s71, s65")
    a("s_mov_b32 s70, 1")
    a("s_add_u32 s60, s60, 192")
    a("s_waitcnt lgkmcnt(0)")
    a("s_cmp_lt_u32 s60, 296")
    a("s_cbranch_scc1 K1_PK_LOOP")
    stores(40, 71)
    if m4: a("s_mov_b32 s70, 2")
    else: a("s_branch K1_PK_FIN")
    if m4: a("s_branch K1_PK_A")
    a.label("K1_PK_SECOND"); a.flush()
    stores(40, 71)
    if m4:
        a.label("K1_PK_A"); a.flush()
        srd(a, SRD_DBG, S_DBG, 256)
        a("s_waitcnt vmcnt(0)")
        a("s_barrier")
        a("s_cmp_lg_u32 s%d, 11" % S_WAVE)
        a("s_cbranch_scc1 K1_PK_NOA")
        gettag("A")
        pkflag(WS_PKA)
        a.label("K1_PK_NOA")
        a("s_cmp_eq_u32 s70, 2")
        a("s_cbranch_scc1 K1_PK_FIN")
    else:
        a("s_waitcnt vmcnt(10)")
    trreads(80)
    a("s_waitcnt lgkmcnt(0)")
    stores(80, 65)
    a.label("K1_PK_FIN"); a.flush()
    if CFG.get("pk_wb"):
        a("s_waitcnt vmcnt(0)")
        a("buffer_wbl2 sc1")
    if CFG.get("merged"):
        import p2
        srd(a, SRD_DBG, S_DBG, 256)
        a("s_waitcnt vmcnt(0)")
        a("s_barrier")
        a("s_cmp_lt_u32 s%d, 8" % S_WAVE)
        a("s_cbranch_scc1 %s" % ("K1_PK_W" if CFG.get("merged", 0) >= 2 else "K1_END"))
        a("s_mov_b32 s73, 0")
        a.label("K1_PK_TAG")
        a("buffer_load_dword v13, off, s[%d:%d], 0 sc1" % (SRD_DBG, SRD_DBG + 3))
        a("s_waitcnt vmcnt(0)")
        a("v_readfirstlane_b32 s78, v13")
        a("s_add_u32 s73, s73, 1")
        a("s_cmp_gt_u32 s73, 200000")
        a("s_cbranch_scc1 K1_PK_TAGOK")
        a("s_cmp_eq_u32 s78, 0")
        a("s_cbranch_scc1 K1_PK_TAG")
        a.label("K1_PK_TAGOK")
        a("s_sub_u32 s60, s%d, 8" % S_WAVE)
        a("s_cmp_lg_u32 s60, 0")
        a("s_cbranch_scc1 K1_PK_NOFLAG")
        a("s_sub_u32 s72, s29, 4")
        a("s_lshl_b32 s72, s72, 2")
        a("s_add_u32 s72, s72, s52")
        a("s_lshl_b32 s72, s72, 7")
        a("s_add_u32 s72, s72, %d" % WS_PKF)
        a("s_mov_b64 exec, 1")
        a("buffer_store_dword v13, off, s[%d:%d], s72 sc0 sc1" % (SRD_WS, SRD_WS + 3))
        a("s_mov_b64 exec, -1")
        a.label("K1_PK_NOFLAG")
        if m4:
            import p5
            w2base(a)
            a("s_mov_b32 s73, %d" % WS_PKA)
            p2.poll(a, "PK4", 16, 73, 7)
            for p in range(7, 14): p5.l_load(a, p, sbase=28, vb=5)
            a("s_mov_b32 s%d, 0" % S_GRP)
            a("s_branch P5_LSET")
            a.label("K1_PK_W"); a.flush()
            a("s_barrier")
            a("v_mov_b32 v12, %d" % (ST_FLAG + 4))
            a("ds_read_b32 v13, v12")
            a("s_waitcnt lgkmcnt(0)")
            a("s_cmp_ge_u32 s%d, 4" % S_WAVE)
            a("s_cbranch_scc1 P3_WORK")
            a("s_sub_u32 s82, s29, 4")
            a("s_lshl_b32 s82, s82, 2")
            a("s_add_u32 s82, s82, s52")
            a("s_lshl_b32 s82, s82, 2")
            a("s_add_u32 s82, s82, s%d" % S_WAVE)
            a("v_lshlrev_b32 v%d, 4, v0" % p2.V_B)
            p2.gen_reducer(a, F=82)
            a("s_branch P3_WORK")
            return
        if CFG.get("merged", 0) >= 2:
            import p3
            p3.setup(a, CFG)
            a("v_mov_b32 v12, %d" % (ST_FLAG + 4))
            a("ds_write_b32 v12, v13")
            a("s_waitcnt lgkmcnt(0)")
            a("s_barrier")
            a("s_mov_b32 s73, %d" % WS_PKF)
            p2.poll(a, "PK3", 16, 73, 7)
            if CFG.get("merged") == 2: p3.l_preload_regs(a)
            a("s_branch P3_LENTRY")
            a.label("K1_PK_W"); a.flush()
            a("s_barrier")
            a("v_mov_b32 v12, %d" % (ST_FLAG + 4))
            a("ds_read_b32 v13, v12")
            a("s_waitcnt lgkmcnt(0)")
            a("s_branch P3_WORK")
            return
        p2.setup(a, CFG)
        a("s_mov_b32 s79, 1")
        a("s_branch P2_ENTRY")
        return
    stamp_flush(a, 0, S_WAVE, 1)
    a("s_endpgm")
```

```python
from asmlib import *
import math, struct

WS_H = 0
WS_PQ = WS_H + 32 * 54 * 4096
WS_W2P = WS_PQ + 32 * 40 * 2048
WS_KVP = WS_W2P + 8 * 74 * 5120
WS_KVF = WS_KVP + 8 * 64 * 2048
WS_RST = WS_KVF + 65536
WS_CSP = WS_RST + 2048 * 8
CSP_STRIDE = 5376 * 8
WS_FLG = WS_CSP + 8 * CSP_STRIDE
WS_PKF = WS_FLG + 8 * 32 * 128
WS_PKA = WS_PKF + 16 * 128
WS_END = WS_PKA + 16 * 128
OOB = 0x40000000

XSLOT = 32768
XRING = 3
WSLOT = 12288
WRING = 5
WBASE = XSLOT * XRING
UPOFF = 6144
ST_BASE = WBASE + WRING * WSLOT
ST_MEAN = ST_BASE
ST_RSTD = ST_BASE + 1024
ST_COL = ST_BASE + 2048
ST_FLAG = ST_COL + 768
K1_LDS = 163840

LOG2E = 1.4426950408889634
def f32bits(x):
    return "0x%08x" % struct.unpack("<I", struct.pack("<f", x))[0]

S_X, S_WQKV, S_WO, S_WG, S_WU, S_WD, S_OUT, S_DBG, S_WS = 4, 6, 8, 12, 14, 16, 18, 20, 22
S_WAVE, S_MT, S_GRP, S_LIN = 24, 25, 26, 27
S_XCD, S_IDX, S_I3, S_GI, S_NQ = 29, 30, 52, 53, 54
SRD_X, SRD_W0, SRD_W1, SRD_W2, SRD_WS = 32, 36, 40, 44, 48
SRD_DBG = 56
SRD_ST = 8

STAMP = False
CFG = {}
WS_ST = 16 << 20

def stflag():
    return CFG.get("k1_st", "sc1")

def srd(a, base, ptr, nbytes):
    a("s_mov_b32 s%d, s%d" % (base, ptr))
    a("s_and_b32 s%d, s%d, 0xffff" % (base + 1, ptr + 1))
    a("s_mov_b32 s%d, %d" % (base + 2, nbytes))
    a("s_mov_b32 s%d, 0x20000" % (base + 3))

def divmod_const(a, q, r, x, d, maxx):
    sh = 16
    m = (1 << sh) // d + 1
    assert all((v * m) >> sh == v // d for v in range(maxx)), (d, maxx)
    assert m * maxx < (1 << 32) and m < (1 << 24)
    a("v_mul_u32_u24 v%d, %d, v%d" % (q, m, x))
    a("v_lshrrev_b32 v%d, %d, v%d" % (q, sh, q))
    a("v_mul_u32_u24 v%d, %d, v%d" % (r, d, q))
    a("v_sub_u32 v%d, v%d, v%d" % (r, x, r))

def stamp(a, idx):
    if STAMP:
        a("s_memrealtime s[%d:%d]" % (84 + 2 * idx, 85 + 2 * idx))
def stamp_flush(a, kernel_no, wave_sgpr, n):
    if not STAMP:
        return
    a("s_memrealtime s[100:101]")
    a("s_waitcnt lgkmcnt(0) vmcnt(0)")
    a("s_memrealtime s[%d:%d]" % (84 + 2 * n, 85 + 2 * n))
    a("s_mov_b32 s50, 0x7fffffff")
    a("s_lshl_b32 s82, s2, 4")
    a("s_add_u32 s82, s82, s%d" % wave_sgpr)
    a("s_lshl_b32 s82, s82, 6")
    a("s_add_u32 s82, s82, %d" % (WS_ST + kernel_no * (1 << 20)))
    a("s_waitcnt lgkmcnt(0)")
    a("s_mov_b64 exec, 1")
    for i in range(n + 1):
        a("v_mov_b32 v2, s%d" % (84 + 2 * i))
        a("v_mov_b32 v3, s%d" % (85 + 2 * i))
        a("buffer_store_dwordx2 v[2:3], off, s[48:51], s82 offset:%d" % (8 * i))
        a("s_nop 1")
    if n == 4:
        a("s_sub_u32 s96, s98, s96")
        a("v_mov_b32 v2, s96")
        a("v_mov_b32 v3, 0")
        a("buffer_store_dwordx2 v[2:3], off, s[48:51], s82 offset:56")
        a("s_nop 1")
        a("v_mov_b32 v2, s100")
        a("v_mov_b32 v3, s101")
        a("buffer_store_dwordx2 v[2:3], off, s[48:51], s82 offset:40")

def tl(a):
    if STAMP and CFG.get("tl"):
        a("s_memrealtime s[90:91]")
        a("s_waitcnt lgkmcnt(0)")
        a("s_mov_b32 m0, s94")
        a("s_nop 0")
        a("v_writelane_b32 v167, s90, m0")
        a("s_add_u32 s94, s94, 1")

def red8(a, r):
    a("v_add_f32_dpp v%d, v%d, v%d quad_perm:[1,0,3,2] row_mask:0xf bank_mask:0xf" % (r, r, r))
    a("v_add_f32_dpp v%d, v%d, v%d quad_perm:[2,3,0,1] row_mask:0xf bank_mask:0xf" % (r, r, r))
    a("v_add_f32_dpp v%d, v%d, v%d row_half_mirror row_mask:0xf bank_mask:0xf" % (r, r, r))

def rbf(a, r):
    a("v_cvt_pk_bf16_f32 v%d, v%d, v%d" % (r, r, r))
    a("v_and_b32 v%d, 0xffff0000, v%d" % (r, r))

def gen_k1(a, name):
    global KNAME
    KNAME = name
    a.raw(".globl %s\n.p2align 8\n.type %s,@function\n%s:" % (name, name, name))
    a.flush()
    a("s_cmp_ge_u32 s2, 256")
    a("s_cbranch_scc1 K1_END")
    if CFG.get("stamp_first"): a("s_memrealtime s[84:85]")
    a("s_load_dwordx16 s[4:19], s[0:1], 0")
    a("s_load_dwordx4 s[20:23], s[0:1], 64")
    a("v_lshrrev_b32 v1, 6, v0")
    a("v_and_b32 v0, 63, v0")
    a("v_readfirstlane_b32 s%d, v1" % S_WAVE)
    a("s_and_b32 s29, s2, 7")
    a("s_lshr_b32 s30, s2, 3")
    a("s_and_b32 s31, s29, 1")
    a("s_lshl_b32 s31, s31, 2")
    a("s_and_b32 s52, s30, 3")
    a("s_add_u32 s%d, s31, s52" % S_MT)
    a("s_lshr_b32 s53, s30, 2")
    a("s_lshr_b32 s54, s29, 1")
    a("s_lshl_b32 s55, s54, 3")
    a("s_cmp_eq_u32 s54, 3")
    a("s_cselect_b32 s60, 1, 0")
    a("s_sub_u32 s55, s55, s60")
    a("s_add_u32 s%d, s55, s53" % S_LIN)
    a("s_mul_i32 s61, s54, 5")
    a("s_sub_u32 s61, s61, s60")
    a("s_add_u32 s%d, s61, s53" % S_GRP)
    a("s_cmp_ge_u32 s54, 2")
    a("s_cselect_b32 s61, 4, 5")
    a("s_add_u32 s62, s54, 18")
    a("s_cmp_eq_u32 s53, s61")
    a("s_cselect_b32 s%d, s62, s%d" % (S_GRP, S_GRP))
    a("s_lshl_b32 s62, s54, 1")
    a("s_add_u32 s62, s62, s53")
    a("s_sub_u32 s62, s62, s61")
    a("s_add_u32 s62, s62, 21")
    a("s_cmp_gt_u32 s53, s61")
    a("s_cselect_b32 s%d, s62, s%d" % (S_GRP, S_GRP))
    a("s_cmp_ge_u32 s54, 2")
    a("s_cselect_b32 s60, 7, 8")
    a("s_waitcnt lgkmcnt(0)")
    if not CFG.get("stamp_first"): stamp(a, 0)
    srd(a, SRD_X, S_X, 2048 * 1280)
    srd(a, SRD_WS, S_WS, WS_END)
    if CFG.get("dbgspan"):
        a("s_memrealtime s[84:85]")
        a("s_or_b32 s86, s2, s%d" % S_WAVE)
        a("s_cmp_lg_u32 s86, 0")
        a("s_cbranch_scc1 K1_NOSPAN")
        a("s_waitcnt lgkmcnt(0)")
        a("v_mov_b32 v2, s84")
        a("s_mov_b32 s50, 0x7fffffff")
        a("s_mov_b32 s86, %d" % WS_ST)
        a("buffer_store_dword v2, off, s[48:51], s86")
        a("s_mov_b32 s50, %d" % WS_END)
        a.label("K1_NOSPAN")
    a("s_cmp_ge_u32 s53, s60")
    a("s_cbranch_scc1 K1_PACK")
    a("s_cmp_lt_u32 s%d, 8" % S_WAVE)
    a("s_cbranch_scc1 K1_COMP")
    gen_loader(a)
    a.label("K1_COMP"); a.flush()
    if CFG.get("k1_pf", 0):
        gen_prefetch(a)
    if CFG.get("k1_pf2", 0):
        gen_prefetch2(a)
    if CFG.get("code_pf", 0):
        a("s_cmp_ge_u32 s%d, %d" % (S_IDX, CFG.get("code_pf")))
        a("s_cbranch_scc1 K1_CPF_DONE")
        a("s_getpc_b64 s[60:61]")
        a.label("K1_CPF_PC")
        a("s_sub_u32 s60, s60, K1_CPF_PC-%s" % KNAME)
        a("s_subb_u32 s61, s61, 0")
        a("s_lshl_b32 s62, s%d, 13" % S_WAVE)
        a("v_lshlrev_b32 v2, 7, v0")
        a("v_add_u32 v2, s62, v2")
        a("v_mov_b32 v3, K1_END-%s" % KNAME)
        a("v_min_u32 v2, v2, v3")
        a("global_load_dword v1, v2, s[60:61]")
        a.label("K1_CPF_DONE")
    a("s_and_b32 s60, s%d, 3" % S_WAVE)
    a("s_mov_b32 s83, s%d" % S_GRP)
    a("s_lshr_b32 s67, s%d, 2" % S_WAVE)
    a("s_cmp_ge_u32 s%d, 22" % S_GRP)
    a("s_cbranch_scc1 K1_KV")
    a("s_cmp_ge_u32 s%d, 18" % S_GRP)
    a("s_cbranch_scc1 K1_Q")
    gen_compute(a, "F")
    a.label("K1_Q"); a.flush()
    a("s_sub_u32 s%d, s%d, 18" % (S_GRP, S_GRP))
    gen_compute(a, "Q")
    a.label("K1_KV"); a.flush()
    a("s_sub_u32 s%d, s%d, 22" % (S_GRP, S_GRP))
    gen_compute(a, "K")
    a.label("K1_PACK"); a.flush()
    gen_packer(a)
    a.label("K1_END"); a.flush()
    a("s_endpgm")

def gen_prefetch2(a):
    a("s_mul_i32 s60, s%d, 30" % S_MT)
    a("s_add_u32 s60, s60, s%d" % S_LIN)
    a("s_lshl_b32 s60, s60, 3")
    a("s_add_u32 s60, s60, s%d" % S_WAVE)
    a("v_lshlrev_b32 v2, 7, v0")
    bufs = [(S_X, 320), (S_WQKV, 300), (S_WG, 270), (S_WU, 270)] + ([(S_WD, 270), (S_WO, 100)] if CFG.get("k1_pf2") > 1 else [])
    a("s_mov_b32 s%d, s%d" % (SRD_W0, S_X))
    a("s_mov_b32 s%d, s%d" % (SRD_W0 + 1, S_X + 1))
    a("s_mov_b32 s%d, %d" % (SRD_W0 + 2, 320 * 8192))
    a("s_mov_b32 s61, s60")
    tot = 0
    for i, (p, n) in enumerate(bufs):
        if i:
            a("s_sub_u32 s62, s60, %d" % tot)
            a("s_cmp_ge_u32 s60, %d" % tot)
            a("s_cselect_b32 s%d, s%d, s%d" % (SRD_W0, p, SRD_W0))
            a("s_cselect_b32 s%d, s%d, s%d" % (SRD_W0 + 1, p + 1, SRD_W0 + 1))
            a("s_cselect_b32 s%d, %d, s%d" % (SRD_W0 + 2, n * 8192, SRD_W0 + 2))
            a("s_cselect_b32 s61, s62, s61")
        tot += n
    a("s_and_b32 s%d, s%d, 0xffff" % (SRD_W0 + 1, SRD_W0 + 1))
    a("s_mov_b32 s%d, 0x20000" % (SRD_W0 + 3))
    a("s_lshl_b32 s61, s61, 13")
    a("buffer_load_dword v1, v2, s[%d:%d], s61 offen" % (SRD_W0, SRD_W0 + 3))

def gen_prefetch(a):
    nst = CFG.get("pf_n", 1)
    a("s_and_b32 s60, s%d, 3" % S_WAVE)
    a("s_cmp_ge_u32 s%d, 4" % S_WAVE)
    a("s_cbranch_scc1 K1_PF_CHK")
    a("s_cmp_ge_u32 s%d, 18" % S_GRP)
    a("s_cbranch_scc1 K1_PF_CHK")
    a("s_and_b32 s60, s%d, 1" % S_WAVE)
    a("s_lshl_b32 s60, s60, 1")
    a.label("K1_PF_CHK")
    a("s_cmp_ge_u32 s60, %d" % nst)
    a("s_cbranch_scc1 K1_PF_DONE")
    a("s_cmp_ge_u32 s%d, 4" % S_WAVE)
    a("s_cbranch_scc1 K1_PF_X")
    a("s_cmp_ge_u32 s%d, 18" % S_GRP)
    a("s_cbranch_scc1 K1_PF_QKV")
    a("s_cmp_ge_u32 s%d, 2" % S_WAVE)
    a("s_cselect_b32 s%d, s%d, s%d" % (SRD_W0, S_WU, S_WG))
    a("s_cselect_b32 s%d, s%d, s%d" % (SRD_W0 + 1, S_WU + 1, S_WG + 1))
    a("s_and_b32 s%d, s%d, 0xffff" % (SRD_W0 + 1, SRD_W0 + 1))
    a("s_mov_b32 s%d, %d" % (SRD_W0 + 2, 640 * 3456))
    a("s_mov_b32 s%d, 0x20000" % (SRD_W0 + 3))
    a("v_lshrrev_b32 v2, 5, v0")
    a("v_bfe_u32 v3, v0, 1, 4")
    a("v_lshl_add_u32 v2, v2, 6, v3")
    a("v_mul_u32_u24 v2, 3456, v2")
    a("v_and_b32 v3, 1, v0")
    a("v_lshl_add_u32 v2, v3, 7, v2")
    a("s_and_b32 s60, s%d, 1" % S_WAVE)
    a("s_lshl_b32 s60, s60, 7")
    a("s_lshl_b32 s61, s%d, 4" % S_I3)
    a("s_add_u32 s60, s60, s61")
    a("s_add_u32 s60, s60, 64")
    a("s_mul_i32 s60, s60, 3456")
    a("s_mul_i32 s61, s%d, 192" % S_GRP)
    a("s_add_u32 s60, s60, s61")
    a("buffer_load_dword v1, v2, s[%d:%d], s60 offen" % (SRD_W0, SRD_W0 + 3))
    a("s_branch K1_PF_DONE")
    a.label("K1_PF_QKV"); a.flush()
    srd(a, SRD_W0, S_WQKV, 640 * 3840)
    a("v_lshrrev_b32 v2, 2, v0")
    a("v_mul_u32_u24 v2, 3840, v2")
    a("v_and_b32 v3, 1, v0")
    a("v_bfe_u32 v4, v0, 1, 1")
    a("s_cmp_ge_u32 s%d, 22" % S_GRP)
    a("s_movk_i32 s61, 192")
    a("s_cselect_b32 s61, 1280, s61")
    a("s_movk_i32 s60, 124")
    a("s_cselect_b32 s60, 156, s60")
    a("v_mul_lo_u32 v3, v3, s60")
    a("v_mul_lo_u32 v4, v4, s61")
    a("v_add3_u32 v2, v2, v3, v4")
    a("s_sub_u32 s62, s%d, 18" % S_GRP)
    a("s_mul_i32 s62, s62, 320")
    a("s_sub_u32 s63, s%d, 22" % S_GRP)
    a("s_mul_i32 s63, s63, 160")
    a("s_add_u32 s63, s63, 1280")
    a("s_cmp_ge_u32 s%d, 22" % S_GRP)
    a("s_cselect_b32 s62, s63, s62")
    a("s_add_u32 s60, s%d, 1" % S_WAVE)
    a("s_lshl_b32 s60, s60, 6")
    a("s_lshl_b32 s61, s%d, 4" % S_I3)
    a("s_add_u32 s60, s60, s61")
    a("s_mul_i32 s60, s60, 3840")
    a("s_add_u32 s60, s60, s62")
    a("buffer_load_dword v1, v2, s[%d:%d], s60 offen" % (SRD_W0, SRD_W0 + 3))
    a("s_branch K1_PF_DONE")
    a.label("K1_PF_X"); a.flush()
    a("s_mul_i32 s60, s%d, 37" % S_GI)
    a("v_add_u32 v2, s60, v0")
    a("v_mul_u32_u24 v3, 1280, v2")
    a("v_mov_b32 v4, %d" % OOB)
    a("v_cmp_gt_u32 vcc, 256, v2")
    a("v_cndmask_b32 v3, v4, v3, vcc")
    a("v_cmp_gt_u32 vcc, 37, v0")
    a("v_cndmask_b32 v2, v4, v3, vcc")
    a("s_mul_i32 s60, s%d, %d" % (S_MT, 256 * 1280))
    a("s_sub_u32 s61, s%d, 3" % S_WAVE)
    a("s_lshl_b32 s61, s61, 7")
    a("s_add_u32 s60, s60, s61")
    a("buffer_load_dword v1, v2, s[%d:%d], s60 offen" % (SRD_X, SRD_X + 3))
    a.label("K1_PF_DONE"); a.flush()

def gen_loader(a):
    noload = CFG.get("no_load")
    a("s_sub_u32 s60, s%d, 8" % S_WAVE)
    if CFG.get("ld_prio", 3): a("s_setprio %d" % CFG.get("ld_prio", 3))
    if STAMP:
        a("s_mov_b32 s94, 0")
        a("v_mov_b32 v167, 0")
    a("v_lshrrev_b32 v4, 3, v0")
    a("v_mul_u32_u24 v12, 1280, v4")
    a("v_lshrrev_b32 v5, 4, v0")
    a("v_and_b32 v6, 7, v0")
    a("v_xor_b32 v7, v6, v5")
    a("v_lshl_add_u32 v2, v7, 4, v12")
    a("v_xor_b32 v7, 4, v7")
    a("v_lshl_add_u32 v3, v7, 4, v12")
    a("s_mov_b32 s74, %d" % WBASE)
    a("s_mul_i32 s76, s%d, %d" % (S_MT, 256 * 1280))
    a("s_mul_i32 s77, s60, %d" % (4 * 10240))
    a("s_add_u32 s76, s76, s77")
    a("s_lshl_b32 s75, s60, 12")
    a("s_add_u32 s77, s75, %d" % (XRING * XSLOT))
    def xhalf(hf):
        for i in range(4):
            a("s_add_u32 m0, s75, %d" % (i * 1024 + hf * 16384))
            a("s_add_u32 s81, s76, %d" % (i * 10240 + hf * 16 * 10240))
            if not noload: a("buffer_load_dwordx4 v%d, s[%d:%d], s81 offen lds" % (2 + (i & 1), SRD_X, SRD_X + 3))
        if hf:
            a("s_add_u32 s75, s75, %d" % XSLOT)
            a("s_sub_u32 s79, s75, %d" % (XRING * XSLOT))
            a("s_cmp_ge_u32 s75, s77")
            a("s_cselect_b32 s75, s79, s75")
            a("s_add_u32 s76, s76, 128")
    def wsub():
        for i, (srdw, dst) in enumerate(((SRD_W0, 64), (SRD_W1, 65), (SRD_W2, 66))):
            a("s_add_u32 m0, s74, s%d" % dst)
            if i == 0: a("s_add_u32 s74, s74, %d" % WSLOT) if False else None
            if not noload: a("buffer_load_dwordx4 v%d, s[%d:%d], s69 offen lds" % (8 + i, srdw, srdw + 3))
        a("s_add_u32 s74, s74, %d" % WSLOT)
        a("s_cmp_ge_u32 s74, %d" % (WBASE + WRING * WSLOT))
        a("s_cselect_b32 s74, %d, s74" % WBASE)
        a("s_add_u32 s69, s69, s68")
    xhalf(0); xhalf(1)
    a("s_lshl_b32 s67, s60, 6")
    a("v_add_u32 v17, s67, v0")
    a("s_cmp_ge_u32 s%d, 18" % S_GRP)
    a("s_cbranch_scc1 K1_LD_QKV")
    srd(a, SRD_W0, S_WG, 640 * 3456)
    srd(a, SRD_W2, S_WU, 640 * 3456)
    a("s_cmp_ge_u32 s60, 2")
    a("s_cselect_b32 s%d, s%d, s%d" % (SRD_W1, S_WU, S_WG))
    a("s_cselect_b32 s%d, s%d, s%d" % (SRD_W1 + 1, SRD_W2 + 1, SRD_W0 + 1))
    a("s_mov_b32 s%d, %d" % (SRD_W1 + 2, 640 * 3456))
    a("s_mov_b32 s%d, 0x20000" % (SRD_W1 + 3))
    a("s_add_u32 s70, s60, 4")
    a("s_sub_u32 s62, s60, 2")
    a("s_cmp_ge_u32 s60, 2")
    a("s_cselect_b32 s70, s62, s70")
    a("s_add_u32 s62, s60, 2")
    for i, sl in enumerate((60, 70, 62)):
        a("s_lshl_b32 s67, s%d, 6" % sl)
        a("v_add_u32 v11, s67, v0")
        divmod_const(a, 12, 13, 11, 12, 384)
        a("v_bfe_u32 v14, v12, 3, 1")
        a("v_lshlrev_b32 v14, 1, v14")
        a("v_xor_b32 v13, v13, v14")
        a("v_mul_u32_u24 v12, 3456, v12")
        a("v_lshl_add_u32 v%d, v13, 4, v12" % (8 + i))
    a("s_mov_b32 s68, %d" % (32 * 3456))
    a("s_mul_i32 s69, s%d, 192" % S_GRP)
    a("v_lshrrev_b32 v11, 5, v17")
    a("v_and_b32 v12, 15, v17")
    a("v_lshl_add_u32 v11, v11, 4, v12")
    a("v_bfe_u32 v12, v17, 4, 1")
    a("v_mul_u32_u24 v12, 1728, v12")
    a("s_mul_i32 s67, s%d, 96" % S_GRP)
    a("s_add_u32 s67, s67, 1920")
    a("v_add3_u32 v16, v11, v12, s67")
    a("s_branch K1_LD_GO")
    a.label("K1_LD_QKV"); a.flush()
    srd(a, SRD_W0, S_WQKV, 640 * 3840)
    srd(a, SRD_W1, S_WQKV, 640 * 3840)
    srd(a, SRD_W2, S_WQKV, 640 * 3840)
    a("s_cmp_ge_u32 s%d, 22" % S_GRP)
    a("s_cselect_b32 s70, %d, 0" % (1280 - 160))
    for i in range(3):
        a("s_lshl_b32 s67, s60, 6")
        a("s_add_u32 s67, s67, %d" % (256 * i))
        a("v_add_u32 v11, s67, v0")
        if i == 2:
            a("v_subrev_u32 v14, 128, v11")
            a("v_cmp_le_u32 vcc, 640, v11")
            a("v_cndmask_b32 v11, v11, v14, vcc")
        divmod_const(a, 12, 13, 11, 20, 640)
        a("v_bfe_u32 v14, v12, 3, 1")
        a("v_lshlrev_b32 v14, 1, v14")
        a("v_xor_b32 v13, v13, v14")
        a("v_mul_u32_u24 v12, 3840, v12")
        a("v_lshl_add_u32 v%d, v13, 4, v12" % (8 + i))
        a("v_mov_b32 v14, s70")
        a("v_cmp_le_u32 vcc, 10, v13")
        a("v_cndmask_b32 v14, 0, v14, vcc")
        a("v_add_u32 v%d, v%d, v14" % (8 + i, 8 + i))
    a("s_mov_b32 s68, %d" % (32 * 3840))
    a("s_sub_u32 s69, s%d, 18" % S_GRP)
    a("s_mul_i32 s69, s69, 320")
    a("s_sub_u32 s71, s%d, 22" % S_GRP)
    a("s_mul_i32 s71, s71, 160")
    a("s_add_u32 s71, s71, 1280")
    a("s_cmp_ge_u32 s%d, 22" % S_GRP)
    a("s_cselect_b32 s69, s71, s69")
    a("s_lshr_b32 s67, s69, 1")
    a("s_lshr_b32 s71, s70, 1")
    a("v_mov_b32 v14, s71")
    a("v_cmp_le_u32 vcc, 80, v17")
    a("v_cndmask_b32 v14, 0, v14, vcc")
    a("v_add3_u32 v16, v17, v14, s67")
    a.label("K1_LD_GO"); a.flush()
    a("s_lshl_b32 s64, s60, 10")
    a("s_add_u32 s65, s64, 4096")
    a("s_add_u32 s66, s64, 8192")
    ops = ["x0"] * 4 + ["x1"] * 4
    def W(n): wsub(); ops.extend(["w%d" % n] * 3)
    def X(n): xhalf(n & 1); ops.extend(["x%d" % n] * 4)
    lastdone = [-1]
    def wait(tags):
        last = max(i for i, t in enumerate(ops) if t in tags)
        lastdone[0] = max(lastdone[0], last)
        a("s_waitcnt vmcnt(%d)" % min(63, len(ops) - 1 - last))
    def bar(u):
        tags = ["w%d" % (u + 1)]
        if (u + 1) % 2 == 0:
            tags += ["x%d" % (u + 1), "x%d" % (u + 2)]
        tags = [t for t in tags if t in ops]
        if tags: wait(tags)
        tl(a); a("s_barrier"); tl(a)
    W(0); W(1)
    a("s_mov_b32 s61, 2")
    a("s_mov_b32 s62, s%d" % S_LIN)
    a("s_cmp_eq_u32 s60, 3")
    a("s_cbranch_scc1 K1_ST_DEC")
    a("s_mul_i32 s63, s%d, 3" % S_GI)
    a("s_add_u32 s63, s63, s60")
    a("s_mov_b32 s61, 1")
    a("s_lshl_b32 s67, s%d, 3" % S_NQ)
    a("s_lshr_b32 s70, 0x150f0800, s67")
    a("s_and_b32 s70, s70, 255")
    a("s_lshr_b32 s71, 0x06060708, s67")
    a("s_and_b32 s71, s71, 255")
    a("s_lshr_b32 s72, 0x170f0800, s67")
    a("s_and_b32 s72, s72, 255")
    a("s_lshr_b32 s73, 0x07080708, s67")
    a("s_and_b32 s73, s73, 255")
    a("s_add_u32 s62, s70, s63")
    a("s_add_u32 s62, s62, 30")
    a("s_sub_u32 s67, s62, s71")
    a("s_add_u32 s67, s67, 27")
    a("s_cmp_ge_u32 s63, s71")
    a("s_cselect_b32 s62, s67, s62")
    a("s_lshl_b32 s71, s71, 1")
    a("s_sub_u32 s67, s63, s71")
    a("s_add_u32 s72, s72, s67")
    a("s_cmp_ge_u32 s63, s71")
    a("s_cselect_b32 s62, s72, s62")
    a("s_add_u32 s71, s71, s73")
    a("s_cmp_ge_u32 s63, s71")
    a("s_cselect_b32 s61, 0, s61")
    a("s_cselect_b32 s67, 1, 0")
    a("s_cmp_eq_u32 s%d, 3" % S_NQ)
    a("s_cselect_b32 s67, s67, 0")
    a("s_cmp_eq_u32 s67, 1")
    a("s_cselect_b32 s61, 2, s61")
    a.label("K1_ST_DEC"); a.flush()
    a("s_movk_i32 s63, 3840")
    a("s_cmp_ge_u32 s62, 30")
    a("s_cselect_b32 s%d, s%d, s%d" % (SRD_ST, S_WG, S_WQKV))
    a("s_cselect_b32 s%d, s%d, s%d" % (SRD_ST + 1, S_WG + 1, S_WQKV + 1))
    a("s_cselect_b32 s63, 3456, s63")
    a("s_cselect_b32 s67, 30, 0")
    a("s_cmp_ge_u32 s62, 57")
    a("s_cselect_b32 s%d, s%d, s%d" % (SRD_ST, S_WU, SRD_ST))
    a("s_cselect_b32 s%d, s%d, s%d" % (SRD_ST + 1, S_WU + 1, SRD_ST + 1))
    a("s_cselect_b32 s67, 57, s67")
    a("s_sub_u32 s70, s62, s67")
    a("s_lshl_b32 s70, s70, 7")
    a("s_lshl_b32 s71, s%d, 3" % S_MT)
    a("s_mul_i32 s71, s71, s63")
    a("s_add_u32 s70, s70, s71")
    a("s_lshl_b32 s71, s63, 6")
    a("s_mul_i32 s%d, s63, 640" % (SRD_ST + 2))
    a("s_lshl_b32 s72, s%d, 8" % S_MT)
    a("s_lshl_b32 s73, s62, 3")
    a("s_add_u32 s72, s72, s73")
    a("s_mul_i32 s73, s72, 1280")
    a("s_cmp_eq_u32 s61, 2")
    a("s_cselect_b32 s%d, s%d, s%d" % (SRD_ST, S_X, SRD_ST))
    a("s_cselect_b32 s%d, s%d, s%d" % (SRD_ST + 1, S_X + 1, SRD_ST + 1))
    a("s_cselect_b32 s63, 1280, s63")
    a("s_cselect_b32 s70, s73, s70")
    a("s_cselect_b32 s71, 128, s71")
    a("s_cselect_b32 s%d, %d, s%d" % (SRD_ST + 2, 2048 * 1280, SRD_ST + 2))
    a("s_cmp_eq_u32 s61, 0")
    a("s_cselect_b32 s%d, 0, s%d" % (SRD_ST + 2, SRD_ST + 2))
    a("s_and_b32 s%d, s%d, 0xffff" % (SRD_ST + 1, SRD_ST + 1))
    a("s_mov_b32 s%d, 0x20000" % (SRD_ST + 3))
    a("v_mov_b32 v19, 0")
    a("v_mul_lo_u32 v18, v4, s63")
    a("v_lshl_add_u32 v18, v6, 4, v18")
    srd(a, SRD_DBG, S_DBG, 256)
    LD, U, A = 32, 72, 20
    order = CFG.get("st_order", [1, 2, 3, 4, 5, 6, 7, 8, 9, 0])
    nld = [0]
    def S(cnt):
        for _ in range(cnt):
            i = order[nld[0]]
            a("s_mul_i32 s73, s71, %d" % i)
            a("s_add_u32 s73, s73, s70")
            a("buffer_load_dwordx4 %s, v18, s[%d:%d], s73 offen" % (vr(LD + 4 * nld[0], 4), SRD_ST, SRD_ST + 3))
            ops.append("s%d" % nld[0]); nld[0] += 1
    class L:
        def __init__(self): self.l = []
        def __call__(self, t): self.l.append(t)
    def acc_items(i):
        o = []
        for d in range(4):
            o.append("v_lshlrev_b32 v%d, 16, v%d" % (U + 8 * i + 2 * d, LD + 4 * i + d))
            o.append("v_and_b32 v%d, 0xffff0000, v%d" % (U + 8 * i + 2 * d + 1, LD + 4 * i + d))
        for d in range(4):
            if i == 1: o.append("v_pk_add_f32 %s, %s, %s" % (vr(A + 2 * d, 2), vr(U + 2 * d, 2), vr(U + 8 + 2 * d, 2)))
            elif i > 1: o.append("v_pk_add_f32 %s, %s, %s" % (vr(A + 2 * d, 2), vr(A + 2 * d, 2), vr(U + 8 * i + 2 * d, 2)))
        return o
    col = L()
    col("v_lshl_add_u32 v19, v6, 3, v4")
    col("v_lshlrev_b32 v19, 3, v19")
    col("s_lshl_b32 s70, s62, 9")
    col("s_mul_i32 s71, s%d, %d" % (S_MT, CSP_STRIDE))
    col("s_add_u32 s70, s70, s71")
    col("s_add_u32 s70, s70, %d" % WS_CSP)
    col("s_cmp_eq_u32 s61, 0")
    col("s_cselect_b32 s70, %d, s70" % OOB)
    col("v_and_b32 v7, 8, v0")
    col("v_cmp_eq_u32 s[82:83], 0, v7")
    for j in range(4): col("v_permlane32_swap_b32 v%d, v%d" % (A + j, A + 4 + j))
    for j in range(4): col("v_add_f32 v%d, v%d, v%d" % (A + j, A + j, A + 4 + j))
    for j in range(2): col("v_permlane16_swap_b32 v%d, v%d" % (A + j, A + 2 + j))
    for j in range(2): col("v_add_f32 v%d, v%d, v%d" % (A + j, A + j, A + 2 + j))
    col("v_cndmask_b32 v%d, v%d, v%d, s[82:83]" % (A + 2, A + 1, A))
    col("v_cndmask_b32 v%d, v%d, v%d, s[82:83]" % (A + 3, A, A + 1))
    col("v_add_f32_dpp v%d, v%d, v%d row_ror:8 row_mask:0xf bank_mask:0xf" % (A, A + 3, A + 2))
    row = L()
    row("v_pk_add_f32 %s, %s, %s" % (vr(A, 2), vr(A, 2), vr(A + 2, 2)))
    row("v_pk_add_f32 %s, %s, %s" % (vr(A + 4, 2), vr(A + 4, 2), vr(A + 6, 2)))
    row("v_pk_add_f32 %s, %s, %s" % (vr(A, 2), vr(A, 2), vr(A + 4, 2)))
    row("v_add_f32 v%d, v%d, v%d" % (A, A, A + 1))
    red8(row, A)
    row("v_mul_f32 v%d, %s, v%d" % (A, f32bits(-1.0 / 640), A))
    for d in range(40):
        row("v_pk_add_f32 %s, %s, %s op_sel_hi:[1,0]" % (vr(U + 2 * d, 2), vr(U + 2 * d, 2), vr(A, 2)))
        c = A + 2 + 2 * (d & 1)
        if d < 2: row("v_pk_mul_f32 %s, %s, %s" % (vr(c, 2), vr(U + 2 * d, 2), vr(U + 2 * d, 2)))
        else: row("v_pk_fma_f32 %s, %s, %s, %s" % (vr(c, 2), vr(U + 2 * d, 2), vr(U + 2 * d, 2), vr(c, 2)))
    row("v_pk_add_f32 %s, %s, %s" % (vr(A + 2, 2), vr(A + 2, 2), vr(A + 4, 2)))
    row("v_add_f32 v%d, v%d, v%d" % (A + 2, A + 2, A + 3))
    red8(row, A + 2)
    row("v_mul_f32 v%d, %s, v%d" % (A + 2, f32bits(1.0 / 640), A + 2))
    rbf(row, A + 2)
    row("v_add_f32 v%d, %s, v%d" % (A + 2, f32bits(1e-5), A + 2))
    rbf(row, A + 2)
    row("v_sqrt_f32 v%d, v%d" % (A + 2, A + 2))
    row("v_cvt_pk_bf16_f32 v%d, v%d, v%d" % (A, A, A + 2))
    row("v_lshlrev_b32 v19, 3, v4")
    row("v_mov_b32 v7, %d" % OOB)
    row("v_cmp_eq_u32 vcc, 0, v6")
    row("v_cndmask_b32 v19, v7, v19, vcc")
    row("s_lshl_b32 s70, s72, 3")
    row("s_add_u32 s70, s70, %d" % WS_RST)
    CH = CFG.get("st_ch", 28)
    nw, nx = [2], [2]
    def ring(u, cap):
        n = 0
        while n < cap:
            wok = nw[0] < 20 and nw[0] - 5 <= u - 1
            xok = nx[0] < 20 and 2 * (nx[0] // 2) - 5 <= u - 1
            if xok and (not wok or nx[0] <= nw[0]):
                X(nx[0]); nx[0] += 1; n += 4
            elif wok:
                W(nw[0]); nw[0] += 1; n += 3
            else:
                break
    def landed():
        return sum(1 for t in ops[:lastdone[0] + 1] if t[0] == "s" and t[1:].isdigit())
    caps = CFG.get("ld_caps", [4, 10, 14, 10])
    pace = CFG.get("st_pace", [0, 0, 2, 2, 2, 2, 2])
    done = 0; rpos = 0; coldone = False; u_store = None; issued_at = {}; early = [8]
    for u in range(-1, 16):
        ring(u, caps[u + 1] if u + 1 < len(caps) else 7)
        if u + 1 < len(pace): S(pace[u + 1])
        if u == 2:
            a("buffer_load_dword v13, off, s[%d:%d], 0 sc1" % (SRD_DBG, SRD_DBG + 3)); ops.append("tag")
        issued_at[u] = nld[0]
        budget = CH
        avail = issued_at.get(u - CFG.get("st_lag", 2), 0)
        tgt = min(avail, done + budget // 12)
        if tgt > done and tgt > landed():
            wait(["s%d" % (tgt - 1)])
        while done < 10 and done < landed() and budget >= 12:
            for t in acc_items(done): a(t)
            done += 1; budget -= 12
        if done == 10 and u_store is None and budget >= 12:
            l1, l2 = a.newlabel("K1_STR"), a.newlabel("K1_STE")
            a("s_cmp_eq_u32 s61, 2")
            a("s_cbranch_scc1 %s" % l1)
            if not coldone:
                for t in col.l: a(t)
                coldone = True
            a("s_branch %s" % l2)
            a.label(l1); a.flush(); a.nops(2)
            n = budget
            while rpos + n < len(row.l) and row.l[rpos + n - 1].startswith(("v_cmp", "s_")): n += 1
            for t in row.l[rpos:rpos + n]: a(t)
            rpos += n
            a.label(l2); a.flush(); a.nops(2)
            if rpos >= len(row.l):
                a("s_mov_b32 s73, 0")
                a.label("K1_TAG_CHK")
                a("v_readfirstlane_b32 s78, v13")
                a("s_cmp_lg_u32 s78, 0")
                a("s_cbranch_scc1 K1_TAG_OK")
                a("s_add_u32 s73, s73, 1")
                a("s_cmp_gt_u32 s73, 200000")
                a("s_cbranch_scc1 K1_TAG_OK")
                a("s_sleep 8")
                a("buffer_load_dword v13, off, s[%d:%d], 0 sc1" % (SRD_DBG, SRD_DBG + 3))
                a("s_waitcnt vmcnt(0)")
                a("s_branch K1_TAG_CHK")
                a.label("K1_TAG_OK"); a.flush()
                a("v_mov_b32 v%d, v13" % (A + 1))
                a("buffer_store_dwordx2 %s, v19, s[%d:%d], s70 offen sc0 sc1" % (vr(A, 2), SRD_WS, SRD_WS + 3))
                ops.append("st"); u_store = u
        if CFG.get("code_pf2") is not None and u == CFG.get("code_pf2"):
            a("s_cmp_ge_u32 s%d, 2" % S_IDX)
            a("s_cbranch_scc1 K1_CPF2_DONE")
            a("s_getpc_b64 s[82:83]")
            a.label("K1_CPF2_PC")
            a("s_sub_u32 s82, s82, K1_CPF2_PC-%s" % KNAME)
            a("s_subb_u32 s83, s83, 0")
            a("s_lshl_b32 s73, s%d, 2" % S_IDX)
            a("s_add_u32 s73, s73, s60")
            a("s_lshl_b32 s73, s73, 13")
            a("v_lshlrev_b32 v12, 7, v0")
            a("v_add_u32 v12, s73, v12")
            a("v_mov_b32 v14, K1_END-%s" % KNAME)
            a("v_min_u32 v12, v12, v14")
            a("global_load_dword v1, v12, s[82:83]")
            a.label("K1_CPF2_DONE")
        if CFG.get("merged") == 4 and u == 8:
            w2base(a)
            a("v_lshlrev_b32 v14, 7, v0")
            a("s_mov_b32 s73, %d" % WS_PKA)
            a("buffer_load_dword v12, v14, s[%d:%d], s73 offen sc1" % (SRD_WS, SRD_WS + 3)); ops.append("pka")
        if CFG.get("merged") == 4 and u_store is not None and u > u_store:
            import p2, p5
            if u == u_store + 1:
                wait(["pka"])
                a("v_cmp_ne_u32 vcc, v12, v13")
                a("s_and_b32 vcc_lo, vcc_lo, 0xffff")
                a("s_cbranch_scc0 K1_PKA_OK")
                a("s_mov_b32 s55, s76"); a("s_mov_b32 s31, s77")
                a("s_mov_b32 s73, %d" % WS_PKA)
                p2.poll(a, "PKA", 16, 73, 7)
                a("s_mov_b32 s76, s55"); a("s_mov_b32 s77, s31")
                a.label("K1_PKA_OK")
            for _ in range(2):
                if early[0] < 14:
                    p5.l_load(a, early[0], sbase=28, vb=5); ops.extend(["pre"] * 5); early[0] += 1
        bar(u)
    assert u_store is not None
    print("loader: stat store at u=%d" % u_store)
    a("v_lshlrev_b32 v16, 3, v16")
    a("v_lshlrev_b32 v15, 5, v0")
    a("s_mov_b32 s63, 0")
    a("s_cmp_eq_u32 s60, 3")
    a("s_cbranch_scc1 K1_LD_ROWS")
    def colloads():
        for c in range(8):
            a("s_mov_b32 s62, %d" % (WS_CSP + c * CSP_STRIDE))
            a("buffer_load_dwordx2 %s, v16, s[%d:%d], s62 offen sc1" % (vr(20 + 2 * c, 2), SRD_WS, SRD_WS + 3))
    assert nw[0] == 20 and nx[0] == 20
    def tailwait(tags, extra):
        last = max(i for i, t in enumerate(ops) if t in tags)
        a("s_waitcnt vmcnt(%d)" % (len(ops) - 1 - last + extra))
    colloads()
    tailwait(["w17"], 8)
    tl(a); a("s_barrier"); tl(a)
    a("s_waitcnt vmcnt(8)")
    tl(a); a("s_barrier"); tl(a)
    a.label("K1_LD_CCHK")
    a("s_waitcnt vmcnt(0)")
    a("v_xor_b32 v14, v13, v21")
    for c in range(1, 8):
        a("v_xor_b32 v12, v13, v%d" % (21 + 2 * c))
        a("v_or_b32 v14, v14, v12")
    a("v_cmp_ne_u32 vcc, 0, v14")
    a("s_cmp_eq_u64 vcc, 0")
    a("s_cbranch_scc1 K1_LD_COK")
    a("s_add_u32 s63, s63, 1")
    a("s_cmp_gt_u32 s63, 200000")
    a("s_cbranch_scc1 K1_LD_COK")
    a("s_sleep 8")
    colloads()
    a("s_branch K1_LD_CCHK")
    a.label("K1_LD_COK"); a.flush()
    for (d, x, y) in ((20, 20, 22), (24, 24, 26), (28, 28, 30), (32, 32, 34), (20, 20, 24), (28, 28, 32), (20, 20, 28)):
        a("v_add_f32 v%d, v%d, v%d" % (d, x, y))
    a("v_cvt_pk_bf16_f32 v21, v20, v20")
    a("v_and_b32 v21, 0xffff0000, v21")
    a("v_sub_f32 v22, v20, v21")
    a("v_cvt_pk_bf16_f32 v20, v21, v22")
    a("v_lshlrev_b32 v17, 2, v17")
    a("v_add_u32 v17, %d, v17" % ST_COL)
    a("ds_write_b32 v17, v20")
    a("s_branch K1_LD_FIN")
    a.label("K1_LD_ROWS"); a.flush()
    a("s_lshl_b32 s62, s%d, 11" % S_MT)
    a("s_add_u32 s62, s62, %d" % WS_RST)
    def rowloads():
        for i in range(4):
            a("buffer_load_dwordx2 %s, v15, s[%d:%d], s62 offen offset:%d sc1" % (vr(20 + 2 * i, 2), SRD_WS, SRD_WS + 3, 8 * i))
    rowloads()
    tailwait(["w17"], 4)
    tl(a); a("s_barrier"); tl(a)
    a("s_waitcnt vmcnt(4)")
    tl(a); a("s_barrier"); tl(a)
    a.label("K1_LD_RCHK")
    a("s_waitcnt vmcnt(0)")
    a("v_xor_b32 v14, v13, v21")
    for c in range(1, 4):
        a("v_xor_b32 v12, v13, v%d" % (21 + 2 * c))
        a("v_or_b32 v14, v14, v12")
    a("v_cmp_ne_u32 vcc, 0, v14")
    a("s_cmp_eq_u64 vcc, 0")
    a("s_cbranch_scc1 K1_LD_ROK")
    a("s_add_u32 s63, s63, 1")
    a("s_cmp_gt_u32 s63, 200000")
    a("s_cbranch_scc1 K1_LD_ROK")
    a("s_sleep 8")
    rowloads()
    a("s_branch K1_LD_RCHK")
    a.label("K1_LD_ROK"); a.flush()
    a("v_lshrrev_b32 v15, 1, v15")
    a("v_add_u32 v15, %d, v15" % ST_MEAN)
    for i in range(4):
        a("v_and_b32 v%d, 0xffff, v%d" % (28 + i, 20 + 2 * i))
        a("v_lshl_or_b32 v%d, v%d, 16, v%d" % (28 + i, 28 + i, 28 + i))
        a("v_and_b32 v%d, 0xffff0000, v%d" % (32 + i, 20 + 2 * i))
        a("v_rcp_f32 v%d, v%d" % (32 + i, 32 + i))
    a("s_nop 0")
    a("ds_write_b128 v15, v[28:31]")
    a("ds_write_b128 v15, v[32:35] offset:1024")
    a.label("K1_LD_FIN")
    a("s_waitcnt lgkmcnt(0)")
    tl(a); a("s_barrier"); tl(a)
    if CFG.get("merged") == 4:
        gen_phase5(a)
        return
    if CFG.get("merged", 0) >= 2:
        gen_phase3_l(a)
        return
    if CFG.get("merged"):
        gen_phase2(a)
        return
    if CFG.get("flagtest"):
        a("s_barrier")
        a("s_cmp_lt_u32 s%d, 22" % S_GRP)
        a("s_cbranch_scc1 K1_FT_NOKV")
        a("s_barrier")
        a.label("K1_FT_NOKV")
        a("s_barrier")
        a("s_cmp_lg_u32 s60, 0")
        a("s_cbranch_scc1 K1_FT_END")
        a("s_lshl_b32 s62, s%d, 5" % S_MT)
        a("s_add_u32 s63, s62, s%d" % S_GRP)
        a("s_lshl_b32 s63, s63, 7")
        a("s_add_u32 s63, s63, %d" % WS_FLG)
        a("s_mov_b64 exec, 1")
        a("buffer_store_dword v13, off, s[%d:%d], s63 sc0 sc1" % (SRD_WS, SRD_WS + 3))
        a("s_mov_b64 exec, -1")
        a("s_lshl_b32 s62, s%d, 12" % S_XCD)
        a("s_add_u32 s62, s62, %d" % WS_FLG)
        a("v_lshlrev_b32 v14, 7, v0")
        a("s_mov_b32 s66, 0x3fffff")
        a("s_mov_b32 s67, 0")
        a("s_mov_b32 s63, 0")
        a("s_mov_b64 exec, s[66:67]")
        a.label("K1_FT_POLL")
        a("buffer_load_dword v12, v14, s[%d:%d], s62 offen sc1" % (SRD_WS, SRD_WS + 3))
        a("s_waitcnt vmcnt(0)")
        a("v_cmp_ne_u32 vcc, v12, v13")
        a("s_cbranch_vccz K1_FT_OK")
        a("s_add_u32 s63, s63, 1")
        a("s_cmp_gt_u32 s63, 100000")
        a("s_cbranch_scc1 K1_FT_OK")
        a("s_sleep %d" % CFG.get("ft_sleep", 4))
        a("s_branch K1_FT_POLL")
        a.label("K1_FT_OK")
        a("s_mov_b64 exec, -1")
        a.label("K1_FT_END")
    if STAMP:
        a("s_mov_b32 s50, 0x7fffffff")
        a("s_lshl_b32 s82, s2, 2")
        a("s_add_u32 s82, s82, s60")
        a("s_lshl_b32 s82, s82, 8")
        a("s_add_u32 s82, s82, %d" % (WS_ST + (1 << 19)))
        a("v_lshlrev_b32 v2, 2, v0")
        a("buffer_store_dword v167, v2, s[48:51], s82 offen")
    stamp_flush(a, 0, S_WAVE, 1)
    a("s_endpgm")

def w2base(a):
    a("s_lshr_b32 s28, s%d, 2" % S_XCD)
    a("s_lshl_b32 s28, s28, 2")
    a("s_lshr_b32 s73, s%d, 3" % S_IDX)
    a("s_add_u32 s28, s28, s73")
    a("s_mul_i32 s28, s28, %d" % (74 * 5120))
    a("s_mul_i32 s73, s60, %d" % (13 * 5120))
    a("s_add_u32 s28, s28, s73")
    a("s_add_u32 s28, s28, %d" % WS_W2P)
    a("v_lshlrev_b32 v5, 4, v0")

def gen_phase5(a):
    import p2, p3, p5
    CFG["p3_obar"] = []
    p5.l_load(a, 7, sbase=28, vb=5)
    a.label("P5_LSET"); a.flush()
    p5.setup(a, CFG)
    a("v_mov_b32 v12, %d" % (ST_FLAG + 4))
    a("v_mov_b32 v14, 0")
    a("v_mov_b32 v15, 0")
    a("ds_write_b32 v12, v13")
    a("ds_write_b64 v12, v[14:15] offset:4")
    a("ds_write_b64 v%d, v[14:15]" % p5.V_W)
    a("ds_write_b32 v%d, v14 offset:8" % p5.V_W)
    a("s_waitcnt lgkmcnt(0)")
    a("s_barrier")
    a("s_setprio %d" % CFG.get("p5_lprio", 0))
    a("s_cmp_lt_u32 s%d, 22" % S_GRP)
    a("s_cbranch_scc1 P5_LPRE")
    a("s_barrier")
    a("v_mov_b32 v14, %d" % (ST_FLAG + 8))
    p5.ldswait(a, "CNT", 0, 8, areg=14)
    a.label("P5_LPRE"); a.flush()
    a("s_mov_b32 s73, %d" % WS_PKF)
    p2.poll(a, "PK1", 16, 73, 7)
    p5.l_preload_lds(a)
    a("v_mov_b32 v12, 7")
    a("s_waitcnt vmcnt(0)")
    a("ds_write_b32 v%d, v12 offset:4" % p5.V_W)
    p5.l_main(a)
    a("s_endpgm")
    a.label("P3_FIN"); a.flush()
    a("v_mov_b32 v12, %d" % (ST_FLAG + 4))
    a("ds_read_b32 v13, v12")
    a("v_mov_b32 v14, 1")
    a("s_waitcnt vmcnt(0) lgkmcnt(0)")
    a("s_mov_b64 exec, 1")
    a("ds_add_rtn_u32 v14, v12, v14 offset:4")
    a("s_waitcnt lgkmcnt(0)")
    a("v_readfirstlane_b32 s73, v14")
    a("s_cmp_lg_u32 s73, 7")
    a("s_cbranch_scc1 P3_NOFLAG")
    a("s_lshl_b32 s72, s%d, 5" % S_MT)
    a("s_add_u32 s72, s72, s83")
    a("s_lshl_b32 s72, s72, 7")
    a("s_add_u32 s72, s72, %d" % WS_FLG)
    a("buffer_store_dword v13, off, s[%d:%d], s72 sc0 sc1" % (SRD_WS, SRD_WS + 3))
    a.label("P3_NOFLAG")
    a("s_mov_b64 exec, -1")
    a.label("P3_WORK"); a.flush()
    stamp(a, 1)
    a("s_and_b32 s60, s%d, 3" % S_WAVE)
    p5.setup(a, CFG)
    a("v_mov_b32 v15, %d" % (ST_FLAG + 12))
    a("s_cmp_lt_u32 s%d, 4" % S_WAVE)
    a("s_cbranch_scc1 P3_O")
    a("s_cmp_lg_u32 s60, 0")
    a("s_cbranch_scc1 P5_HGO")
    a("s_lshr_b32 s73, s%d, 2" % p2.S_MT)
    a("s_lshl_b32 s73, s73, 12")
    a("s_add_u32 s73, s73, %d" % WS_FLG)
    p2.poll(a, "MAIN", 22, 73, 7, CFG.get("ft_sleep", 2))
    a("v_mov_b32 v12, 1")
    a("ds_write_b32 v15, v12")
    a.label("P5_HGO"); a.flush()
    a("s_setprio %d" % CFG.get("p5_hprio", 2))
    p5.ldswait(a, "HGO", 0, 1, areg=15)
    p5.ldswait(a, "HF7", 4, 7)
    if STAMP: a("s_memtime s[96:97]")
    p5.h_main(a, CFG)
    p3.h_epilogue(a)
    if STAMP: a("s_memtime s[98:99]")
    stamp_flush(a, 1, 60, 4)
    a("s_endpgm")
    a.label("P3_O"); a.flush()
    p5.ldswait(a, "OGO", 0, 1, areg=15)
    if STAMP: a("s_memtime s[96:97]")
    p3.o_main(a, CFG)
    if STAMP:
        a("s_memtime s[98:99]")
        a("s_add_u32 s60, s60, 4")
    stamp_flush(a, 1, 60, 4)
    a("s_endpgm")

def gen_phase3_l(a):
    import p2, p3, p4
    v4 = CFG.get("merged") == 3
    if v4:
        CFG["p3_obar"] = []; CFG["p3_nbar"] = 1
        Wk = p4.W(CFG)
        class Rec:
            def __init__(self): self.l = []
            def __call__(self, t): self.l.append(t)
        rec = Rec(); Wk.preload(rec)
    def pre_lds():
        if v4:
            for t in rec.l: a(t)
        else: p3.l_preload_lds(a)
    def pre_regs():
        if not v4: p3.l_preload_regs(a)
    def mainpoll():
        a("s_cmp_lg_u32 s60, 0")
        a("s_cbranch_scc1 P3_HB21")
        a("s_lshr_b32 s73, s%d, 2" % p2.S_MT)
        a("s_lshl_b32 s73, s73, 12")
        a("s_add_u32 s73, s73, %d" % WS_FLG)
        p2.poll(a, "MAIN", 22, 73, 7, CFG.get("ft_sleep", 2))
        a.label("P3_HB21"); a.flush()
    a("v_mov_b32 v12, %d" % (ST_FLAG + 4))
    a("v_mov_b32 v14, 0")
    a("ds_write2_b32 v12, v13, v14 offset0:0 offset1:1")
    p3.setup(a, CFG)
    a("s_waitcnt lgkmcnt(0)")
    a("s_barrier")
    a("s_setprio %d" % CFG.get("p2_prio", 0))
    a("s_cmp_ge_u32 s%d, 22" % S_GRP)
    a("s_cbranch_scc1 P3_KVWG")
    a("s_mov_b32 s73, %d" % WS_PKF)
    p2.poll(a, "PK1", 16, 73, 7)
    pre_lds()
    pre_regs()
    a("s_branch P3_PRE_DONE")
    a.label("P3_KVWG"); a.flush()
    a("s_barrier")
    a("s_mov_b32 s73, %d" % WS_PKF)
    p2.poll(a, "PK2", 16, 73, 7)
    pre_regs()
    a("v_mov_b32 v12, %d" % (ST_FLAG + 8))
    a("s_mov_b32 s78, 0")
    a.label("P3_CNT")
    a("ds_read_b32 v14, v12")
    a("s_waitcnt lgkmcnt(0)")
    a("v_readfirstlane_b32 s73, v14")
    a("s_add_u32 s78, s78, 1")
    a("s_cmp_gt_u32 s78, 1000000")
    a("s_cbranch_scc1 P3_LENTRY")
    a("s_sleep 1")
    a("s_cmp_lt_u32 s73, 8")
    a("s_cbranch_scc1 P3_CNT")
    a.label("P3_LENTRY"); a.flush()
    pre_lds()
    a.label("P3_PRE_DONE"); a.flush()
    if v4:
        stamp(a, 1)
        mainpoll()
        a("s_barrier")
        if STAMP: a("s_memtime s[96:97]")
        Wk.main(a)
        p3.h_epilogue(a)
        if STAMP: a("s_memtime s[98:99]")
        stamp_flush(a, 1, 60, 4)
    else:
        a("s_waitcnt vmcnt(0)")
        a("s_barrier")
        p3.l_main(a)
    a("s_endpgm")
    a.label("P3_FIN"); a.flush()
    a("v_mov_b32 v12, %d" % (ST_FLAG + 4))
    a("ds_read_b32 v13, v12")
    a("v_mov_b32 v14, 1")
    a("s_waitcnt vmcnt(0) lgkmcnt(0)")
    a("s_mov_b64 exec, 1")
    a("ds_add_rtn_u32 v14, v12, v14 offset:4")
    a("s_waitcnt lgkmcnt(0)")
    a("v_readfirstlane_b32 s73, v14")
    a("s_cmp_lg_u32 s73, 7")
    a("s_cbranch_scc1 P3_NOFLAG")
    a("s_lshl_b32 s72, s%d, 5" % S_MT)
    a("s_add_u32 s72, s72, s83")
    a("s_lshl_b32 s72, s72, 7")
    a("s_add_u32 s72, s72, %d" % WS_FLG)
    a("buffer_store_dword v13, off, s[%d:%d], s72 sc0 sc1" % (SRD_WS, SRD_WS + 3))
    a.label("P3_NOFLAG")
    a("s_mov_b64 exec, -1")
    a.label("P3_WORK"); a.flush()
    stamp(a, 1)
    a("s_and_b32 s60, s%d, 3" % S_WAVE)
    p3.setup(a, CFG)
    a("s_cmp_lt_u32 s%d, 4" % S_WAVE)
    a("s_cbranch_scc1 P3_O")
    if not v4:
        mainpoll()
        a("s_barrier")
        if STAMP: a("s_memtime s[96:97]")
        p3.h_main(a, CFG)
        p3.h_epilogue(a)
        if STAMP: a("s_memtime s[98:99]")
        stamp_flush(a, 1, 60, 4)
    else:
        a("s_mov_b32 s73, %d" % WS_PKF)
        p2.gen_reducer(a, pkpoll=True)
    a("s_endpgm")
    a.label("P3_O"); a.flush()
    if not v4:
        a("s_mov_b32 s73, %d" % WS_PKF)
        p2.gen_reducer(a, pkpoll=True)
    a("s_barrier")
    if STAMP: a("s_memtime s[96:97]")
    p3.o_main(a, CFG)
    if STAMP:
        a("s_memtime s[98:99]")
        a("s_add_u32 s60, s60, 4")
    stamp_flush(a, 1, 60, 4)
    a("s_endpgm")

def gen_phase2(a):
    import p2
    p2.setup(a, CFG)
    P, blocks = p2.build(a, CFG)
    class Rec:
        def __init__(self): self.l = []
        def __call__(self, t): self.l.append(t)
    rec = Rec(); P.a = rec
    p2.gen_preload(rec, CFG, P, blocks)
    P.a = a
    a("s_barrier")
    a("s_mov_b32 s79, 1")
    a("s_cmp_ge_u32 s%d, 22" % S_GRP)
    a("s_cbranch_scc1 P2_KVWG")
    a("s_mov_b32 s73, %d" % WS_PKF)
    p2.poll(a, "PK1", 16, 73, 7)
    for t in rec.l: a(t)
    a("s_mov_b32 s79, 0")
    a("s_branch P2_B20")
    a.label("P2_KVWG"); a.flush()
    a("s_barrier")
    a.label("P2_B20"); a.flush()
    a("s_barrier")
    a("s_cmp_lg_u32 s60, 0")
    a("s_cbranch_scc1 P2_ENTRY")
    a("s_lshl_b32 s72, s%d, 5" % S_MT)
    a("s_add_u32 s72, s72, s%d" % S_GRP)
    a("s_lshl_b32 s72, s72, 7")
    a("s_add_u32 s72, s72, %d" % WS_FLG)
    a("s_mov_b64 exec, 1")
    a("buffer_store_dword v13, off, s[%d:%d], s72 sc0 sc1" % (SRD_WS, SRD_WS + 3))
    a("s_mov_b64 exec, -1")
    a.label("P2_ENTRY"); a.flush()
    stamp(a, 1)
    a("s_cmp_eq_u32 s79, 0")
    a("s_cbranch_scc1 P2_PRE_DONE")
    a("s_mov_b32 s73, %d" % WS_PKF)
    p2.poll(a, "PK2", 16, 73, 7)
    for t in rec.l: a(t)
    a.label("P2_PRE_DONE"); a.flush()
    p2.gen_reducer(a)
    a("s_cmp_lg_u32 s60, 0")
    a("s_cbranch_scc1 P2_B21")
    a("s_lshr_b32 s73, s%d, 2" % p2.S_MT)
    a("s_lshl_b32 s73, s73, 12")
    a("s_add_u32 s73, s73, %d" % WS_FLG)
    p2.poll(a, "MAIN", 22, 73, 7, CFG.get("ft_sleep", 2))
    a.label("P2_B21"); a.flush()
    a("s_barrier")
    if STAMP: a("s_memtime s[96:97]")
    p2.gen_main(a, CFG, P, blocks)
    if STAMP: a("s_memtime s[98:99]")
    stamp_flush(a, 1, 60, 4)
    a("s_endpgm")

ACC = 16
XS = [112, 128]
WA, WB = 144, 156
V_XB = 2
V_WE, V_WO = 4, 5
V_XA, V_WAE, V_WAO = 6, 7, 8
T0 = 112

def gen_compute(a, typ):
    nt = 6 if typ == "F" else 5
    orient = "N" if typ == "K" else "T"
    rowb = 192 if typ == "F" else 320
    def acc(t, rb): return ACC + (t * 4 + rb) * 4
    def wf(t): return (WA + 4 * t) if t < 3 else (WB + 4 * (t - 3))
    a("v_and_b32 v14, 15, v0")
    a("v_lshrrev_b32 v15, 4, v0")
    a("v_bfe_u32 v9, v0, 1, 3")
    a("v_xor_b32 v9, v9, v15")
    a("s_lshl_b32 s61, s60, 13")
    a("v_lshl_add_u32 v10, v14, 7, s61")
    a("v_lshl_add_u32 v%d, v9, 4, v10" % V_XB)
    a("v_xor_b32 v9, 4, v9")
    a("v_lshl_add_u32 v%d, v9, 4, v10" % (V_XB + 1))
    a("v_bfe_u32 v9, v0, 2, 2")
    a("v_lshl_add_u32 v9, v15, 3, v9")
    a("v_mul_u32_u24 v9, %d, v9" % rowb)
    a("v_and_b32 v10, 3, v0")
    a("v_lshl_add_u32 v9, v10, 3, v9")
    a("v_bfe_u32 v10, v0, 4, 1")
    a("v_lshlrev_b32 v10, 5, v10")
    if typ in "FQ":
        P = 3 if typ == "F" else 5
        a("s_mul_i32 s62, s67, %d" % (32 * P))
        a("v_add_u32 v9, s62, v9")
        a("v_add_u32 v11, v9, v10")
        a("v_sub_u32 v12, v9, v10")
        a("s_cmp_eq_u32 s67, 0")
        a("s_cselect_b64 s[68:69], -1, 0")
        a("v_cndmask_b32 v%d, v12, v11, s[68:69]" % V_WE)
        a("v_cndmask_b32 v%d, v11, v12, s[68:69]" % V_WO)
        if typ == "F":
            tl = [((t & 1) * UPOFF + (t >> 1) * 32, (t >> 1) & 1) for t in range(6)]
        else:
            tl = [(t * 32, t & 1) for t in range(5)]
    else:
        a("s_mul_i32 s62, s67, 96")
        a("v_add_u32 v9, s62, v9")
        a("v_add_u32 v11, v9, v10")
        a("v_sub_u32 v12, v9, v10")
        a("s_cmp_eq_u32 s67, 0")
        a("s_cselect_b64 s[68:69], -1, 0")
        a("v_cndmask_b32 v%d, v12, v11, s[68:69]" % V_WE)
        a("v_cndmask_b32 v%d, v11, v12, s[68:69]" % V_WO)
        a("s_lshl_b32 s70, s67, 6")
        tl = [(0, 0), (32, 1), (64, 2), (160, 1), (192, 0)]
    for r in range(nt * 16):
        a("v_mov_b32 v%d, 0" % (ACC + r))
    a("s_mov_b32 s63, 0")
    a("s_mov_b32 s64, %d" % XSLOT)
    a("s_mov_b32 s65, %d" % WBASE)
    a("s_mov_b32 s66, 0")
    def waddr():
        out = ["v_add_u32 v%d, s65, v%d" % (V_WAE, V_WE), "v_add_u32 v%d, s65, v%d" % (V_WAO, V_WO)]
        if typ == "K":
            out.append("v_add_u32 v13, s70, v%d" % V_WAE)
        return out
    def wreads(ts):
        out = []
        for t in ts:
            off, par = tl[t]
            reg = (V_WAE, V_WAO, 13)[par]
            out.append("ds_read_b64_tr_b16 %s, v%d offset:%d" % (vr(wf(t), 2), reg, off))
            out.append("ds_read_b64_tr_b16 %s, v%d offset:%d" % (vr(wf(t) + 2, 2), reg, off + 4 * rowb))
        return out
    def xreads(st, hf, xs):
        out = ["v_add_u32 v%d, s%d, v%d" % (V_XA, xs, V_XB + hf)]
        for rb in range(4):
            out.append("ds_read_b128 %s, v%d offset:%d" % (vr(XS[st] + 4 * rb, 4), V_XA, rb * 2048))
        return out
    def mfma(t, rb, W, X):
        A, B = (W, X) if orient == "T" else (X, W)
        return "v_mfma_f32_16x16x32_bf16 %s, %s, %s, %s" % (vr(acc(t, rb), 4), vr(A, 4), vr(B, 4), vr(acc(t, rb), 4))
    def wadv():
        return ["s_add_u32 s65, s65, %d" % WSLOT,
                "s_cmp_ge_u32 s65, %d" % (WBASE + WRING * WSLOT),
                "s_cselect_b32 s65, %d, s65" % WBASE] + waddr()
    for t in waddr(): a(t)
    a("s_barrier")
    stamp(a, 1)
    if STAMP: a("s_memtime s[96:97]")
    xr = xreads(0, 0, 63); wr = wreads([0, 1, 2])
    for t in xr[:1] + wr[:2] + xr[1:] + wr[2:]:
        a(t)
    a.label("K1_LOOP_" + typ)
    def phase(ms, fill, barrier):
        if CFG.get("no_ds"): fill = [f for f in fill if not f.startswith("ds_")]
        if CFG.get("no_mfma"): ms = ["s_nop 0"] * len(ms)
        a("s_waitcnt lgkmcnt(0)")
        nb = CFG.get("k1_prebar", 2)
        for m in ms[:nb]: a(m)
        if barrier: a("s_barrier")
        rest = ms[nb:]
        k = 0
        for i, m in enumerate(rest):
            per = 2 if len(fill) - k > len(rest) - i else 1
            for f in fill[k:k + per]: a(f)
            k += per
            a(m)
        for f in fill[k:]: a(f)
    for hf in range(2):
        cur = hf
        msA = [mfma(t, rb, wf(t), XS[cur] + 4 * rb) for t in range(3) for rb in range(4)]
        msB = [mfma(t, rb, wf(t), XS[cur] + 4 * rb) for t in range(3, nt) for rb in range(4)]
        phase(msA, wreads(range(3, nt)), False)
        xr = xreads(cur ^ 1, hf ^ 1, 63 if hf == 0 else 64); wr = wreads([0, 1, 2])
        phase(msB, wadv() + xr[:1] + wr[:2] + xr[1:] + wr[2:], True)
    a("s_mov_b32 s63, s64")
    a("s_add_u32 s64, s64, %d" % XSLOT)
    a("s_cmp_ge_u32 s64, %d" % (XRING * XSLOT))
    a("s_cselect_b32 s64, 0, s64")
    a("s_add_u32 s66, s66, 1")
    a("s_cmp_lt_u32 s66, 10")
    a("s_cbranch_scc1 K1_LOOP_" + typ)
    stamp(a, 2)
    if STAMP: a("s_memtime s[98:99]")
    a("s_waitcnt lgkmcnt(0)")
    XC = T0
    WC = T0 + 16
    M = T0 + 40
    a("s_lshl_b32 s61, s60, 8")
    a("s_add_u32 s61, s61, %d" % ST_MEAN)
    a("v_lshl_add_u32 v9, v0, 2, s61")
    a("ds_read_b32 v%d, v9" % M)
    a("v_lshlrev_b32 v10, 2, v14")
    if typ == "F":
        a("s_mul_i32 s62, s67, %d" % (3 * 128))
        co = [(t >> 1) * 128 + (t & 1) * 64 for t in range(6)]
    elif typ == "Q":
        a("s_mul_i32 s62, s67, %d" % (5 * 64))
        co = [t * 64 for t in range(5)]
    else:
        a("s_mul_i32 s62, s67, %d" % (3 * 64))
        co = [0, 64, 128, 320, 384]
    a("s_add_u32 s62, s62, %d" % ST_COL)
    a("v_add_u32 v10, s62, v10")
    if typ == "K":
        a("s_lshl_b32 s70, s67, 7")
        a("v_add_u32 v11, s70, v10")
    for t in range(nt):
        a("ds_read_b32 v%d, v%d offset:%d" % (WC + 4 * t, 11 if (typ == "K" and t == 2) else 10, co[t]))
    RS = T0 + 44
    if orient == "T":
        a("v_lshl_add_u32 v9, v14, 2, s61")
        for rb in range(4):
            a("ds_read_b32 v%d, v9 offset:%d" % (RS + rb, 1024 + rb * 64))
    for r in range(1, 4):
        for k in range(4): a("v_mov_b32 v%d, 0" % (XC + 4 * k + r))
        for t in range(nt): a("v_mov_b32 v%d, 0" % (WC + 4 * t + r))
    for rb in range(4):
        a("v_cmp_eq_u32 s[%d:%d], %d, v15" % (72 + 2 * rb, 73 + 2 * rb, rb))
    a("s_waitcnt lgkmcnt(0)")
    for rb in range(4):
        a("v_cndmask_b32 v%d, 0, v%d, s[%d:%d]" % (XC + 4 * rb, M, 72 + 2 * rb, 73 + 2 * rb))
    for t in range(nt):
        for rb in range(4):
            a(mfma(t, rb, WC + 4 * t, XC + 4 * rb))
    stamp(a, 3)
    if typ == "F":
        epi_ffn(a, acc, RS)
    elif typ == "Q":
        epi_q(a, acc, RS)
    else:
        epi_kv(a, acc)

def fin_compute(a):
    if CFG.get("merged", 0) >= 2:
        a("s_branch P3_FIN")
        return
    if CFG.get("flagtest") or CFG.get("merged"):
        a("s_waitcnt vmcnt(0)")
        a("s_barrier")
    if CFG.get("merged", 0) >= 2:
        a("s_branch P3_WORK")
        return
    stamp_flush(a, 0, S_WAVE, 4)
    a("s_endpgm")

def epi_ffn(a, acc, RS):
    c0 = -2.0 * math.sqrt(2.0 / math.pi) * LOG2E
    K = T0
    for rb in range(4):
        k = K + rb * 6; R = RS + rb
        a("v_mul_f32 v%d, v%d, v%d" % (k + 4, R, R))
        a("v_mul_f32 v%d, %s, v%d" % (k, f32bits(c0), R))
        a("v_mul_f32 v%d, v%d, v%d" % (k + 2, k, k + 4))
        a("v_rcp_f32 v%d, v%d" % (k + 4, k + 4))
        a("v_mul_f32 v%d, %s, v%d" % (k + 2, f32bits(0.044715), k + 2))
    VA = 9
    a("v_lshlrev_b32 v%d, 4, v0" % VA)
    a("s_lshl_b32 s61, s%d, 2" % S_MT)
    a("s_add_u32 s61, s61, s60")
    a("s_mul_i32 s61, s61, %d" % (54 * 4096))
    a("s_mul_i32 s62, s%d, %d" % (S_GRP, 3 * 4096))
    a("s_add_u32 s61, s61, s62")
    a("s_add_u32 s62, s61, 8192")
    a("s_add_u32 s63, s61, 4096")
    a("v_bfe_u32 v10, v0, 4, 1")
    a("v_lshlrev_b32 v10, 10, v10")
    a("v_lshl_add_u32 v10, v14, 4, v10")
    a("v_lshrrev_b32 v11, 5, v0")
    a("v_lshl_add_u32 v10, v11, 8, v10")
    a("s_lshl_b32 s64, s67, 9")
    a("s_add_u32 s63, s63, s64")
    a("s_cmp_lg_u32 s67, 0")
    a("s_cselect_b32 s61, s62, s61")
    a("s_cbranch_scc1 K1_FE1")
    T = T0 + 24
    def body(ch):
        hi = 2 if ch == 0 else 0
        for rp in range(2):
            half = T0 + 48 + 4 * rp
            for h in range(2):
                rb = 2 * rp + h
                k = K + rb * 6
                full = T0 + 40 + 4 * h
                n = 0
                for i in range(3):
                    G, Uu = acc(2 * i, rb), acc(2 * i + 1, rb)
                    t = T + 8 * (i & 1)
                    if i == hi: out = half + 2 * h
                    else: out = full + 2 * n; n += 1
                    for p in range(2):
                        a("v_pk_mul_f32 %s, %s, %s" % (vr(t + 2 * p, 2), vr(G + 2 * p, 2), vr(G + 2 * p, 2)))
                    for p in range(2):
                        a("v_pk_fma_f32 %s, %s, %s, %s op_sel_hi:[1,0,0]" % (vr(t + 2 * p, 2), vr(t + 2 * p, 2), vr(k + 2, 2), vr(k, 2)))
                    for p in range(2):
                        a("v_pk_mul_f32 %s, %s, %s" % (vr(t + 2 * p, 2), vr(t + 2 * p, 2), vr(G + 2 * p, 2)))
                    for j in range(4):
                        a("v_exp_f32 v%d, v%d" % (t + j, t + j))
                    for p in range(2):
                        a("v_pk_mul_f32 %s, %s, %s" % (vr(t + 4 + 2 * p, 2), vr(G + 2 * p, 2), vr(Uu + 2 * p, 2)))
                    for p in range(2):
                        a("v_pk_fma_f32 %s, %s, %s, %s op_sel_hi:[1,0,0]" % (vr(t + 2 * p, 2), vr(t + 2 * p, 2), vr(k + 4, 2), vr(k + 4, 2)))
                    for j in range(4):
                        a("v_rcp_f32 v%d, v%d" % (t + j, t + j))
                    for p in range(2):
                        a("v_pk_mul_f32 %s, %s, %s" % (vr(t + 4 + 2 * p, 2), vr(t + 4 + 2 * p, 2), vr(t + 2 * p, 2)))
                    for p in range(2):
                        a("v_cvt_pk_bf16_f32 v%d, v%d, v%d" % (out + p, t + 4 + 2 * p, t + 5 + 2 * p))
                a("buffer_store_dwordx4 %s, v%d, s[%d:%d], s61 offen offset:%d %s" % (vr(full, 4), VA, SRD_WS, SRD_WS + 3, rb * 1024, stflag()))
            for d in range(2):
                a("v_permlane16_swap_b32 v%d, v%d" % (half + d, half + 2 + d))
            a("buffer_store_dwordx4 %s, v10, s[%d:%d], s63 offen offset:%d %s" % (vr(half, 4), SRD_WS, SRD_WS + 3, rp * 2048, stflag()))
        fin_compute(a)
    body(0)
    a.label("K1_FE1"); a.flush()
    body(1)

def epi_q(a, acc, RS):
    K = T0
    for rb in range(4):
        a("v_mov_b32 v%d, v%d" % (K + 4 * rb, RS + rb))
        a("v_mul_f32 v%d, %s, v%d" % (K + 4 * rb + 2, f32bits(LOG2E), RS + rb))
    VA = 9
    a("v_lshlrev_b32 v%d, 4, v14" % VA)
    a("v_bfe_u32 v10, v0, 4, 1")
    a("v_lshl_add_u32 v%d, v10, 9, v%d" % (VA, VA))
    a("v_lshrrev_b32 v10, 5, v0")
    a("v_lshl_add_u32 v%d, v10, 8, v%d" % (VA, VA))
    a("s_lshl_b32 s61, s%d, 2" % S_MT)
    a("s_add_u32 s61, s61, s60")
    a("s_mul_i32 s61, s61, %d" % (40 * 2048))
    a("s_mul_i32 s62, s%d, %d" % (S_GRP, 10 * 2048))
    a("s_add_u32 s61, s61, s62")
    a("s_mul_i32 s62, s67, %d" % (5 * 2048))
    a("s_add_u32 s61, s61, s62")
    a("s_add_u32 s61, s61, %d" % WS_PQ)
    a("s_mov_b32 s64, %s" % f32bits(1e-6))
    a("s_mov_b32 s65, %s" % f32bits(1e-6))
    T = T0 + 16
    n = 0
    for t in range(5):
        a("s_add_u32 s62, s61, %d" % (t * 2048))
        for rb in range(4):
            D = acc(t, rb); k = K + 4 * rb
            out = T0 + 32 + 2 * (n & 7); n += 1
            for p in range(2):
                a("v_pk_mul_f32 %s, %s, %s op_sel_hi:[1,0]" % (vr(T + 2 * p, 2), vr(D + 2 * p, 2), vr(k + 2, 2)))
            for p in range(2):
                a("v_pk_fma_f32 %s, %s, %s, s[64:65] op_sel_hi:[1,0,1]" % (vr(T + 4 + 2 * p, 2), vr(D + 2 * p, 2), vr(k, 2)))
            for j in range(4):
                a("v_exp_f32 v%d, v%d clamp" % (T + j, T + j))
            for j in range(4):
                a("v_max_f32 v%d, s64, v%d" % (T + 4 + j, T + 4 + j))
            for p in range(2):
                a("v_pk_add_f32 %s, %s, %s" % (vr(T + 2 * p, 2), vr(T + 2 * p, 2), vr(T + 4 + 2 * p, 2)))
            for p in range(2):
                a("v_cvt_pk_bf16_f32 v%d, v%d, v%d" % (out + p, T + 2 * p, T + 2 * p + 1))
            if rb & 1:
                for d in range(2):
                    a("v_permlane32_swap_b32 v%d, v%d" % (out - 2 + d, out + d))
                a("buffer_store_dwordx4 %s, v%d, s[%d:%d], s62 offen offset:%d %s" % (vr(out - 2, 4), VA, SRD_WS, SRD_WS + 3, (rb >> 1) * 1024, stflag()))
    fin_compute(a)

FRL = 0
def epi_kv(a, acc):
    RR = T0 + 40
    a("v_lshl_add_u32 v9, v15, 4, s61")
    for rb in range(4):
        a("ds_read_b128 %s, v9 offset:%d" % (vr(RR + 4 * rb, 4), 1024 + rb * 64))
    VA = 9
    a("s_lshl_b32 s61, s60, 11")
    a("s_mul_i32 s62, s67, %d" % (3 * 8192))
    a("s_add_u32 s61, s61, s62")
    a("v_lshl_add_u32 v10, v0, 4, s61")
    a("s_lshl_b32 s62, s67, 14")
    a("v_add_u32 v11, s62, v10")
    a("s_mov_b32 s64, %s" % f32bits(1e-6))
    a("s_mov_b32 s65, %s" % f32bits(1e-6))
    a("s_mov_b32 s62, %s" % f32bits(LOG2E))
    a("s_mov_b32 s63, %s" % f32bits(LOG2E))
    a("s_cmp_eq_u32 s67, 0")
    a("s_cselect_b64 s[68:69], -1, 0")
    a("s_waitcnt lgkmcnt(0)")
    T = T0 + 16
    po = [0, 1, 2, 5, 6]
    n = 0
    def tile(t, isv):
        nonlocal n
        for R in range(2):
            out = T0 + 4 * (n & 3); n += 1
            for h in range(2):
                rb = 2 * R + h
                D = acc(t, rb); rr = RR + 4 * rb
                if isv:
                    for p in range(2):
                        a("v_pk_mul_f32 %s, %s, %s" % (vr(T + 2 * p, 2), vr(D + 2 * p, 2), vr(rr + 2 * p, 2)))
                else:
                    for p in range(2):
                        a("v_pk_mul_f32 %s, %s, %s" % (vr(T + 8 + 2 * p, 2), vr(D + 2 * p, 2), vr(rr + 2 * p, 2)))
                    for p in range(2):
                        a("v_pk_mul_f32 %s, %s, s[62:63]" % (vr(T + 2 * p, 2), vr(T + 8 + 2 * p, 2)))
                    for p in range(2):
                        a("v_pk_add_f32 %s, %s, s[64:65]" % (vr(T + 4 + 2 * p, 2), vr(T + 8 + 2 * p, 2)))
                    for j in range(4):
                        a("v_exp_f32 v%d, v%d clamp" % (T + j, T + j))
                    for j in range(4):
                        a("v_max_f32 v%d, s64, v%d" % (T + 4 + j, T + 4 + j))
                    for p in range(2):
                        a("v_pk_add_f32 %s, %s, %s" % (vr(T + 2 * p, 2), vr(T + 2 * p, 2), vr(T + 4 + 2 * p, 2)))
                for p in range(2):
                    a("v_cvt_pk_bf16_f32 v%d, v%d, v%d" % (out + 2 * h + p, T + 2 * p, T + 2 * p + 1))
            a("ds_write_b128 v%d, %s offset:%d" % (11 if t == 2 else 10, vr(out, 4), FRL + po[t] * 8192 + R * 1024))
    tile(3, True); tile(4, True); tile(0, False); tile(1, False)
    a("s_cmp_lg_u32 s67, 0")
    a("s_cbranch_scc1 K1_KV_T2V")
    tile(2, False)
    a("s_branch K1_KV_T2E")
    a.label("K1_KV_T2V"); a.flush()
    tile(2, True)
    a.label("K1_KV_T2E"); a.flush()
    a("s_waitcnt lgkmcnt(0)")
    a("s_barrier")
    gen_kvjob(a)

def gen_kvjob(a):
    w = S_WAVE
    a("v_lshlrev_b32 v2, 4, v0")
    a("s_sub_u32 s61, s%d, 5" % w)
    a("s_add_u32 s62, s61, 1")
    a("s_cmp_lt_u32 s%d, 5" % w)
    a("s_cselect_b32 s63, s%d, s61" % w)
    a("s_cselect_b32 s64, s%d, s62" % w)
    a("s_cselect_b32 s65, s%d, s62" % w)
    a("s_cselect_b32 s66, s%d, s61" % w)
    a("s_cselect_b32 s70, 1, 0")
    a("s_add_u32 s71, s%d, 3" % w)
    a("s_sub_u32 s72, 4, s%d" % w)
    a("s_lshl_b32 s74, s%d, 6" % S_MT)
    a("s_lshl_b32 s75, s%d, 3" % S_GRP)
    a("s_add_u32 s74, s74, s75")
    a("s_lshl_b32 s74, s74, 11")
    a("s_add_u32 s74, s74, %d" % WS_KVP)
    a("v_mov_b32 v13, %d" % OOB)
    A0, B0, D = 16, 48, 80
    def job(sa, sb, zflag, tag):
        a("s_lshl_b32 s76, s%d, 13" % sa)
        a("v_add_u32 v3, s76, v2")
        a("s_lshl_b32 s77, s%d, 13" % sb)
        a("s_add_u32 s77, s77, %d" % (5 * 8192))
        a("v_add_u32 v4, s77, v2")
        for k in range(8):
            a("ds_read_b128 %s, v3 offset:%d" % (vr(A0 + 4 * k, 4), FRL + k * 1024))
        for k in range(8):
            a("ds_read_b128 %s, v4 offset:%d" % (vr(B0 + 4 * k, 4), FRL + k * 1024))
        a("s_lshl_b32 s77, s%d, 4" % sb)
        a("v_add_u32 v6, s77, v14")
        divmod_const(a, 7, 8, 6, 20, 128)
        a("v_cmp_le_u32 vcc, 10, v8")
        a("v_cndmask_b32 v9, 0, 1, vcc")
        a("v_mul_u32_u24 v10, 10, v9")
        a("v_sub_u32 v10, v8, v10")
        a("v_lshrrev_b32 v11, 2, v10")
        a("v_lshlrev_b32 v11, 3, v11")
        a("v_lshl_add_u32 v11, v9, 2, v11")
        a("v_and_b32 v12, 3, v10")
        a("v_add_u32 v11, v11, v12")
        if zflag:
            lab = "K1_KVJ_NZ" + tag
            a("s_cmp_eq_u32 s%d, 0" % zflag)
            a("s_cbranch_scc1 %s" % lab)
            a("s_waitcnt lgkmcnt(0)")
            for r in range(32):
                a("v_mov_b32 v%d, 0x3f803f80" % (B0 + r))
            a("v_lshrrev_b32 v7, 1, v14")
            a("v_and_b32 v11, 1, v14")
            a("v_lshlrev_b32 v11, 2, v11")
            a("v_add_u32 v11, 18, v11")
            a("v_cmp_gt_u32 vcc, 8, v14")
            a("v_cndmask_b32 v7, 64, v7, vcc")
            a.label(lab)
        a("v_sub_u32 v12, s%d, v7" % sa)
        a("v_cmp_gt_u32 vcc, 2, v12")
        a("v_lshl_add_u32 v12, v7, 1, v12")
        a("v_lshl_add_u32 v11, v12, 6, v11")
        a("v_and_b32 v12, 1, v15")
        a("v_lshl_add_u32 v11, v12, 5, v11")
        a("v_lshlrev_b32 v11, 5, v11")
        a("v_lshrrev_b32 v12, 1, v15")
        a("v_lshl_add_u32 v11, v12, 4, v11")
        a("v_cndmask_b32 v11, v13, v11, vcc")
        a("s_waitcnt lgkmcnt(0)")
        for k in range(8):
            a("v_mfma_f32_16x16x32_bf16 %s, %s, %s, %s" % (vr(D, 4), vr(A0 + 4 * k, 4), vr(B0 + 4 * k, 4), vr(D, 4) if k else "0"))
        a("buffer_store_dwordx4 %s, v11, s[%d:%d], s74 offen %s" % (vr(D, 4), SRD_WS, SRD_WS + 3, stflag()))
        a.nops(2)
    job(63, 64, 0, "0")
    job(65, 66, 70, "1")
    a("s_cmp_ge_u32 s%d, 2" % w)
    a("s_cbranch_scc1 K1_KVJ_DONE")
    job(71, 72, 0, "2")
    a.label("K1_KVJ_DONE")
    fin_compute(a)

def gen_packer(a):
    pst = CFG.get("pk_st", "sc1")
    a("s_sub_u32 s60, s29, 4")
    a("s_lshl_b32 s60, s60, 2")
    a("s_add_u32 s60, s60, s52")
    a("s_mul_i32 s60, s60, 12")
    a("s_add_u32 s60, s60, s%d" % S_WAVE)
    a("s_cmp_lg_u32 s60, 0")
    a("s_cbranch_scc1 K1_PK_NOTAG")
    srd(a, SRD_DBG, S_DBG, 256)
    a("s_memrealtime s[72:73]")
    a("s_waitcnt lgkmcnt(0)")
    a("s_or_b32 s72, s72, 1")
    a("v_mov_b32 v2, s72")
    a("s_mov_b64 exec, 1")
    a("buffer_store_dword v2, off, s[%d:%d], 0 sc0 sc1" % (SRD_DBG, SRD_DBG + 3))
    a("s_mov_b64 exec, -1")
    a.label("K1_PK_NOTAG")
    srd(a, SRD_W0, S_WD, 1728 * 1280)
    srd(a, SRD_W1, S_WO, 640 * 1280)
    a("s_mul_i32 s61, s%d, 10240" % S_WAVE)
    for i in range(10):
        a("v_add_u32 v2, %d, v0" % (64 * i))
        divmod_const(a, 20 + i, 3, 2, 20, 640)
        a("v_lshlrev_b32 v%d, 4, v3" % (30 + i))
    a("v_lshrrev_b32 v2, 4, v0")
    a("v_bfe_u32 v3, v0, 2, 2")
    a("v_lshl_add_u32 v2, v2, 3, v3")
    a("v_mul_u32_u24 v2, 320, v2")
    a("v_and_b32 v3, 3, v0")
    a("v_lshl_add_u32 v2, v3, 3, v2")
    a("v_add_u32 v10, s61, v2")
    a("v_lshlrev_b32 v11, 4, v0")
    a("s_cmp_ge_u32 s60, 64")
    a("s_cbranch_scc1 K1_PK_NOPOI")
    for r in range(4):
        a("v_mov_b32 v%d, -1" % (12 + r))
    a("s_lshl_b32 s62, s60, 10")
    a("s_add_u32 s62, s62, %d" % WS_KVF)
    a("buffer_store_dwordx4 v[12:15], v11, s[%d:%d], s62 offen sc0 sc1" % (SRD_WS, SRD_WS + 3))
    a.label("K1_PK_NOPOI")
    a("s_mov_b32 s70, 0")
    a.label("K1_PK_LOOP")
    a("s_lshr_b32 s62, s60, 2")
    a("s_and_b32 s63, s60, 3")
    a("s_mul_i32 s64, s63, 320")
    a("s_cmp_ge_u32 s62, 54")
    a("s_cbranch_scc1 K1_PK_O")
    a("s_mul_i32 s65, s62, %d" % (32 * 1280))
    a("s_add_u32 s64, s64, s65")
    a("s_mul_i32 s65, s62, 86")
    a("s_lshr_b32 s65, s65, 8")
    a("s_mul_i32 s65, s65, 3")
    a("s_sub_u32 s65, s62, s65")
    a("s_cmp_eq_u32 s65, 1")
    a("s_cselect_b64 s[68:69], -1, 0")
    for i in range(10):
        r = 20 + i
        a("v_and_b32 v2, 3, v%d" % r)
        a("v_lshrrev_b32 v3, 3, v%d" % r)
        a("v_lshl_add_u32 v2, v3, 2, v2")
        a("v_bfe_u32 v3, v%d, 2, 1" % r)
        a("v_lshl_add_u32 v2, v3, 4, v2")
        a("v_cndmask_b32 v2, v2, v%d, s[68:69]" % r)
        a("v_mul_u32_u24 v2, 1280, v2")
        a("v_add_u32 v2, v2, v%d" % (30 + i))
        a("s_add_u32 m0, s61, %d" % (i * 1024))
        a("buffer_load_dwordx4 v2, s[%d:%d], s64 offen lds" % (SRD_W0, SRD_W0 + 3))
    a("s_branch K1_PK_GO")
    a.label("K1_PK_O"); a.flush()
    a("s_sub_u32 s65, s62, 54")
    a("s_mul_i32 s66, s65, 52")
    a("s_lshr_b32 s66, s66, 8")
    a("s_mul_i32 s67, s66, 5")
    a("s_sub_u32 s67, s65, s67")
    a("s_lshl_b32 s67, s67, 4")
    a("s_mul_i32 s66, s66, %d" % (160 * 1280))
    a("s_add_u32 s64, s64, s66")
    for i in range(10):
        r = 20 + i
        a("v_and_b32 v2, 15, v%d" % r)
        a("v_add_u32 v2, s67, v2")
        divmod_const(a, 3, 4, 2, 10, 80)
        a("v_mul_u32_u24 v3, 20, v3")
        a("v_add_u32 v3, v3, v4")
        a("v_lshrrev_b32 v4, 4, v%d" % r)
        a("v_mul_u32_u24 v4, 10, v4")
        a("v_add_u32 v3, v3, v4")
        a("v_mul_u32_u24 v2, 1280, v3")
        a("v_add_u32 v2, v2, v%d" % (30 + i))
        a("s_add_u32 m0, s61, %d" % (i * 1024))
        a("buffer_load_dwordx4 v2, s[%d:%d], s64 offen lds" % (SRD_W1, SRD_W1 + 3))
    a.label("K1_PK_GO"); a.flush()
    m4 = CFG.get("merged") == 4
    def gettag(t):
        a("s_mov_b32 s73, 0")
        a.label("K1_PK_TAG" + t)
        a("buffer_load_dword v13, off, s[%d:%d], 0 sc1" % (SRD_DBG, SRD_DBG + 3))
        a("s_waitcnt vmcnt(0)")
        a("v_readfirstlane_b32 s78, v13")
        a("s_add_u32 s73, s73, 1")
        a("s_cmp_gt_u32 s73, 200000")
        a("s_cbranch_scc1 K1_PK_TAGOK" + t)
        a("s_cmp_eq_u32 s78, 0")
        a("s_cbranch_scc1 K1_PK_TAG" + t)
        a.label("K1_PK_TAGOK" + t)
    def pkflag(base):
        a("s_sub_u32 s72, s29, 4")
        a("s_lshl_b32 s72, s72, 2")
        a("s_add_u32 s72, s72, s52")
        a("s_lshl_b32 s72, s72, 7")
        a("s_add_u32 s72, s72, %d" % base)
        a("s_mov_b64 exec, 1")
        a("buffer_store_dword v13, off, s[%d:%d], s72 sc0 sc1" % (SRD_WS, SRD_WS + 3))
        a("s_mov_b64 exec, -1")
    def stores(base, sreg):
        for c in range(10):
            off = (c // 5) * 74 * 5120 + (c % 5) * 1024
            a("s_add_u32 s66, s%d, %d" % (sreg, off))
            a("buffer_store_dwordx4 %s, v11, s[%d:%d], s66 offen %s" % (vr(base + 4 * c, 4), SRD_WS, SRD_WS + 3, pst))
    def trreads(base):
        for c in range(10):
            a("ds_read_b64_tr_b16 %s, v10 offset:%d" % (vr(base + 4 * c, 2), c * 32))
            a("ds_read_b64_tr_b16 %s, v10 offset:%d" % (vr(base + 2 + 4 * c, 2), c * 32 + 4 * 320))
    a("s_lshl_b32 s65, s63, 1")
    a("s_mul_i32 s65, s65, 74")
    a("s_add_u32 s65, s65, s62")
    a("s_mul_i32 s65, s65, 5120")
    a("s_add_u32 s65, s65, %d" % WS_W2P)
    a("s_cmp_eq_u32 s70, 1")
    a("s_cbranch_scc1 K1_PK_SECOND")
    a("s_waitcnt vmcnt(0)")
    trreads(40)
    a("s_mov_b32 s71, s65")
    a("s_mov_b32 s70, 1")
    a("s_add_u32 s60, s60, 192")
    a("s_waitcnt lgkmcnt(0)")
    a("s_cmp_lt_u32 s60, 296")
    a("s_cbranch_scc1 K1_PK_LOOP")
    stores(40, 71)
    if m4: a("s_mov_b32 s70, 2")
    else: a("s_branch K1_PK_FIN")
    if m4: a("s_branch K1_PK_A")
    a.label("K1_PK_SECOND"); a.flush()
    stores(40, 71)
    if m4:
        a.label("K1_PK_A"); a.flush()
        srd(a, SRD_DBG, S_DBG, 256)
        a("s_waitcnt vmcnt(0)")
        a("s_barrier")
        a("s_cmp_lg_u32 s%d, 11" % S_WAVE)
        a("s_cbranch_scc1 K1_PK_NOA")
        gettag("A")
        pkflag(WS_PKA)
        a.label("K1_PK_NOA")
        a("s_cmp_eq_u32 s70, 2")
        a("s_cbranch_scc1 K1_PK_FIN")
    else:
        a("s_waitcnt vmcnt(10)")
    trreads(80)
    a("s_waitcnt lgkmcnt(0)")
    stores(80, 65)
    a.label("K1_PK_FIN"); a.flush()
    if CFG.get("pk_wb"):
        a("s_waitcnt vmcnt(0)")
        a("buffer_wbl2 sc1")
    if CFG.get("merged"):
        import p2
        srd(a, SRD_DBG, S_DBG, 256)
        a("s_waitcnt vmcnt(0)")
        a("s_barrier")
        a("s_cmp_lt_u32 s%d, 8" % S_WAVE)
        a("s_cbranch_scc1 %s" % ("K1_PK_W" if CFG.get("merged", 0) >= 2 else "K1_END"))
        a("s_mov_b32 s73, 0")
        a.label("K1_PK_TAG")
        a("buffer_load_dword v13, off, s[%d:%d], 0 sc1" % (SRD_DBG, SRD_DBG + 3))
        a("s_waitcnt vmcnt(0)")
        a("v_readfirstlane_b32 s78, v13")
        a("s_add_u32 s73, s73, 1")
        a("s_cmp_gt_u32 s73, 200000")
        a("s_cbranch_scc1 K1_PK_TAGOK")
        a("s_cmp_eq_u32 s78, 0")
        a("s_cbranch_scc1 K1_PK_TAG")
        a.label("K1_PK_TAGOK")
        a("s_sub_u32 s60, s%d, 8" % S_WAVE)
        a("s_cmp_lg_u32 s60, 0")
        a("s_cbranch_scc1 K1_PK_NOFLAG")
        a("s_sub_u32 s72, s29, 4")
        a("s_lshl_b32 s72, s72, 2")
        a("s_add_u32 s72, s72, s52")
        a("s_lshl_b32 s72, s72, 7")
        a("s_add_u32 s72, s72, %d" % WS_PKF)
        a("s_mov_b64 exec, 1")
        a("buffer_store_dword v13, off, s[%d:%d], s72 sc0 sc1" % (SRD_WS, SRD_WS + 3))
        a("s_mov_b64 exec, -1")
        a.label("K1_PK_NOFLAG")
        if m4:
            import p5
            w2base(a)
            a("s_mov_b32 s73, %d" % WS_PKA)
            p2.poll(a, "PK4", 16, 73, 7)
            for p in range(7, 14): p5.l_load(a, p, sbase=28, vb=5)
            a("s_mov_b32 s%d, 0" % S_GRP)
            a("s_branch P5_LSET")
            a.label("K1_PK_W"); a.flush()
            a("s_barrier")
            a("v_mov_b32 v12, %d" % (ST_FLAG + 4))
            a("ds_read_b32 v13, v12")
            a("s_waitcnt lgkmcnt(0)")
            a("s_cmp_ge_u32 s%d, 4" % S_WAVE)
            a("s_cbranch_scc1 P3_WORK")
            a("s_sub_u32 s82, s29, 4")
            a("s_lshl_b32 s82, s82, 2")
            a("s_add_u32 s82, s82, s52")
            a("s_lshl_b32 s82, s82, 2")
            a("s_add_u32 s82, s82, s%d" % S_WAVE)
            a("v_lshlrev_b32 v%d, 4, v0" % p2.V_B)
            p2.gen_reducer(a, F=82)
            a("s_branch P3_WORK")
            return
        if CFG.get("merged", 0) >= 2:
            import p3
            p3.setup(a, CFG)
            a("v_mov_b32 v12, %d" % (ST_FLAG + 4))
            a("ds_write_b32 v12, v13")
            a("s_waitcnt lgkmcnt(0)")
            a("s_barrier")
            a("s_mov_b32 s73, %d" % WS_PKF)
            p2.poll(a, "PK3", 16, 73, 7)
            if CFG.get("merged") == 2: p3.l_preload_regs(a)
            a("s_branch P3_LENTRY")
            a.label("K1_PK_W"); a.flush()
            a("s_barrier")
            a("v_mov_b32 v12, %d" % (ST_FLAG + 4))
            a("ds_read_b32 v13, v12")
            a("s_waitcnt lgkmcnt(0)")
            a("s_branch P3_WORK")
            return
        p2.setup(a, CFG)
        a("s_mov_b32 s79, 1")
        a("s_branch P2_ENTRY")
        return
    stamp_flush(a, 0, S_WAVE, 1)
    a("s_endpgm")
```
